```python
import torch

def _softmax(x, axis=-1):
    return torch.softmax(x, dim=axis)
def _gelu(x):
    return torch.nn.functional.gelu(x, approximate="tanh")
def _silu(x):
    return torch.nn.functional.silu(x)
def _sigmoid(x):
    return torch.sigmoid(x)
def _layernorm(x, axis=-1, eps=1e-5):
    m = x.mean(dim=axis, keepdim=True)
    v = x.var(dim=axis, keepdim=True, unbiased=False)
    return (x - m) / torch.sqrt(v + eps)
def _scatter_add(tgt, idx, src, axis=0):
    return tgt.clone().index_add_(axis, idx, src)
def _segment_sum(src, seg, n):
    out = torch.zeros((n,) + src.shape[1:], dtype=src.dtype)
    return out.index_add_(0, seg, src)
def _pad(x, pw):
    flat = tuple(v for pair in reversed(pw) for v in pair)
    return torch.nn.functional.pad(x, flat)

kernel_name = 'concat_heads__mha_block_cached__gqa_block_cached__near_ridge'

def setup_inputs():

    _w = (lambda a: (lambda t: t.to(torch.bfloat16) if t.is_floating_point() else t)(torch.as_tensor(a)))
    def _A_setup():
        B, Sq, D = 16, 160, 640
        H, Sk, Dh = 32, 512, 192
        return {
            "x": _w((lambda *s: torch.randn(*s, dtype=torch.bfloat16) * 0.8)(B, Sq, D)),
            "k_cache": _w((lambda *s: torch.randn(*s, dtype=torch.bfloat16) * 0.8)(B, H, Sk, Dh)),
            "v_cache": _w((lambda *s: torch.randn(*s, dtype=torch.bfloat16) * 0.05)(B, H, Sk, Dh)),
            "wq": _w((lambda *s: torch.randn(*s, dtype=torch.bfloat16) * 0.8)(D, H * Dh) * (D ** -0.5)),
            "wo": _w((lambda *s: torch.randn(*s, dtype=torch.bfloat16) * 0.05)(H * Dh, D) * ((H * Dh) ** -0.5)),
        }
    _A_in = _A_setup()

    def _B_setup():
        B, Sq, D = 16, 160, 640
        Hq, Hkv, Sk, Dh = 32, 32, 512, 192
        assert Hq % Hkv == 0, (Hq, Hkv)
        return {
            "x": _w((lambda *s: torch.randn(*s, dtype=torch.bfloat16) * 0.8)(B, Sq, D)),
            "k_cache": _w((lambda *s: torch.randn(*s, dtype=torch.bfloat16) * 0.8)(B, Hkv, Sk, Dh)),
            "v_cache": _w((lambda *s: torch.randn(*s, dtype=torch.bfloat16) * 0.05)(B, Hkv, Sk, Dh)),
            "wq": _w((lambda *s: torch.randn(*s, dtype=torch.bfloat16) * 0.8)(D, Hq * Dh) * (D ** -0.5)),
            "wo": _w((lambda *s: torch.randn(*s, dtype=torch.bfloat16) * 0.05)(Hq * Dh, D) * ((Hq * Dh) ** -0.5)),
        }
    _B_in = _B_setup()

    return {
        "A_x": _A_in["x"],
        "A_k_cache": _A_in["k_cache"],
        "A_v_cache": _A_in["v_cache"],
        "A_wq": _A_in["wq"],
        "A_wo": _A_in["wo"],
        "B_x": _B_in["x"],
        "B_k_cache": _B_in["k_cache"],
        "B_v_cache": _B_in["v_cache"],
        "B_wq": _B_in["wq"],
        "B_wo": _B_in["wo"],
    }

def reference(A_x, A_k_cache, A_v_cache, A_wq, A_wo, B_x, B_k_cache, B_v_cache, B_wq, B_wo):
    def _A_ref(x, k_cache, v_cache, wq, wo):
        B, Sq, D = x.shape
        H, Dh = 32, 192
        q = (lambda x, *d: x.permute(*d))((x @ wq).reshape(B, Sq, H, Dh), 0, 2, 1, 3)
        scores = torch.einsum("bhqd,bhkd->bhqk", q, k_cache) * (Dh ** -0.5)
        p = _softmax(scores, axis=-1)
        o = torch.einsum("bhqk,bhkd->bhqd", p, v_cache)
        return (lambda x, *d: x.permute(*d))(o, 0, 2, 1, 3).reshape(B, Sq, H * Dh) @ wo

    def _B_ref(x, k_cache, v_cache, wq, wo):
        B, Sq, D = x.shape
        Hq, Dh = 32, 192
        Hkv = k_cache.shape[1]
        rep = Hq // Hkv
        q = (lambda x, *d: x.permute(*d))((x @ wq).reshape(B, Sq, Hq, Dh), 0, 2, 1, 3)
        k = (lambda x, n, axis: torch.repeat_interleave(x, n, dim=axis))(k_cache, rep, axis=1)
        v = (lambda x, n, axis: torch.repeat_interleave(x, n, dim=axis))(v_cache, rep, axis=1)
        scores = torch.einsum("bhqd,bhkd->bhqk", q, k) * (Dh ** -0.5)
        p = _softmax(scores, axis=-1)
        o = torch.einsum("bhqk,bhkd->bhqd", p, v)
        return (lambda x, *d: x.permute(*d))(o, 0, 2, 1, 3).reshape(B, Sq, Hq * Dh) @ wo

    a = _A_ref(A_x, A_k_cache, A_v_cache, A_wq, A_wo)
    b = _B_ref(B_x, B_k_cache, B_v_cache, B_wq, B_wo)
    return torch.concatenate([a, b], axis=-1)
```

```python
import re

TRANS = ('v_exp_f32', 'v_rcp_f32', 'v_log_f32', 'v_rsq_f32', 'v_sqrt_f32')


class I:
    __slots__ = ('txt', 'kind', 'tag', 'n', 'extra')

    def __init__(self, txt, kind=None, tag=None, extra=None):
        self.txt = txt
        self.kind = kind or classify(txt)
        self.tag = tag
        self.n = None
        self.extra = extra

    def text(self):
        if self.kind == 'vmwait':
            return f"s_waitcnt vmcnt({self.n})"
        if self.kind == 'dswait':
            return f"s_waitcnt lgkmcnt({self.n})"
        if self.kind == 'bothwait':
            return f"s_waitcnt vmcnt({self.n}) lgkmcnt(0)"
        return self.txt

    def key(self):
        if self.kind in ('vmwait', 'dswait', 'bothwait'):
            return self.kind
        return self.txt


def classify(t):
    op = t.split()[0]
    if op.endswith(':'):
        return 'label'
    if op.startswith('v_mfma'):
        return 'mfma'
    if op in TRANS:
        return 'trans'
    if op.startswith('v_'):
        return 'valu'
    if op.startswith('ds_'):
        return 'ds'
    if op.startswith('buffer_') or op.startswith('global_'):
        if t.rstrip().endswith(' lds'):
            return 'dma'
        return 'vmem'
    if op.startswith('s_'):
        return 'salu'
    if op.startswith('.') or op.startswith(';'):
        return 'dir'
    raise ValueError(t)


def vmwait(tag):
    return I('vmwait', 'vmwait', tag)


def dswait(tag):
    return I('dswait', 'dswait', tag)


def bothwait(tag):
    return I('bothwait', 'bothwait', tag)


class Task:
    __slots__ = ('ins', 'earliest', 'gap', 'after', 'gapdist', 'mf_after')

    def __init__(self, ins, earliest=0, after=None, gapdist=0, mf_after=None):
        self.mf_after = mf_after
        self.ins = ins if isinstance(ins, I) else I(ins)
        self.earliest = earliest
        self.gap = None
        self.after = after
        self.gapdist = gapdist


COST = {'valu': 1, 'trans': 2, 'ds': 1, 'dma': 2, 'vmem': 2}


def schedule(mf, queues, fixed=None, tail_ok=True, greedy_scalar=lambda g: False):
    n = len(mf)
    fixed = fixed or {}
    gaps = []
    heads = [0] * len(queues)
    cum = []
    for g in range(n):
        cum.append((cum[-1] + len(gaps[-1]) + 1) if g else 0)
        sc = list(fixed.get(g, []))
        vec_ds, vec_v = [], []
        cap = 2
        cap -= max(0, len(sc) - 1)
        progress = True
        while progress:
            progress = False
            for qi, q in enumerate(queues):
                if heads[qi] >= len(q):
                    continue
                t = q[heads[qi]]
                if t.earliest > g:
                    continue
                if t.after is not None and (t.after.gap is None or t.after.gap + t.gapdist > g):
                    continue
                if t.mf_after is not None and (t.mf_after > g or cum[g] - cum[t.mf_after] < 8):
                    continue
                k = t.ins.kind
                if k in ('salu', 'vmwait', 'dswait', 'bothwait'):
                    if vec_ds or vec_v:
                        if any(x[1] == qi for x in vec_ds + vec_v):
                            continue
                    if any(x[0].kind in ('dma', 'vmem') for x in vec_ds):
                        continue
                    if len(sc) == 0:
                        sc.append(t.ins)
                    elif cap >= 1 and greedy_scalar(g):
                        sc.append(t.ins)
                        cap -= 1
                    else:
                        continue
                elif k in ('dma', 'vmem'):
                    if cap < 2 or sc:
                        continue
                    vec_ds.append((t.ins, qi))
                    cap -= 2
                elif k == 'ds':
                    if cap < 1:
                        continue
                    if any(x[1] == qi for x in vec_v):
                        continue
                    vec_ds.append((t.ins, qi))
                    cap -= 1
                else:
                    c = COST[k]
                    if cap < c:
                        continue
                    vec_v.append((t.ins, qi))
                    cap -= c
                t.gap = g
                heads[qi] += 1
                progress = True
                break
        gaps.append(sc + [x[0] for x in vec_ds] + [x[0] for x in vec_v])
    left = []
    for qi, q in enumerate(queues):
        for t in q[heads[qi]:]:
            t.gap = n - 1
            left.append(t.ins)
    if left:
        if not tail_ok:
            raise RuntimeError(f"{len(left)} tasks left over: {[x.txt for x in left[:5]]}")
        gaps[-1].extend(left)
    return gaps, len(left)


def resolve_waits(stream):
    vm = []
    ds = []
    seen = set()
    for ins in stream:
        k = ins.kind
        if k in ('dma', 'vmem'):
            vm.append(ins.tag)
            seen.add(ins.tag)
        elif k == 'ds':
            ds.append(ins.tag)
        elif k in ('vmwait', 'bothwait'):
            tags = ins.tag if isinstance(ins.tag, (list, set)) else [ins.tag]
            last = -1
            for idx in range(len(vm) - 1, -1, -1):
                if vm[idx] in tags:
                    last = idx
                    break
            for tg in tags:
                if tg not in seen:
                    raise RuntimeError(f"vmwait for unknown tag {tg}")
            if last < 0:
                ins.n = 63
            else:
                n = len(vm) - 1 - last
                ins.n = min(n, 63)
                vm = vm[len(vm) - ins.n:] if ins.n else []
            if k == 'bothwait':
                ds = []
        elif k == 'dswait':
            tags = ins.tag if isinstance(ins.tag, (list, set)) else [ins.tag]
            last = -1
            for idx in range(len(ds) - 1, -1, -1):
                if ds[idx] in tags:
                    last = idx
                    break
            if last < 0:
                ins.n = 15
                ins.extra = 'noop'
            else:
                n = len(ds) - 1 - last
                ins.n = min(n, 15)
                ds = ds[len(ds) - ins.n:] if ins.n else []
        elif k == 'salu' and ins.txt.startswith('s_waitcnt'):
            m = re.search(r'vmcnt\((\d+)\)', ins.txt)
            if m:
                c = int(m.group(1))
                vm = vm[len(vm) - c:] if c and c < len(vm) else ([] if c == 0 else vm)
            m = re.search(r'lgkmcnt\((\d+)\)', ins.txt)
            if m:
                c = int(m.group(1))
                ds = ds[len(ds) - c:] if c and c < len(ds) else ([] if c == 0 else ds)


_REG = re.compile(r'\b([vas])(\d+)\b|\b([vas])\[(\d+):(\d+)\]')


def regs_of(tok):
    out = []
    for m in _REG.finditer(tok):
        if m.group(1):
            out.append((m.group(1), int(m.group(2))))
        else:
            out.extend((m.group(3), r) for r in range(int(m.group(4)), int(m.group(5)) + 1))
    if re.search(r'\bvcc\b', tok):
        out.append(('s', 'vcc'))
    if re.search(r'\bm0\b', tok):
        out.append(('s', 'm0'))
    return out


def defs_uses(ins):
    t = ins.txt
    k = ins.kind
    parts = t.split(None, 1)
    op = parts[0]
    ops = [o.strip() for o in parts[1].split(',')] if len(parts) > 1 else []
    d, u = [], []
    if k == 'mfma':
        d = regs_of(ops[0])
        u = {'a': regs_of(ops[1]), 'b': regs_of(ops[2]), 'c': regs_of(ops[3])}
        return d, u
    if k in ('valu', 'trans'):
        if op.startswith('v_permlane') and 'swap' in op:
            d = regs_of(ops[0]) + regs_of(ops[1])
            u = list(d)
        elif op.startswith('v_cmp'):
            d = regs_of(ops[0])
            u = sum((regs_of(o) for o in ops[1:]), [])
        else:
            d = regs_of(ops[0])
            u = sum((regs_of(o) for o in ops[1:]), [])
            if op.startswith('v_fmac') or op.startswith('v_dot2c'):
                u += d
            if op.startswith('v_cndmask') and len(ops) == 3:
                u.append(('s', 'vcc'))
        return d, u
    if k == 'ds':
        if op.startswith('ds_read') or op.startswith('ds_bpermute'):
            d = regs_of(ops[0])
            u = sum((regs_of(o) for o in ops[1:]), [])
        else:
            u = sum((regs_of(o) for o in ops), [])
        return d, u
    if k == 'dma':
        u = sum((regs_of(o) for o in ops), []) + [('s', 'm0')]
        return d, u
    if k == 'vmem':
        if 'load' in op:
            d = regs_of(ops[0])
            u = sum((regs_of(o) for o in ops[1:]), [])
        else:
            u = sum((regs_of(o) for o in ops), [])
        return d, u
    if k == 'salu':
        if op.startswith(('s_cmp', 's_cbranch', 's_branch', 's_barrier', 's_waitcnt', 's_nop', 's_endpgm', 's_setprio', 's_setpc', 's_sleep')):
            u = sum((regs_of(o) for o in ops), [])
        else:
            d = regs_of(ops[0]) if ops else []
            u = sum((regs_of(o) for o in ops[1:]), [])
        return d, u
    return d, u


def check_hazards(stream, name=''):
    pos = 0
    last_mfma_w = {}
    last_mfma_dset = {}
    last_mfma_c = {}
    last_valu_w = {}
    last_trans_w = {}
    last_valu_sw = {}
    last_salu_m0 = -100
    last_store_data = {}
    errs = []

    def err(msg, ins):
        errs.append(f"{name}: {msg}: {ins.text()} (pos {pos})")

    for ins in stream:
        k = ins.kind
        if k in ('label', 'dir'):
            continue
        d, u = defs_uses(ins) if k not in ('vmwait', 'dswait', 'bothwait') else ([], [])
        op = ins.txt.split()[0]
        if k == 'mfma':
            for r in u['a'] + u['b']:
                if r in last_mfma_w and pos - last_mfma_w[r] - 1 < 8:
                    err(f"MFMA D->A/B {r}", ins)
            cset = tuple(u['c'])
            for r in u['c']:
                if r in last_mfma_w and last_mfma_dset[r] != cset and pos - last_mfma_w[r] - 1 < 6:
                    err(f"MFMA D->C overlap {r}", ins)
            for r in u['a'] + u['b'] + u['c']:
                if r in last_valu_w and pos - last_valu_w[r] - 1 < 2:
                    err(f"VALU->MFMA {r}", ins)
            for r in d:
                if r in last_mfma_w and last_mfma_dset[r] != tuple(d) and pos - last_mfma_w[r] - 1 < 6:
                    err(f"MFMA WAW {r}", ins)
            for r in u['c']:
                last_mfma_c[r] = pos
            for r in d:
                last_mfma_w[r] = pos
                last_mfma_dset[r] = tuple(d)
                last_valu_w.pop(r, None)
        else:
            alluse = list(u) + list(d)
            if k in ('valu', 'trans', 'ds', 'dma', 'vmem'):
                for r in alluse:
                    if r in last_mfma_w and pos - last_mfma_w[r] - 1 < 8:
                        err(f"MFMA D->{k} {r}", ins)
            if k in ('valu', 'trans'):
                for r in d:
                    if r in last_mfma_c and pos - last_mfma_c[r] - 1 < 3:
                        err(f"MFMA C WAR {r}", ins)
                    if r in last_store_data and pos - last_store_data[r] - 1 < 2:
                        err(f"store data WAR {r}", ins)
                if k == 'valu':
                    for r in u:
                        if r in last_trans_w and pos - last_trans_w[r] - 1 < 1:
                            err(f"trans->valu {r}", ins)
                if op.startswith('v_permlane'):
                    for r in u:
                        if r in last_valu_w and pos - last_valu_w[r] - 1 < 2:
                            err(f"valu->permlane {r}", ins)
                if op.startswith(('v_readfirstlane', 'v_readlane')):
                    for r in u:
                        if r in last_valu_w and pos - last_valu_w[r] - 1 < 1:
                            err(f"valu->readlane {r}", ins)
                for r in u:
                    if r[0] == 's' and r in last_valu_sw and pos - last_valu_sw[r] - 1 < 2:
                        err(f"valu sgpr->valu {r}", ins)
                for r in d:
                    if r[0] == 's':
                        last_valu_sw[r] = pos
                    else:
                        last_valu_w[r] = pos
                        last_mfma_w.pop(r, None)
                        if k == 'trans':
                            last_trans_w[r] = pos
                        else:
                            last_trans_w.pop(r, None)
            if k in ('dma', 'vmem'):
                for r in u:
                    if r[0] == 's' and r in last_valu_sw and pos - last_valu_sw[r] - 1 < 5:
                        err(f"valu sgpr->vmem {r}", ins)
                if k == 'dma' and pos - last_salu_m0 - 1 < 1:
                    err("m0->dma", ins)
                if k == 'vmem' and 'store' in op and ('x4' in op or 'x3' in op):
                    for r in regs_of(ins.txt.split(None, 1)[1].split(',')[0]):
                        last_store_data[r] = pos
            if k in ('ds', 'vmem'):
                for r in d:
                    if r in last_store_data and pos - last_store_data[r] - 1 < 1:
                        err(f"store data WAR(load) {r}", ins)
                    last_valu_w.pop(r, None)
                    last_mfma_w.pop(r, None)
            if k == 'salu':
                if ('s', 'm0') in d:
                    last_salu_m0 = pos
                for r in d:
                    last_valu_sw.pop(r, None)
        if op == 's_nop':
            pos += int(ins.txt.split()[1]) + 1
        else:
            pos += 1
    return errs


def same_text(a, b):
    return len(a) == len(b) and all(x.key() == y.key() for x, y in zip(a, b))


def merge_min(blocks):
    base = blocks[0]
    for other in blocks[1:]:
        assert same_text(base, other), "blocks differ"
        for x, y in zip(base, other):
            if x.n is not None:
                x.n = min(x.n, y.n)
    return base
```

```python
import math
import struct
from asmlib import *

SLOT = 24576
NSLOT = 6
RING = SLOT * NSLOT
NUNITS = 2

sX, sK, sV, sW, sO = 8, 12, 16, 20, 24
S_WAVE, S_J, S_R = 28, 29, 30
S_WR, S_RD = 31, 32
S_KOFF, S_VOFF, S_WOFF, S_XOFF = 33, 34, 35, 36
S_CKV, S_CW, S_CX = 37, 38, 39
S_T0, S_T1, S_T2, S_T3 = 40, 41, 42, 43
S_LOOP, S_UNIT = 44, 45
S_SCALE = 46
S_OOFF = 47
S_WBASE, S_XBASE = 48, 49
S_RET = 50
S_DMIN = 52
S_FORCED = 53
S_NRW, S_NRX = 54, 55
S_T4 = 56


def srd(b):
    return f"s[{b}:{b+3}]"


def vq(b):
    return f"v[{b}:{b+3}]"


def aq(b):
    return f"a[{b}:{b+3}]"


def Qf(ks, i): return 4 * (5 * ks + i)
def Sr(st, i): return 120 + 20 * st + 4 * i
def Pr(par, i): return 160 + 20 * par + 4 * i
def NM(i): return 200 + 4 * i


L0, TS0, E0 = 220, 225, 230
KA, VA, CHK = 238, 240, 244
PAT_KV, PAT_W, PAT_X = 245, 248, 251
LP_K, LP_V, LP_W, LP_X = 252, 253, 254, 255
WA, XA = 240, 244
def ACC(n, i): return 4 * (5 * n + i)
def Oa(n, i): return 4 * (5 * n + i)
def FR(b): return 240 + 4 * b
def XF(s, i): return 20 * s + 4 * i
def WF(b): return 40 + 4 * b


NWF = 6
MF = "v_mfma_f32_16x16x32_bf16"
KV_POL = " nt"


def ring_adv(s, tmp):
    return [I(f"s_add_u32 s{s}, s{s}, {SLOT}"),
            I(f"s_sub_u32 s{tmp}, s{s}, {RING}"),
            I(f"s_min_u32 s{s}, s{s}, s{tmp}")]


def item_kind(idx):
    if idx < 30:
        it, k = divmod(idx, 3)
        return [('W', 2 * it), ('X', it), ('W', 2 * it + 1)][k]
    a = idx - 30
    if a == 0:
        return ('K', 0)
    if a == 31:
        return ('V', 15)
    return ('K', (a + 1) // 2) if a % 2 == 1 else ('V', a // 2 - 1)


def dma_item(gid):
    u, idx = divmod(gid, 62)
    kind, num = item_kind(idx)
    out = []
    if idx == 0:
        out += [I(f"s_add_u32 s{S_WBASE}, s{S_WBASE}, 768"),
                I(f"s_mov_b32 s{S_WOFF}, s{S_WBASE}"),
                I(f"s_mov_b32 s{S_XOFF}, s{S_XBASE}"),
                I(f"s_mov_b32 s{sW+2}, s{S_NRW}"),
                I(f"s_mov_b32 s{sX+2}, s{S_NRX}")]
    if kind in 'KV':
        off = S_KOFF if kind == 'K' else S_VOFF
        d = srd(sK if kind == 'K' else sV)
        out.append(I(f"s_add_u32 m0, s{S_WR}, s{S_CKV}"))
        for n in range(3):
            out.append(I(f"buffer_load_dwordx4 v{PAT_KV+n}, {d}, s{off} offen offset:{1024*n}{KV_POL} lds", tag=gid))
        out.append(I(f"s_add_u32 m0, m0, 3072"))
        out.append(I(f"s_add_u32 s{S_T0}, s{off}, 3072"))
        for n in range(3):
            out.append(I(f"buffer_load_dwordx4 v{PAT_KV+n}, {d}, s{S_T0} offen offset:{1024*n}{KV_POL} lds", tag=gid))
        adv = 12288 + (196608 if num == 15 else 0)
        out.append(I(f"s_add_u32 s{off}, s{off}, {adv}"))
    elif kind == 'W':
        out.append(I(f"s_add_u32 m0, s{S_WR}, s{S_CW}"))
        for n in range(3):
            out.append(I(f"buffer_load_dwordx4 v{PAT_W+n}, {srd(sW)}, s{S_WOFF} offen offset:{1024*n} lds", tag=gid))
        out.append(I(f"s_add_u32 m0, m0, {16*384}"))
        out.append(I(f"s_add_u32 s{S_T0}, s{S_WOFF}, {16*12288}"))
        for n in range(3):
            out.append(I(f"buffer_load_dwordx4 v{PAT_W+n}, {srd(sW)}, s{S_T0} offen offset:{1024*n} lds", tag=gid))
        out.append(I(f"s_add_u32 s{S_WOFF}, s{S_WOFF}, {32*12288}"))
    else:
        out.append(I(f"s_add_u32 m0, s{S_WR}, s{S_CX}"))
        out.append(I(f"buffer_load_dwordx4 v{PAT_X}, {srd(sX)}, s{S_XOFF} offen lds", tag=gid))
        for p in range(1, 5):
            if p == 4:
                out.append(I(f"s_add_u32 m0, m0, 4096"))
                out.append(I(f"s_add_u32 s{S_T0}, s{S_XOFF}, {p*10240}"))
                out.append(I(f"buffer_load_dwordx4 v{PAT_X}, {srd(sX)}, s{S_T0} offen lds", tag=gid))
            else:
                out.append(I(f"s_add_u32 s{S_T0}, s{S_XOFF}, {p*(10240-1024)}"))
                out.append(I(f"buffer_load_dwordx4 v{PAT_X}, {srd(sX)}, s{S_T0} offen offset:{1024*p} lds", tag=gid))
        out.append(I(f"s_add_u32 s{S_XOFF}, s{S_XOFF}, 128"))
    out += ring_adv(S_WR, S_T1)
    return out


def straight(instrs):
    out = []
    for ins in instrs:
        if ins.kind == 'dma' and out and 'm0' in out[-1].txt.split(',')[0]:
            out.append(I("s_nop 0"))
        out.append(ins)
    return out


def open_item(kind):
    if kind == 'K':
        o = [I(f"v_add_u32 v{KA}, s{S_RD}, v{LP_K}"), I(f"v_xor_b32 v{KA+1}, 64, v{KA}")]
    elif kind in 'VW':
        lp = LP_V if kind == 'V' else LP_W
        o = [I(f"v_add_u32 v{VA}, s{S_RD}, v{lp}"), I(f"v_xor_b32 v{VA+1}, 32, v{VA}"),
             I(f"v_xor_b32 v{VA+2}, 64, v{VA}"), I(f"v_xor_b32 v{VA+3}, 64, v{VA+1}")]
    else:
        o = [I(f"v_add_u32 v{XA}, s{S_RD}, v{LP_X}")]
    return o + ring_adv(S_RD, S_T2)


def k_read(f, buf, tag):
    st, ks = divmod(f, 6)
    return [I(f"ds_read_b128 {aq(buf)}, v{KA + (ks & 1)} offset:{st*6144 + (ks >> 1)*128}", tag=tag)]


def v_read(n, buf, tag, half_off=6144):
    return [I(f"ds_read_b64_tr_b16 a[{buf+2*h}:{buf+2*h+1}], v{VA + (n & 3)} offset:{(n >> 2)*128 + h*half_off}", tag=tag)
            for h in range(2)]


def sm_ops(par, st, i, tbase):
    e = [E0 + (tbase + r) % 8 for r in range(4)]
    s = Sr(st, i)
    p = Pr(par, i) + 2 * st
    ts = TS0 + i
    o = [I(f"v_exp_f32 v{e[r]}, v{s+r}") for r in range(4)]
    o.append(I(f"v_cvt_pk_bf16_f32 v{p}, v{e[0]}, v{e[1]}"))
    if st == 0:
        o.append(I(f"v_add_f32 v{ts}, v{e[0]}, v{e[1]}"))
    else:
        o.append(I(f"v_add_f32 v{ts}, v{ts}, v{e[0]}"))
        o.append(I(f"v_add_f32 v{ts}, v{ts}, v{e[1]}"))
    o.append(I(f"v_cvt_pk_bf16_f32 v{p+1}, v{e[2]}, v{e[3]}"))
    o.append(I(f"v_add_f32 v{ts}, v{ts}, v{e[2]}"))
    o.append(I(f"v_add_f32 v{ts}, v{ts}, v{e[3]}"))
    return o


def qk_mfmas(first_zero=False):
    out = []
    for st in range(2):
        for ks in range(6):
            for i in range(5):
                f = st * 6 + ks
                c = (("0" if first_zero else vq(NM(i))) if ks == 0 else vq(Sr(st, i)))
                out.append((f, f"{MF} {vq(Sr(st,i))}, @FR@, {vq(Qf(ks,i))}, {c}"))
    return out


def pv_mfmas(par, zero=False):
    out = []
    for n in range(12):
        for i in range(5):
            c = "0" if zero else aq(Oa(n, i))
            out.append((n, f"{MF} {aq(Oa(n,i))}, @FR@, {vq(Pr(par,i))}, {c}"))
    return out


def flatten(mf, gaps, lo, hi):
    out = []
    for g in range(lo, hi):
        out.append(mf[g])
        out.extend(gaps[g])
    return out


BAR_LEAD = 12


def q_phase(u):
    g0 = 62 * u
    blocks = []
    pre = []
    pre += [bothwait([g0 + 0, g0 + 1]), I("s_barrier")]
    pre += open_item('W') + open_item('X')
    mf = []
    for s in range(20):
        for n in range(12):
            for i in range(5):
                F = s * 12 + n
                c = "0" if s == 0 else vq(ACC(n, i))
                mf.append(I(f"{MF} {vq(ACC(n,i))}, {aq(WF(F % NWF))}, {aq(XF(s & 1, i))}, {c}"))
    fixed = {}
    qds, qaddr, qdma = [], [], []
    bar_gap = {s: 60 * s - BAR_LEAD - 2 for s in range(1, 20)}

    def xreads(s):
        return [I(f"ds_read_b128 {aq(XF(s & 1, i))}, v{XA} offset:{2048*i}", tag=('x', u, s)) for i in range(5)]

    def wreads(F):
        return v_read(F % 12, WF(F % NWF), ('w', u, F), half_off=1536)

    pre += wreads(0) + xreads(0) + wreads(1) + wreads(2)
    pre += straight(dma_item(g0 + 5))
    pre.append(dswait([('w', u, 0), ('x', u, 0)]))
    last_read = None
    must_before = []
    for s in range(20):
        first = True
        addr_task = None
        if s >= 1:
            need = [g0 + 3 * (s // 2), g0 + 3 * (s // 2) + 1] if s % 2 == 0 else [g0 + 3 * (s // 2) + 2]
            fixed.setdefault(bar_gap[s], []).extend([bothwait(need), I("s_barrier")])
            must_before.append((last_read, bar_gap[s]))
            ops = open_item('W')
            if s % 2 == 0:
                ops += open_item('X')
            else:
                ops.append(I(f"v_xor_b32 v{XA}, 64, v{XA}"))
            for k, o in enumerate(ops):
                t = Task(o, earliest=0, after=last_read if k == 0 else None, gapdist=1)
                qaddr.append(t)
                addr_task = t
        for n in range(12):
            F = s * 12 + n
            if s == 0 and n < 3:
                continue
            e = 5 * (F - NWF) + 4
            rs = wreads(F)
            if n == 0:
                rs = rs + xreads(s)
            if s >= 1:
                e = max(e, bar_gap[s])
            for r in rs:
                t = Task(r, earliest=e, after=addr_task if first else None, gapdist=1)
                first = False
                qds.append(t)
                last_read = t
        for n in range(12):
            F = s * 12 + n
            if F == 0:
                continue
            tags = [('w', u, F)] + ([('x', u, s)] if n == 0 else [])
            fixed.setdefault(5 * F - 1, []).append(dswait(tags))
        if s >= 1:
            it = s // 2
            items = [3 * it + 4, 3 * it + 5] if s % 2 == 0 else [3 * it + 6]
            for x in items:
                for o in dma_item(g0 + x):
                    qdma.append(Task(o, earliest=bar_gap[s] + 1))
    gaps, left = schedule(mf, [qds, qaddr, qdma], fixed, tail_ok=False)
    for tk, g in must_before:
        assert tk.gap < g, (tk.gap, g)
    blocks.append(('qpre', pre))
    for it in range(10):
        blocks.append((f'q{it}', flatten(mf, gaps, 120 * it, 120 * it + 120)))
    fin = [I("s_nop 7")]
    for m in range(6):
        for i in range(5):
            a0, a1, d = ACC(2 * m, i), ACC(2 * m + 1, i), Qf(m, i)
            for a in (a0, a0 + 2, a1, a1 + 2):
                fin.append(I(f"v_pk_mul_f32 v[{a}:{a+1}], v[{a}:{a+1}], s[{S_SCALE}:{S_SCALE+1}] op_sel_hi:[1,0]"))
            fin.append(I(f"v_cvt_pk_bf16_f32 v{d}, v{a0}, v{a0+1}"))
            fin.append(I(f"v_cvt_pk_bf16_f32 v{d+1}, v{a0+2}, v{a0+3}"))
            fin.append(I(f"v_cvt_pk_bf16_f32 v{d+2}, v{a1}, v{a1+1}"))
            fin.append(I(f"v_cvt_pk_bf16_f32 v{d+3}, v{a1+2}, v{a1+3}"))
            prev = (m, i - 1) if i > 0 else ((m - 1, 4) if m > 0 else None)
            if prev:
                pd = Qf(*prev)
                fin.append(I(f"v_permlane16_swap_b32 v{pd}, v{pd+2}"))
                fin.append(I(f"v_permlane16_swap_b32 v{pd+1}, v{pd+3}"))
    pd = Qf(5, 4)
    fin.append(I("s_nop 1"))
    fin.append(I(f"v_permlane16_swap_b32 v{pd}, v{pd+2}"))
    fin.append(I(f"v_permlane16_swap_b32 v{pd+1}, v{pd+3}"))
    blocks.append(('qfin', fin))
    return blocks


def a_phase(u):
    g0 = 62 * u + 30
    nxt = 62 * (u + 1)
    blocks = []
    pre = [bothwait([g0]), I("s_barrier")]
    pre += open_item('K')
    for f in range(3):
        pre += k_read(f, FR(f), ('k', u, 0, f))
    for i in range(5):
        pre.append(I(f"v_mov_b32 v{L0+i}, 0"))
        for r in range(4):
            pre.append(I(f"v_mov_b32 v{NM(i)+r}, 0"))
    pre.append(dswait([('k', u, 0, 0)]))
    mf0 = [I(t.replace('@FR@', aq(FR(f % 4)))) for f, t in qk_mfmas(first_zero=True)]
    qds, qdma, fixed = [], [], {}
    for f in range(3, 12):
        for r in k_read(f, FR(f % 4), ('k', u, 0, f)):
            qds.append(Task(r, earliest=5 * (f - 4) + 4))
    for f in range(1, 12):
        fixed.setdefault(5 * f - 1, []).append(dswait([('k', u, 0, f)]))
    for x in (4, 5):
        for o in dma_item(g0 + x):
            qdma.append(Task(o, earliest=0))
    gaps, left = schedule(mf0, [qds, qdma], fixed, tail_ok=False)
    blk = pre + flatten(mf0, gaps, 0, 60)
    blk += [I(f"s_mov_b32 s{S_DMIN}, 0xf149f2ca"), I(f"s_mov_b32 s{S_FORCED}, 1"),
            I(f"s_call_b64 s[{S_RET}:{S_RET+1}], L_slow0"),
            I(f"s_mov_b32 s{S_DMIN}, 0"), I(f"s_mov_b32 s{S_FORCED}, 0")]
    blk += [bothwait([g0 + 1]), I("s_barrier")]
    blk += open_item('K')
    for f in range(3):
        blk += k_read(f, FR(f), ('k', u, 1, f))
    blk.append(dswait([('k', u, 1, 0)]))
    blocks.append(('a0', blk))

    halves = []
    for t in range(1, 16):
        halves.append(('K', t))
        halves.append(('V', t - 1))
    halves.append(('V', 15))
    mf, fixed = [], {}
    qds, qaddr, qdma, qsm, qexp = [], [], [], [], []
    grp_last = []
    last_read = {'K': None, 'V': None}
    must_before = []
    for h, (kind, t) in enumerate(halves):
        base = 60 * h
        seq = qk_mfmas() if kind == 'K' else pv_mfmas(t & 1, zero=(t == 0))
        for f, txt in seq:
            F = 12 * h + f
            mf.append(I(txt.replace('@FR@', aq(FR(F % 4)))))
        bar = base - BAR_LEAD
        addr_task = None
        if h >= 1:
            fixed.setdefault(bar, []).extend([bothwait([g0 + h + 1]), I("s_barrier")])
            must_before.append((qds[-1], bar))
            for k, o in enumerate(open_item(kind)):
                tk = Task(o, earliest=(base - 60 if (kind == 'V' and t < 15) else 0),
                          after=last_read[kind] if k == 0 else None, gapdist=1)
                qaddr.append(tk)
                if o.kind == 'valu':
                    addr_task = tk
        first = True
        for f in range(12):
            F = 12 * h + f
            if h == 0 and f < 3:
                continue
            tag = (kind.lower(), u, t, f)
            rs = k_read(f, FR(F % 4), tag) if kind == 'K' else v_read(f, FR(F % 4), tag)
            e = 5 * (F - 4) + 4
            if h >= 1:
                e = max(e, bar)
            for r in rs:
                tk = Task(r, earliest=e, after=addr_task if first else None, gapdist=1)
                first = False
                qds.append(tk)
                last_read[kind] = tk
        for f in range(12):
            F = 12 * h + f
            if F == 0:
                continue
            fixed.setdefault(5 * F - 1, []).append(dswait([(kind.lower(), u, t, f)]))
        x = h + 6
        gid = g0 + x if x < 32 else nxt + (x - 32)
        e = base if (h % 2 == 0) else base + 60
        for o in dma_item(gid):
            qdma.append(Task(o, earliest=e))
        if kind == 'K':
            for i in range(5):
                qsm.append(Task(I(f"v_add_f32 v{L0+i}, v{L0+i}, v{TS0+i}"), earliest=base))
            tb = 0
            for st in range(2):
                for i in range(5):
                    ops = sm_ops(t & 1, st, i, tb)
                    tb += 4
                    ex = []
                    for k, o in enumerate(ops[:4]):
                        tk = Task(o, earliest=base, mf_after=base + 30 * st + 25 + i,
                                  after=(grp_last[-2] if (k == 0 and len(grp_last) >= 2) else None), gapdist=1)
                        qexp.append(tk)
                        ex.append(tk)
                    for o in ops[4:]:
                        dep = max(k for k in range(4) if f"v{E0 + (tb - 4 + k) % 8}" in [x.strip() for x in o.txt.split(None, 1)[1].split(',')[1:]])
                        tk = Task(o, earliest=base, after=ex[dep], gapdist=1)
                        qsm.append(tk)
                    grp_last.append(tk)
            qsm.append(Task(I(f"v_max3_f32 v{CHK}, v{TS0}, v{TS0+1}, v{TS0+2}"), earliest=base))
            qsm.append(Task(I(f"v_max3_f32 v{CHK}, v{CHK}, v{TS0+3}, v{TS0+4}"), earliest=base))
            chk = Task(I(f"v_cmp_ngt_f32 vcc, 2.0, v{CHK}"), earliest=base)
            chk.ins.extra = ('chk', base + 119)
            qsm.append(chk)
            fixed.setdefault(base + 119, []).append(I(f"s_cbranch_vccnz @TRAMP{t & 1}@"))
        if kind == 'V' and t == 15:
            for i in range(5):
                qsm.append(Task(I(f"v_add_f32 v{L0+i}, v{L0+i}, v{TS0+i}"), earliest=base))
    gaps, left = schedule(mf, [qds, qaddr, qexp, qsm, qdma], fixed, tail_ok=False,
                          greedy_scalar=lambda g: (g % 120) < 28 or g >= 1800)
    for tk, g in must_before:
        assert tk.gap < g, (tk.gap, g)
    for tk in qsm:
        if isinstance(tk.ins.extra, tuple) and tk.ins.extra[0] == 'chk':
            assert tk.gap < tk.ins.extra[1], f"check placed too late: {tk.gap} vs {tk.ins.extra[1]}"
    for t in range(1, 16):
        blocks.append((f'a{t}', flatten(mf, gaps, 120 * (t - 1), 120 * t)))
    blocks.append(('apost', flatten(mf, gaps, 1800, 1860)))

    fin = []
    RL = 120
    for i in range(5):
        l, e = L0 + i, E0 + i
        fin.append(I(f"v_mov_b32 v{e}, v{l}"))
    fin.append(I("s_nop 1"))
    for i in range(5):
        fin.append(I(f"v_permlane32_swap_b32 v{L0+i}, v{E0+i}"))
    for i in range(5):
        fin.append(I(f"v_add_f32 v{L0+i}, v{L0+i}, v{E0+i}"))
    for i in range(5):
        fin.append(I(f"v_mov_b32 v{E0+i}, v{L0+i}"))
    fin.append(I("s_nop 1"))
    for i in range(5):
        fin.append(I(f"v_permlane16_swap_b32 v{L0+i}, v{E0+i}"))
    for i in range(5):
        fin.append(I(f"v_add_f32 v{L0+i}, v{L0+i}, v{E0+i}"))
    for i in range(5):
        fin.append(I(f"v_rcp_f32 v{RL+2*i}, v{L0+i}"))
    OA = 130
    fin.append(I(f"v_mbcnt_lo_u32_b32 v{OA}, -1, 0"))
    fin.append(I(f"v_mbcnt_hi_u32_b32 v{OA}, -1, v{OA}"))
    fin.append(I(f"v_lshlrev_b32 v{OA}, 4, v{OA}"))
    fin.append(I(f"v_add_u32 v{OA+1}, 4096, v{OA}"))
    grp = 0
    for m in range(6):
        fin.append(I(f"s_add_u32 s{S_T0}, s{S_OOFF}, {m*10240}"))
        for i in range(5):
            T = 136 + 8 * (grp % 4)
            D = 168 + 4 * (grp % 4)
            grp += 1
            for k in range(4):
                fin.append(I(f"v_accvgpr_read_b32 v{T+k}, a{Oa(2*m,i)+k}"))
            for k in range(4):
                fin.append(I(f"v_accvgpr_read_b32 v{T+4+k}, a{Oa(2*m+1,i)+k}"))
            for k in range(0, 8, 2):
                fin.append(I(f"v_pk_mul_f32 v[{T+k}:{T+k+1}], v[{T+k}:{T+k+1}], v[{RL+2*i}:{RL+2*i+1}] op_sel_hi:[1,0]"))
            for k in range(4):
                fin.append(I(f"v_cvt_pk_bf16_f32 v{D+k}, v{T+2*k}, v{T+2*k+1}"))
            if i < 4:
                fin.append(I(f"buffer_store_dwordx4 {vq(D)}, v{OA}, {srd(sO)}, s{S_T0} offen offset:{1024*i}", tag=('st', u)))
            else:
                fin.append(I(f"buffer_store_dwordx4 {vq(D)}, v{OA+1}, {srd(sO)}, s{S_T0} offen", tag=('st', u)))
    fin.append(I(f"s_add_u32 s{S_OOFF}, s{S_OOFF}, {2*61440}"))
    blocks.append(('ofin', fin))
    return blocks


def slow_path(par):
    o = [I(f"L_slow{par}:"), I("s_nop 7")]
    for i in range(5):
        a, b = Sr(0, i), Sr(1, i)
        e0, e1 = E0, E0 + 1
        o += [I(f"v_max3_f32 v{e0}, v{a}, v{a+1}, v{a+2}"),
              I(f"v_max3_f32 v{e0}, v{e0}, v{a+3}, v{b}"),
              I(f"v_max3_f32 v{e0}, v{e0}, v{b+1}, v{b+2}"),
              I(f"v_max_f32 v{e0}, v{e0}, v{b+3}"),
              I(f"v_mov_b32 v{e1}, v{e0}"),
              I("s_nop 1"),
              I(f"v_permlane32_swap_b32 v{e0}, v{e1}"),
              I(f"v_max_f32 v{e0}, v{e0}, v{e1}"),
              I(f"v_mov_b32 v{e1}, v{e0}"),
              I("s_nop 1"),
              I(f"v_permlane16_swap_b32 v{e0}, v{e1}"),
              I(f"v_max_f32 v{e0}, v{e0}, v{e1}"),
              I(f"v_ceil_f32 v{e0}, v{e0}"),
              I(f"v_add_f32 v{e0}, 0x40e00000, v{e0}"),
              I(f"v_max_f32 v{e0}, s{S_DMIN}, v{e0}")]
        for r in range(4):
            o.append(I(f"v_sub_f32 v{NM(i)+r}, v{NM(i)+r}, v{e0}"))
            o.append(I(f"v_sub_f32 v{a+r}, v{a+r}, v{e0}"))
            o.append(I(f"v_sub_f32 v{b+r}, v{b+r}, v{e0}"))
        o += [I(f"v_cvt_i32_f32 v{e1}, v{e0}"),
              I(f"v_sub_u32 v{TS0+i}, 0, v{e1}"),
              I(f"v_ldexp_f32 v{L0+i}, v{L0+i}, v{TS0+i}")]
    o += [I(f"s_cmp_eq_u32 s{S_FORCED}, 1"), I(f"s_cbranch_scc1 L_slow{par}_sm")]
    k = 0
    for n in range(12):
        for i in range(5):
            for r in range(4):
                e = E0 + k % 8
                k += 1
                o += [I(f"v_accvgpr_read_b32 v{e}, a{Oa(n,i)+r}"),
                      I(f"v_ldexp_f32 v{e}, v{e}, v{TS0+i}"),
                      I(f"v_accvgpr_write_b32 a{Oa(n,i)+r}, v{e}")]
    o.append(I(f"L_slow{par}_sm:"))
    tb = 0
    for st in range(2):
        for i in range(5):
            o += sm_ops(par, st, i, tb)
            tb += 4
    o += [I("s_nop 1"), I(f"s_setpc_b64 s[{S_RET}:{S_RET+1}]")]
    return o


def prologue(name, ws_o_off, ws_o_bytes):
    o = []
    A = lambda t: o.append(I(t))
    A(f"{name}:")
    A("s_cmp_ge_u32 s2, 256")
    A(f"s_cbranch_scc1 L_{name}_done")
    A("s_and_b32 s60, s2, 7")
    A("s_lshr_b32 s61, s2, 3")
    A("s_lshr_b32 s62, s60, 2")
    A("s_and_b32 s63, s60, 3")
    A("s_lshl_b32 s63, s63, 2")
    A("s_lshr_b32 s64, s61, 3")
    A("s_add_u32 s63, s63, s64")
    A("s_and_b32 s64, s61, 7")
    A("s_mul_i32 s65, s62, 40")
    A("s_add_u32 s66, s0, s65")
    A("s_addc_u32 s67, s1, 0")
    A("s_load_dwordx8 s[68:75], s[66:67], 0")
    A("s_load_dwordx2 s[76:77], s[0:1], 96")
    A("v_lshrrev_b32 v1, 6, v0")
    A("v_and_b32 v0, 63, v0")
    A(f"v_readfirstlane_b32 s{S_WAVE}, v1")
    A("s_nop 3")
    A(f"s_lshr_b32 s{S_J}, s{S_WAVE}, 1")
    A(f"s_and_b32 s{S_R}, s{S_WAVE}, 1")
    for n in range(3):
        A(f"v_add_u32 v3, {64*n}, v0")
        A("v_mul_u32_u24 v1, 171, v3")
        A("v_lshrrev_b32 v1, 12, v1")
        A("v_mul_u32_u24 v2, 24, v1")
        A("v_sub_u32 v2, v3, v2")
        A("v_bfe_u32 v4, v1, 1, 1")
        A("v_mul_u32_u24 v5, 3, v4")
        A("v_and_b32 v6, 4, v1")
        A("v_or_b32 v5, v5, v6")
        A("v_xor_b32 v5, v5, v2")
        A("v_lshlrev_b32 v5, 4, v5")
        A("v_mul_u32_u24 v6, 384, v1")
        A("v_add_u32 v5, v5, v6")
        A(f"v_subrev_u32 v{PAT_KV+n}, {1024*n}, v5")
        A("v_and_b32 v5, 2, v1")
        A(f"s_lshl_b32 s78, s{S_R}, 2")
        A("v_or_b32 v5, s78, v5")
        A("v_xor_b32 v5, v5, v2")
        A("v_lshlrev_b32 v5, 4, v5")
        A("v_mul_u32_u24 v6, 12288, v1")
        A("v_add_u32 v5, v5, v6")
        A(f"v_subrev_u32 v{PAT_W+n}, {1024*n}, v5")
    A("v_lshrrev_b32 v1, 3, v0")
    A("v_and_b32 v2, 7, v0")
    A("v_and_b32 v4, 6, v1")
    A("v_xor_b32 v2, v2, v4")
    A("v_lshlrev_b32 v2, 4, v2")
    A("v_mul_u32_u24 v1, 1280, v1")
    A(f"v_add_u32 v{PAT_X}, v1, v2")
    A("v_and_b32 v1, 15, v0")
    A("v_lshrrev_b32 v2, 4, v0")
    A(f"s_mul_i32 s78, s{S_J}, 12288")
    A("v_and_b32 v3, 1, v2")
    A("v_lshlrev_b32 v3, 1, v3")
    A("v_lshrrev_b32 v4, 1, v2")
    A("v_or_b32 v3, v3, v4")
    A("v_bfe_u32 v4, v1, 1, 1")
    A("v_mul_u32_u24 v4, 3, v4")
    A("v_and_b32 v5, 4, v1")
    A("v_or_b32 v4, v4, v5")
    A("v_xor_b32 v3, v3, v4")
    A("v_lshlrev_b32 v3, 4, v3")
    A("v_mul_u32_u24 v4, 384, v1")
    A("v_add3_u32 v%d, v3, v4, s78" % LP_K)
    A("v_lshrrev_b32 v3, 2, v1")
    A("v_and_b32 v4, 3, v0")
    A("v_lshl_add_u32 v5, v2, 2, v3")
    A("v_bfe_u32 v6, v5, 1, 1")
    A("v_mul_u32_u24 v6, 3, v6")
    A("v_and_b32 v7, 4, v5")
    A("v_or_b32 v6, v6, v7")
    A("v_lshrrev_b32 v7, 1, v4")
    A("v_xor_b32 v6, v6, v7")
    A("v_lshlrev_b32 v6, 4, v6")
    A("v_and_b32 v8, 1, v4")
    A("v_lshl_add_u32 v6, v8, 3, v6")
    A("v_mul_u32_u24 v5, 384, v5")
    A("v_add3_u32 v%d, v5, v6, s78" % LP_V)
    A("v_lshl_add_u32 v5, v2, 3, v3")
    A("v_and_b32 v6, 2, v3")
    A("v_and_b32 v9, 1, v2")
    A("v_lshl_or_b32 v6, v9, 2, v6")
    A("v_xor_b32 v6, v6, v7")
    A("v_lshlrev_b32 v6, 4, v6")
    A("v_lshl_add_u32 v6, v8, 3, v6")
    A("v_mul_u32_u24 v5, 384, v5")
    A("v_add3_u32 v%d, v5, v6, s78" % LP_W)
    A(f"s_mul_i32 s78, s{S_R}, 10240")
    A("v_lshrrev_b32 v3, 3, v1")
    A("v_lshlrev_b32 v3, 10, v3")
    A("v_and_b32 v4, 7, v1")
    A("v_lshl_add_u32 v3, v4, 7, v3")
    A("v_and_b32 v4, 6, v1")
    A("v_xor_b32 v4, v4, v2")
    A("v_lshlrev_b32 v4, 4, v4")
    A("v_add3_u32 v%d, v3, v4, s78" % LP_X)
    A(f"s_mul_i32 s78, s{S_J}, 12288")
    A(f"s_mul_i32 s79, s{S_R}, {16*384}")
    A(f"s_add_u32 s{S_CKV}, s78, s79")
    A(f"s_mul_i32 s79, s{S_R}, {8*384}")
    A(f"s_add_u32 s{S_CW}, s78, s79")
    A(f"s_mul_i32 s{S_CX}, s{S_WAVE}, 5120")
    A("s_lshl_b32 s80, s64, 2")
    A(f"s_add_u32 s80, s80, s{S_J}")
    A("s_lshl_b32 s81, s63, 5")
    A("s_add_u32 s81, s81, s80")
    A(f"s_mul_i32 s{S_KOFF}, s81, 196608")
    A(f"s_mul_i32 s79, s{S_R}, {16*384}")
    A(f"s_add_u32 s{S_KOFF}, s{S_KOFF}, s79")
    A(f"s_mov_b32 s{S_VOFF}, s{S_KOFF}")
    A(f"s_mul_i32 s{S_WBASE}, s80, 384")
    A(f"s_mul_i32 s79, s{S_R}, {8*12288}")
    A(f"s_add_u32 s{S_WBASE}, s{S_WBASE}, s79")
    A(f"s_sub_u32 s{S_WBASE}, s{S_WBASE}, 768")
    A(f"s_mul_i32 s{S_XBASE}, s63, 204800")
    A(f"s_mul_i32 s79, s{S_WAVE}, {40*1280}")
    A(f"s_add_u32 s{S_XBASE}, s{S_XBASE}, s79")
    A("s_lshl_b32 s79, s62, 9")
    A("s_add_u32 s79, s79, s81")
    A(f"s_mul_i32 s{S_OOFF}, s79, 61440")
    A(f"s_mul_i32 s79, s{S_R}, 5120")
    A(f"s_add_u32 s{S_OOFF}, s{S_OOFF}, s79")
    c = math.log2(math.e) / math.sqrt(192.0)
    cb = struct.unpack('<I', struct.pack('<f', c))[0]
    A(f"s_mov_b32 s{S_SCALE}, 0x{cb:08x}")
    A(f"s_mov_b32 s{S_WR}, 0")
    A(f"s_mov_b32 s{S_RD}, 0")
    A(f"s_mov_b32 s{S_UNIT}, 0")
    A(f"s_mov_b32 s{S_DMIN}, 0")
    A(f"s_mov_b32 s{S_FORCED}, 0")
    A(f"s_mov_b32 s{S_NRW}, {640*6144*2}")
    A(f"s_mov_b32 s{S_NRX}, {16*160*640*2}")
    A("s_waitcnt lgkmcnt(0)")
    for b, src, nbytes in ((sX, 68, 16*160*640*2), (sK, 70, 16*32*512*192*2), (sV, 72, 16*32*512*192*2), (sW, 74, 640*6144*2)):
        A(f"s_mov_b32 s{b}, s{src}")
        A(f"s_and_b32 s{b+1}, s{src+1}, 0xffff")
        A(f"s_mov_b32 s{b+2}, {nbytes}")
        A(f"s_mov_b32 s{b+3}, 0x20000")
    A(f"s_add_u32 s{sO}, s76, {ws_o_off}")
    A(f"s_addc_u32 s{sO+1}, s77, 0")
    A(f"s_and_b32 s{sO+1}, s{sO+1}, 0xffff")
    A(f"s_mov_b32 s{sO+2}, {ws_o_bytes}")
    A(f"s_mov_b32 s{sO+3}, 0x20000")
    for g in range(5):
        o += straight(dma_item(g))
    return o


def build(name, ws_o_off, ws_o_bytes):
    pro = prologue(name, ws_o_off, ws_o_bytes)
    units = []
    for u in range(NUNITS):
        head = [I(f"s_cmp_eq_u32 s{S_UNIT}, {NUNITS-1}"),
                I(f"s_cselect_b32 s{S_NRW}, 0, s{S_NRW}"),
                I(f"s_cselect_b32 s{S_NRX}, 0, s{S_NRX}")]
        units.append([('uhead', head)] + q_phase(u) + a_phase(u))
    stream = list(pro)
    for ub in units:
        for _, b in ub:
            stream += b
    resolve_waits(stream)
    errs = check_hazards(stream, name)
    for par in range(2):
        errs += check_hazards(slow_path(par), f'slow{par}')
    if errs:
        raise RuntimeError("\n".join(errs[:30]))
    for k in range(len(units[0])):
        merge_min([ub[k][1] for ub in units])
    ub = dict(units[0])
    out = [x.text() for x in pro]
    tramp = []
    cnt = [0]

    def emit(block):
        for x in block:
            t = x.text()
            if x.extra == 'noop':
                pass
            if '@TRAMP' in t:
                par = t.split('@TRAMP')[1][0]
                k = cnt[0]
                cnt[0] += 1
                out.append(t.replace(f'@TRAMP{par}@', f'L_tr{k}'))
                out.append(f'L_back{k}:')
                tramp.extend([f'L_tr{k}:', f's_call_b64 s[{S_RET}:{S_RET+1}], L_slow{par}', f's_branch L_back{k}'])
            else:
                out.append(t)

    def loop(label, names_list):
        body = [sum((ub[n] for n in names), []) for names in names_list]
        merged = merge_min(body)
        out.append(f"s_mov_b32 s{S_LOOP}, {len(names_list)}")
        out.append(".p2align 3")
        out.append(f"{label}:")
        emit(merged)
        out.append(f"s_sub_u32 s{S_LOOP}, s{S_LOOP}, 1")
        out.append(f"s_cmp_lg_u32 s{S_LOOP}, 0")
        out.append(f"s_cbranch_scc1 {label}")

    out.append(f"L_{name}_unit:")
    emit(ub['uhead'])
    emit(ub['qpre'])
    emit(ub['q0'])
    loop(f"L_{name}_q", [[f'q{it}'] for it in range(1, 7)])
    for it in (7, 8, 9):
        emit(ub[f'q{it}'])
    emit(ub['qfin'])
    emit(ub['a0'])
    emit(ub['a1'])
    loop(f"L_{name}_a", [[f'a{t}', f'a{t+1}'] for t in range(2, 12, 2)])
    for t in (12, 13, 14, 15):
        emit(ub[f'a{t}'])
    emit(ub['apost'])
    emit(ub['ofin'])
    out.append(f"s_add_u32 s{S_UNIT}, s{S_UNIT}, 1")
    out.append(f"s_cmp_lt_u32 s{S_UNIT}, {NUNITS}")
    out.append(f"s_cbranch_scc1 L_{name}_unit")
    out.append("s_waitcnt vmcnt(0)")
    out.append(f"L_{name}_done:")
    out.append("s_endpgm")
    out += tramp
    for par in range(2):
        out += [x.text() for x in slow_path(par)]
    return out


if __name__ == "__main__":
    o = build("k1_kernel", 0, 62914560)
    print(len(o), "lines")
```

```python
from asmlib import *

MF = "v_mfma_f32_16x16x32_bf16"
sO, sW, sC = 8, 12, 16
S_WAVE = 20
S_OOFF, S_WOFF = 21, 22
S_LBASE = 23
S_T0, S_T1, S_T2 = 24, 25, 26
S_LOOP = 27
S_COFF = 28
NK = 48
DEPTH = 4


def srd(b): return f"s[{b}:{b+3}]"
def vq(b): return f"v[{b}:{b+3}]"
def aq(b): return f"a[{b}:{b+3}]"
def ACC(nt, i): return 4 * (10 * nt + i)
def OF(s, i): return 40 * (s % DEPTH) + 4 * i
def WF(s, nt): return 160 + 20 * (s & 1) + 4 * nt


PAT = 200
VO = 205
WA = 208
T0 = 210


def o_load(s, i):
    vo = VO + i // 4
    return I(f"buffer_load_dwordx4 {aq(OF(s,i))}, v{vo}, {srd(sO)}, s{S_OOFF} offen offset:{1024*(i % 4)}", tag=('o', s, i))


def w_dma(s):
    slot = (s % DEPTH) * 5120
    o = [I(f"s_add_u32 m0, s{S_LBASE}, {slot}")]
    for n in range(4):
        o.append(I(f"buffer_load_dwordx4 v{PAT+n}, {srd(sW)}, s{S_WOFF} offen offset:{1024*n} lds", tag=('w', s)))
    o.append(I(f"s_add_u32 m0, s{S_LBASE}, {slot+4096}"))
    o.append(I(f"buffer_load_dwordx4 v{PAT+4}, {srd(sW)}, s{S_WOFF} offen lds", tag=('w', s)))
    o.append(I(f"s_add_u32 s{S_WOFF}, s{S_WOFF}, {32*1280}"))
    return o


def w_reads(s):
    slot = (s % DEPTH) * 5120
    o = []
    for nt in range(5):
        b = WF(s, nt)
        for h in range(2):
            o.append(I(f"ds_read_b64_tr_b16 a[{b+2*h}:{b+2*h+1}], v{WA} offset:{slot + nt*32 + h*2560}", tag=('wf', s)))
    return o


def straight(instrs):
    out = []
    for ins in instrs:
        if ins.kind == 'dma' and out and 'm0' in out[-1].txt.split(',')[0]:
            out.append(I("s_nop 0"))
        out.append(ins)
    return out


def build(name, ws_o_off, ws_o_bytes):
    pro = []
    A = lambda t: pro.append(I(t))
    A(f"{name}:")
    A("s_cmp_ge_u32 s2, 256")
    A(f"s_cbranch_scc1 L_{name}_done")
    A("s_and_b32 s60, s2, 7")
    A("s_lshr_b32 s61, s2, 3")
    A("s_lshr_b32 s62, s60, 2")
    A("s_and_b32 s63, s60, 3")
    A("s_lshl_b32 s63, s63, 2")
    A("s_lshr_b32 s64, s61, 3")
    A("s_add_u32 s63, s63, s64")
    A("s_and_b32 s64, s61, 7")
    A("s_mul_i32 s65, s62, 40")
    A("s_add_u32 s66, s0, s65")
    A("s_addc_u32 s67, s1, 0")
    A("s_load_dwordx2 s[68:69], s[66:67], 32")
    A("s_load_dwordx2 s[70:71], s[0:1], 80")
    A("s_load_dwordx2 s[72:73], s[0:1], 96")
    A("v_lshrrev_b32 v1, 6, v0")
    A("v_and_b32 v0, 63, v0")
    A(f"v_readfirstlane_b32 s{S_WAVE}, v1")
    for n in range(5):
        A(f"v_add_u32 v3, {64*n}, v0")
        A("v_mul_u32_u24 v1, 205, v3")
        A("v_lshrrev_b32 v1, 11, v1")
        A("v_mul_u32_u24 v2, 10, v1")
        A("v_sub_u32 v2, v3, v2")
        A("v_lshlrev_b32 v2, 4, v2")
        A("v_mul_u32_u24 v1, 1280, v1")
        A("v_add_u32 v1, v1, v2")
        A(f"v_subrev_u32 v{PAT+n}, {1024*n if n < 4 else 0}, v1")
    A(f"v_lshlrev_b32 v{VO}, 4, v0")
    A(f"v_add_u32 v{VO+1}, 4096, v{VO}")
    A(f"v_add_u32 v{VO+2}, 8192, v{VO}")
    A(f"s_mul_i32 s{S_LBASE}, s{S_WAVE}, {DEPTH*5120}")
    A("v_lshrrev_b32 v1, 2, v0")
    A("v_mul_u32_u24 v1, 160, v1")
    A("v_and_b32 v2, 3, v0")
    A("v_lshlrev_b32 v2, 3, v2")
    A(f"v_add3_u32 v{WA}, v1, v2, s{S_LBASE}")
    A("s_lshl_b32 s74, s62, 4")
    A("s_add_u32 s74, s74, s63")
    A("s_mul_i32 s74, s74, 192")
    A(f"s_mul_i32 s75, s{S_WAVE}, {NK}")
    A("s_add_u32 s74, s74, s75")
    A(f"s_mul_i32 s{S_OOFF}, s74, 10240")
    A(f"s_mul_i32 s{S_WOFF}, s{S_WAVE}, {NK*32*1280}")
    A("s_mul_i32 s75, s64, 160")
    A(f"s_add_u32 s{S_WOFF}, s{S_WOFF}, s75")
    A(f"s_mul_i32 s{S_COFF}, s63, {160*2560}")
    A("s_mul_i32 s74, s62, 1280")
    A(f"s_add_u32 s{S_COFF}, s{S_COFF}, s74")
    A(f"s_add_u32 s{S_COFF}, s{S_COFF}, s75")
    A("s_waitcnt lgkmcnt(0)")
    A(f"s_add_u32 s{sO}, s72, {ws_o_off}")
    A(f"s_addc_u32 s{sO+1}, s73, 0")
    A(f"s_and_b32 s{sO+1}, s{sO+1}, 0xffff")
    A(f"s_mov_b32 s{sO+2}, {ws_o_bytes}")
    A(f"s_mov_b32 s{sO+3}, 0x20000")
    A(f"s_mov_b32 s{sW}, s68")
    A(f"s_and_b32 s{sW+1}, s69, 0xffff")
    A(f"s_mov_b32 s{sW+2}, {6144*640*2}")
    A(f"s_mov_b32 s{sW+3}, 0x20000")
    A(f"s_mov_b32 s{sC}, s70")
    A(f"s_and_b32 s{sC+1}, s71, 0xffff")
    A(f"s_mov_b32 s{sC+2}, {16*160*1280*2}")
    A(f"s_mov_b32 s{sC+3}, 0x20000")
    for s in range(DEPTH):
        pro += straight(w_dma(s))
        for i in range(10):
            pro.append(o_load(s, i))
        pro.append(I(f"s_add_u32 s{S_OOFF}, s{S_OOFF}, 10240"))
    for r in range(200):
        pro.append(I(f"v_mov_b32 v{r}, 0"))
    pro.append(vmwait(('w', 0)))
    pro += w_reads(0)
    pro.append(vmwait(('o', 0, 0)))
    pro.append(dswait(('wf', 0)))

    mf, fixed = [], {}
    qds, qw, qo = [], [], []
    for s in range(NK):
        base = 50 * s
        for i in range(10):
            for nt in range(5):
                mf.append(I(f"{MF} {vq(ACC(nt,i))}, {aq(WF(s,nt))}, {aq(OF(s,i))}, {vq(ACC(nt,i))}"))
            if base + 5 * i > 0:
                w = [vmwait(('o', s, i))]
                if i == 0:
                    w.append(dswait(('wf', s)))
                fixed.setdefault(base + 5 * i - 1, []).extend(w)
            qo.append(Task(o_load(s + DEPTH, i), earliest=base + 5 * i + 5))
        qo.append(Task(I(f"s_add_u32 s{S_OOFF}, s{S_OOFF}, 10240"), earliest=base + 50))
        for o in w_dma(s + DEPTH):
            qw.append(Task(o, earliest=base + 1))
        qds.append(Task(vmwait(('w', s + 1)), earliest=base + 22))
        for r in w_reads(s + 1):
            qds.append(Task(r, earliest=base + 22))
    gaps, left = schedule(mf, [qds, qo, qw], fixed, tail_ok=True)
    blocks = []
    for it in range(NK // DEPTH):
        lo, hi = 50 * DEPTH * it, 50 * DEPTH * (it + 1)
        b = []
        for g in range(lo, hi):
            b.append(mf[g])
            b.extend(gaps[g])
        blocks.append(b)
    last = blocks[-1]
    for _ in range(left):
        last.pop()
    epi = []
    E = lambda t, **kw: epi.append(I(t, **kw))
    E("s_waitcnt vmcnt(0) lgkmcnt(0)")
    E("s_nop 7")
    E("s_barrier")
    LA, RA, CA = T0, T0 + 1, T0 + 2
    R = 216
    D = 232
    E(f"s_mul_i32 s{S_T0}, s{S_WAVE}, 25600")
    E(f"v_add_u32 v{LA}, s{S_T0}, v{VO}")
    E(f"s_lshl_b32 s{S_T0}, s{S_WAVE}, 10")
    E(f"v_add_u32 v{RA}, s{S_T0}, v{VO}")
    E(f"v_lshrrev_b32 v{CA}, 4, v{VO}")
    E(f"v_and_b32 v{CA+1}, 15, v{CA}")
    E(f"v_lshrrev_b32 v{CA}, 4, v{CA}")
    E(f"v_lshlrev_b32 v{CA}, 3, v{CA}")
    E(f"v_mul_u32_u24 v{CA+1}, 2560, v{CA+1}")
    E(f"v_add_u32 v{CA}, v{CA}, v{CA+1}")
    for rnd in range(2):
        for il in range(5):
            for nt in range(5):
                tl = il * 5 + nt
                E(f"ds_write_b128 v{LA}, {vq(ACC(nt, 5*rnd+il))} offset:{tl*1024}", tag=('wr', rnd))
        E("s_waitcnt lgkmcnt(0)")
        E("s_barrier")
        for k in range(7):
            if k == 6:
                E(f"s_cmp_lg_u32 s{S_WAVE}, 0")
                E(f"s_cbranch_scc1 L_{name}_skip{rnd}")
            for src in range(4):
                off = src * 25600 + k * 4096
                if off < 65536:
                    E(f"ds_read_b128 {vq(R+4*src)}, v{RA} offset:{off}", tag=('rd', rnd, k))
                else:
                    E(f"v_add_u32 v{RA+3}, 51200, v{RA}")
                    E(f"ds_read_b128 {vq(R+4*src)}, v{RA+3} offset:{off-51200}", tag=('rd', rnd, k))
            E(f"s_add_u32 s{S_T0}, s{S_WAVE}, {4*k}")
            E(f"s_mul_i32 s{S_T1}, s{S_T0}, 52")
            E(f"s_lshr_b32 s{S_T1}, s{S_T1}, 8")
            E(f"s_mul_i32 s{S_T2}, s{S_T1}, 5")
            E(f"s_sub_u32 s{S_T0}, s{S_T0}, s{S_T2}")
            E(f"s_lshl_b32 s{S_T0}, s{S_T0}, 5")
            E(f"s_mul_i32 s{S_T1}, s{S_T1}, {16*2560}")
            E(f"s_add_u32 s{S_T0}, s{S_T0}, s{S_T1}")
            E(f"s_add_u32 s{S_T0}, s{S_T0}, s{S_COFF}")
            E(f"s_add_u32 s{S_T0}, s{S_T0}, {5*rnd*16*2560}")
            E("s_waitcnt lgkmcnt(0)")
            for r in range(0, 4, 2):
                E(f"v_pk_add_f32 v[{R+r}:{R+r+1}], v[{R+r}:{R+r+1}], v[{R+4+r}:{R+5+r}]")
                E(f"v_pk_add_f32 v[{R+8+r}:{R+9+r}], v[{R+8+r}:{R+9+r}], v[{R+12+r}:{R+13+r}]")
            for r in range(0, 4, 2):
                E(f"v_pk_add_f32 v[{R+r}:{R+r+1}], v[{R+r}:{R+r+1}], v[{R+8+r}:{R+9+r}]")
            d = D + 2 * (k % 4)
            E(f"v_cvt_pk_bf16_f32 v{d}, v{R}, v{R+1}")
            E(f"v_cvt_pk_bf16_f32 v{d+1}, v{R+2}, v{R+3}")
            E(f"buffer_store_dwordx2 v[{d}:{d+1}], v{CA}, {srd(sC)}, s{S_T0} offen", tag='st')
        E(f"L_{name}_skip{rnd}:")
        if rnd == 0:
            E("s_barrier")
    E("s_waitcnt vmcnt(0)")

    stream = list(pro)
    for b in blocks:
        stream += b
    stream += epi
    resolve_waits(stream)
    errs = check_hazards(stream, name)
    if errs:
        raise RuntimeError("\n".join(errs[:30]))
    out = [x.text() for x in pro]
    out += [x.text() for x in blocks[0]]
    nb = len(blocks)
    body = merge_min(blocks[1:nb - 1])
    out.append(f"s_mov_b32 s{S_LOOP}, {nb-2}")
    out.append(".p2align 3")
    out.append(f"L_{name}_loop:")
    out += [x.text() for x in body]
    out.append(f"s_sub_u32 s{S_LOOP}, s{S_LOOP}, 1")
    out.append(f"s_cmp_lg_u32 s{S_LOOP}, 0")
    out.append(f"s_cbranch_scc1 L_{name}_loop")
    lastb = []
    for x in blocks[-1]:
        if x.kind in ('dma', 'vmem') and x.tag[1] >= NK:
            continue
        if x.kind == 'ds' and x.tag[1] >= NK:
            continue
        if x.kind == 'vmwait' and x.tag[1] >= NK:
            continue
        lastb.append(x)
    stream = list(pro)
    for b in blocks[:-1]:
        stream += b
    stream += lastb + epi
    saved = [x.n for x in body]
    resolve_waits(stream)
    for x, n in zip(body, saved):
        x.n = n
    errs = check_hazards(stream, name)
    if errs:
        raise RuntimeError("\n".join(errs[:30]))
    out += [x.text() for x in lastb]
    out += [x.text() for x in epi]
    out.append(f"L_{name}_done:")
    out.append("s_endpgm")
    return out


if __name__ == "__main__":
    o = build("k2_kernel", 0, 62914560)
    print(len(o), "lines")
```

```python
import sys
import k1, k2
NAME = "concat_heads__mha_block_cached__gqa_block_cached__near_ridge"
WS_O_OFF = 0
WS_O_BYTES = 2*16*32*6*10*1024
def kd(name, vgpr=512, sgpr=102, acc=256):
    return f""".amdhsa_kernel {name}
  .amdhsa_next_free_vgpr {vgpr}
  .amdhsa_next_free_sgpr {sgpr}
  .amdhsa_accum_offset {acc}
  .amdhsa_group_segment_fixed_size 0
  .amdhsa_kernarg_size 104
  .amdhsa_user_sgpr_count 2
  .amdhsa_user_sgpr_kernarg_segment_ptr 1
  .amdhsa_system_sgpr_workgroup_id_x 1
.end_amdhsa_kernel"""
def main(out):
    ref = open(f"cdna_kernels/{NAME}.s.ref").read().splitlines()
    head = [l for l in ref if l.startswith(';') and '@launch' not in l and 'Override launch' not in l and 'grid=ceil' not in l]
    L = list(head)
    L.append("; @launch kernel=attn_kernel grid=(256,1,1) block=(256,1,1) lds=147456")
    L.append("; @launch kernel=oproj_kernel grid=(256,1,1) block=(256,1,1) lds=102400")
    L.append('.amdgcn_target "amdgcn-amd-amdhsa--gfx950"')
    L.append(".text")
    for nm, mod in (("attn_kernel", k1), ("oproj_kernel", k2)):
        L += [f".globl {nm}", ".p2align 8", f".type {nm},@function"]
        L += mod.build(nm, WS_O_OFF, WS_O_BYTES)
    L.append('.section .rodata,"a"')
    for nm in ("attn_kernel", "oproj_kernel"):
        L.append(".p2align 6")
        L.append(kd(nm))
    open(out, 'w').write("\n".join(L) + "\n")
if __name__ == "__main__":
    main(sys.argv[1] if len(sys.argv) > 1 else f"cdna_kernels/{NAME}.s")
```

```python
import re

TRANS = ('v_exp_f32', 'v_rcp_f32', 'v_log_f32', 'v_rsq_f32', 'v_sqrt_f32')


class I:
    __slots__ = ('txt', 'kind', 'tag', 'n', 'extra')

    def __init__(self, txt, kind=None, tag=None, extra=None):
        self.txt = txt
        self.kind = kind or classify(txt)
        self.tag = tag
        self.n = None
        self.extra = extra

    def text(self):
        if self.kind in ('vmwait', 'afterwait'):
            return f"s_waitcnt vmcnt({self.n})"
        if self.kind == 'dswait':
            return f"s_waitcnt lgkmcnt({self.n})"
        if self.kind == 'bothwait':
            return f"s_waitcnt vmcnt({self.n}) lgkmcnt(0)"
        return self.txt

    def key(self):
        if self.kind in ('vmwait', 'dswait', 'bothwait', 'afterwait'):
            return self.kind
        return self.txt


def classify(t):
    op = t.split()[0]
    if op.endswith(':'):
        return 'label'
    if op.startswith('v_mfma'):
        return 'mfma'
    if op in TRANS:
        return 'trans'
    if op.startswith('v_'):
        return 'valu'
    if op.startswith('ds_'):
        return 'ds'
    if op.startswith('buffer_') or op.startswith('global_'):
        if t.rstrip().endswith(' lds'):
            return 'dma'
        return 'vmem'
    if op.startswith('s_'):
        return 'salu'
    if op.startswith('.') or op.startswith(';'):
        return 'dir'
    raise ValueError(t)


def vmwait(tag):
    return I('vmwait', 'vmwait', tag)


def dswait(tag):
    return I('dswait', 'dswait', tag)


def bothwait(tag):
    return I('bothwait', 'bothwait', tag)


class Task:
    __slots__ = ('ins', 'earliest', 'gap', 'after', 'gapdist', 'mf_after')

    def __init__(self, ins, earliest=0, after=None, gapdist=0, mf_after=None):
        self.mf_after = mf_after
        self.ins = ins if isinstance(ins, I) else I(ins)
        self.earliest = earliest
        self.gap = None
        self.after = after
        self.gapdist = gapdist


COST = {'valu': 1, 'trans': 2, 'ds': 1, 'dma': 2, 'vmem': 2}


def schedule(mf, queues, fixed=None, tail_ok=True, greedy_scalar=lambda g: False, capf=lambda g: 2, vm_space=1):
    n = len(mf)
    fixed = fixed or {}
    gaps = []
    heads = [0] * len(queues)
    cum = []
    last_vm = -100
    for g in range(n):
        cum.append((cum[-1] + len(gaps[-1]) + 1) if g else 0)
        sc = list(fixed.get(g, []))
        vec_ds, vec_v = [], []
        cap = capf(g)
        cap -= max(0, len(sc) - 1)
        progress = True
        while progress:
            progress = False
            for qi, q in enumerate(queues):
                if heads[qi] >= len(q):
                    continue
                t = q[heads[qi]]
                if t.earliest > g:
                    continue
                if t.after is not None and (t.after.gap is None or t.after.gap + t.gapdist > g):
                    continue
                if t.mf_after is not None and (t.mf_after > g or cum[g] - cum[t.mf_after] < 8):
                    continue
                k = t.ins.kind
                if k in ('salu', 'vmwait', 'dswait', 'bothwait'):
                    if vec_ds or vec_v:
                        if any(x[1] == qi for x in vec_ds + vec_v):
                            continue
                    if any(x[0].kind in ('dma', 'vmem') for x in vec_ds):
                        continue
                    if len(sc) == 0:
                        sc.append(t.ins)
                    elif cap >= 1 and greedy_scalar(g):
                        sc.append(t.ins)
                        cap -= 1
                    else:
                        continue
                elif k in ('dma', 'vmem'):
                    if cap < 2 or sc:
                        continue
                    if any(x[1] == qi for x in vec_v):
                        continue
                    if g - last_vm < (vm_space(g) if callable(vm_space) else vm_space):
                        continue
                    last_vm = g
                    vec_ds.append((t.ins, qi))
                    cap -= 2
                elif k == 'ds':
                    if cap < 1:
                        continue
                    if any(x[1] == qi for x in vec_v):
                        continue
                    vec_ds.append((t.ins, qi))
                    cap -= 1
                else:
                    c = COST[k]
                    if cap < c:
                        continue
                    vec_v.append((t.ins, qi))
                    cap -= c
                t.gap = g
                heads[qi] += 1
                progress = True
                break
        gaps.append(sc + [x[0] for x in vec_ds] + [x[0] for x in vec_v])
    left = []
    for qi, q in enumerate(queues):
        for t in q[heads[qi]:]:
            t.gap = n - 1
            left.append(t.ins)
    if left:
        if not tail_ok:
            raise RuntimeError(f"{len(left)} tasks left over: {[x.txt for x in left[:5]]}")
        gaps[-1].extend(left)
    return gaps, len(left)


def resolve_waits(stream):
    vm = []
    ds = []
    seen = set()
    marks = {}
    for ins in stream:
        k = ins.kind
        if k in ('dma', 'vmem'):
            vm.append(ins.tag)
            seen.add(ins.tag)
            for mk in marks:
                marks[mk] += 1
        elif k == 'mark':
            marks[ins.tag] = 0
        elif k == 'afterwait':
            ins.n = min(63, marks.get(ins.tag, 63))
        elif k == 'ds':
            ds.append(ins.tag)
        elif k in ('vmwait', 'bothwait'):
            tags = ins.tag if isinstance(ins.tag, (list, set)) else [ins.tag]
            last = -1
            for idx in range(len(vm) - 1, -1, -1):
                if vm[idx] in tags:
                    last = idx
                    break
            for tg in tags:
                if tg not in seen:
                    raise RuntimeError(f"vmwait for unknown tag {tg}")
            if last < 0:
                ins.n = 63
            else:
                n = len(vm) - 1 - last
                ins.n = min(n, 63)
                vm = vm[len(vm) - ins.n:] if ins.n else []
            if k == 'bothwait':
                ds = []
        elif k == 'dswait':
            tags = ins.tag if isinstance(ins.tag, (list, set)) else [ins.tag]
            last = -1
            for idx in range(len(ds) - 1, -1, -1):
                if ds[idx] in tags:
                    last = idx
                    break
            if last < 0:
                ins.n = 15
                ins.extra = 'noop'
            else:
                n = len(ds) - 1 - last
                ins.n = min(n, 15)
                ds = ds[len(ds) - ins.n:] if ins.n else []
        elif k == 'salu' and ins.txt.startswith('s_waitcnt'):
            m = re.search(r'vmcnt\((\d+)\)', ins.txt)
            if m:
                c = int(m.group(1))
                vm = vm[len(vm) - c:] if c and c < len(vm) else ([] if c == 0 else vm)
            m = re.search(r'lgkmcnt\((\d+)\)', ins.txt)
            if m:
                c = int(m.group(1))
                ds = ds[len(ds) - c:] if c and c < len(ds) else ([] if c == 0 else ds)


_REG = re.compile(r'\b([vas])(\d+)\b|\b([vas])\[(\d+):(\d+)\]')


def regs_of(tok):
    out = []
    for m in _REG.finditer(tok):
        if m.group(1):
            out.append((m.group(1), int(m.group(2))))
        else:
            out.extend((m.group(3), r) for r in range(int(m.group(4)), int(m.group(5)) + 1))
    if re.search(r'\bvcc\b', tok):
        out.append(('s', 'vcc'))
    if re.search(r'\bm0\b', tok):
        out.append(('s', 'm0'))
    return out


def defs_uses(ins):
    t = ins.txt
    k = ins.kind
    parts = t.split(None, 1)
    op = parts[0]
    ops = [o.strip() for o in parts[1].split(',')] if len(parts) > 1 else []
    d, u = [], []
    if k == 'mfma':
        d = regs_of(ops[0])
        u = {'a': regs_of(ops[1]), 'b': regs_of(ops[2]), 'c': regs_of(ops[3])}
        return d, u
    if k in ('valu', 'trans'):
        if op.startswith('v_permlane') and 'swap' in op:
            d = regs_of(ops[0]) + regs_of(ops[1])
            u = list(d)
        elif op.startswith('v_cmp'):
            d = regs_of(ops[0])
            u = sum((regs_of(o) for o in ops[1:]), [])
        else:
            d = regs_of(ops[0])
            u = sum((regs_of(o) for o in ops[1:]), [])
            if op.startswith('v_fmac') or op.startswith('v_dot2c'):
                u += d
            if op.startswith('v_cndmask') and len(ops) == 3:
                u.append(('s', 'vcc'))
        return d, u
    if k == 'ds':
        if op.startswith('ds_read') or op.startswith('ds_bpermute'):
            d = regs_of(ops[0])
            u = sum((regs_of(o) for o in ops[1:]), [])
        else:
            u = sum((regs_of(o) for o in ops), [])
        return d, u
    if k == 'dma':
        u = sum((regs_of(o) for o in ops), []) + [('s', 'm0')]
        return d, u
    if k == 'vmem':
        if 'load' in op:
            d = regs_of(ops[0])
            u = sum((regs_of(o) for o in ops[1:]), [])
        else:
            u = sum((regs_of(o) for o in ops), [])
        return d, u
    if k == 'salu':
        if op.startswith(('s_cmp', 's_cbranch', 's_branch', 's_barrier', 's_waitcnt', 's_nop', 's_endpgm', 's_setprio', 's_setpc', 's_sleep')):
            u = sum((regs_of(o) for o in ops), [])
        else:
            d = regs_of(ops[0]) if ops else []
            u = sum((regs_of(o) for o in ops[1:]), [])
        return d, u
    return d, u


def check_hazards(stream, name=''):
    pos = 0
    last_mfma_w = {}
    last_mfma_dset = {}
    last_mfma_c = {}
    last_valu_w = {}
    last_trans_w = {}
    last_valu_sw = {}
    last_salu_m0 = -100
    last_store_data = {}
    errs = []

    def err(msg, ins):
        errs.append(f"{name}: {msg}: {ins.text()} (pos {pos})")

    for ins in stream:
        k = ins.kind
        if k in ('label', 'dir', 'mark'):
            continue
        if k == 'xvmem':
            ins = I(ins.txt, 'vmem')
            k = 'vmem'
        if k == 'xsalu':
            ins = I(ins.txt, 'salu')
            k = 'salu'
        d, u = defs_uses(ins) if k not in ('vmwait', 'dswait', 'bothwait', 'afterwait') else ([], [])
        op = ins.txt.split()[0]
        if k == 'mfma':
            for r in u['a'] + u['b']:
                if r in last_mfma_w and pos - last_mfma_w[r] - 1 < 8:
                    err(f"MFMA D->A/B {r}", ins)
            cset = tuple(u['c'])
            for r in u['c']:
                if r in last_mfma_w and last_mfma_dset[r] != cset and pos - last_mfma_w[r] - 1 < 6:
                    err(f"MFMA D->C overlap {r}", ins)
            for r in u['a'] + u['b'] + u['c']:
                if r in last_valu_w and pos - last_valu_w[r] - 1 < 2:
                    err(f"VALU->MFMA {r}", ins)
            for r in d:
                if r in last_mfma_w and last_mfma_dset[r] != tuple(d) and pos - last_mfma_w[r] - 1 < 6:
                    err(f"MFMA WAW {r}", ins)
            for r in u['c']:
                last_mfma_c[r] = pos
            for r in d:
                last_mfma_w[r] = pos
                last_mfma_dset[r] = tuple(d)
                last_valu_w.pop(r, None)
        else:
            alluse = list(u) + list(d)
            if k in ('valu', 'trans', 'ds', 'dma', 'vmem'):
                for r in alluse:
                    if r in last_mfma_w and pos - last_mfma_w[r] - 1 < 8:
                        err(f"MFMA D->{k} {r}", ins)
            if k in ('valu', 'trans'):
                for r in d:
                    if r in last_mfma_c and pos - last_mfma_c[r] - 1 < 3:
                        err(f"MFMA C WAR {r}", ins)
                    if r in last_store_data and pos - last_store_data[r] - 1 < 2:
                        err(f"store data WAR {r}", ins)
                if k == 'valu':
                    for r in u:
                        if r in last_trans_w and pos - last_trans_w[r] - 1 < 1:
                            err(f"trans->valu {r}", ins)
                if op.startswith('v_permlane'):
                    for r in u:
                        if r in last_valu_w and pos - last_valu_w[r] - 1 < 2:
                            err(f"valu->permlane {r}", ins)
                if op.startswith(('v_readfirstlane', 'v_readlane')):
                    for r in u:
                        if r in last_valu_w and pos - last_valu_w[r] - 1 < 1:
                            err(f"valu->readlane {r}", ins)
                for r in u:
                    if r[0] == 's' and r in last_valu_sw and pos - last_valu_sw[r] - 1 < 2:
                        err(f"valu sgpr->valu {r}", ins)
                for r in d:
                    if r[0] == 's':
                        last_valu_sw[r] = pos
                    else:
                        last_valu_w[r] = pos
                        last_mfma_w.pop(r, None)
                        if k == 'trans':
                            last_trans_w[r] = pos
                        else:
                            last_trans_w.pop(r, None)
            if k in ('dma', 'vmem'):
                for r in u:
                    if r[0] == 's' and r in last_valu_sw and pos - last_valu_sw[r] - 1 < 5:
                        err(f"valu sgpr->vmem {r}", ins)
                if k == 'dma' and pos - last_salu_m0 - 1 < 1:
                    err("m0->dma", ins)
                if k == 'vmem' and 'store' in op and ('x4' in op or 'x3' in op):
                    for r in regs_of(ins.txt.split(None, 1)[1].split(',')[1 if op.startswith('global') else 0]):
                        last_store_data[r] = pos
            if k in ('ds', 'vmem'):
                for r in d:
                    if r in last_store_data and pos - last_store_data[r] - 1 < 1:
                        err(f"store data WAR(load) {r}", ins)
                    last_valu_w.pop(r, None)
                    last_mfma_w.pop(r, None)
            if k == 'salu':
                if ('s', 'm0') in d:
                    last_salu_m0 = pos
                for r in d:
                    last_valu_sw.pop(r, None)
        if op == 's_nop':
            pos += int(ins.txt.split()[1]) + 1
        else:
            pos += 1
    return errs


def same_text(a, b):
    return len(a) == len(b) and all(x.key() == y.key() for x, y in zip(a, b))


def merge_min(blocks):
    base = blocks[0]
    for other in blocks[1:]:
        assert same_text(base, other), "blocks differ"
        for x, y in zip(base, other):
            if x.n is not None:
                x.n = min(x.n, y.n)
    return base
```

```python
import sys
import kf
NAME = "concat_heads__mha_block_cached__gqa_block_cached__near_ridge"
WS = dict(o_off=0, o_bytes=2*16*32*6*10*1024, w_off=64 << 20, w_bytes=2*8*192*5120, dbg_off=96 << 20, e_off=100 << 20, e_bytes=1024*(13312+128), q_off=128 << 20)
def kd(name, vgpr=512, sgpr=102, acc=256):
    return f""".amdhsa_kernel {name}
  .amdhsa_next_free_vgpr {vgpr}
  .amdhsa_next_free_sgpr {sgpr}
  .amdhsa_accum_offset {acc}
  .amdhsa_group_segment_fixed_size 0
  .amdhsa_kernarg_size 104
  .amdhsa_user_sgpr_count 2
  .amdhsa_user_sgpr_kernarg_segment_ptr 1
  .amdhsa_system_sgpr_workgroup_id_x 1
.end_amdhsa_kernel"""
def main(out, aslist=False):
    ref = open(f"cdna_kernels/{NAME}.s.ref").read().splitlines()
    head = [l for l in ref if l.startswith(';') and '@launch' not in l and 'Override launch' not in l and 'grid=ceil' not in l]
    L = list(head)
    nm = NAME + "_kernel"
    if aslist:
        L.append(f"; @launch kernel={nm} grid=(256,1,1) block=(256,1,1) lds={kf.LDS_BYTES}")
    else:
        L.append(f"; @launch grid=(256,1,1) block=(256,1,1) lds={kf.LDS_BYTES}")
    L.append('.amdgcn_target "amdgcn-amd-amdhsa--gfx950"')
    L.append(".text")
    L += [f".globl {nm}", ".p2align 8", f".type {nm},@function"]
    L += kf.build(nm, WS)
    L.append('.section .rodata,"a"')
    L.append(".p2align 6")
    L.append(kd(nm))
    open(out, 'w').write("\n".join(L) + "\n")
if __name__ == "__main__":
    aslist = False
    if '--stamps' in sys.argv:
        sys.argv.remove('--stamps')
        kf.STAMPS = True
    if '--list' in sys.argv:
        sys.argv.remove('--list')
        aslist = True
    main(sys.argv[1] if len(sys.argv) > 1 else f"cdna_kernels/{NAME}.s", aslist)
```

```python
import math
import struct
from asmlib import *

SLOT = 24576
NSLOT = 6
RING = SLOT * NSLOT
SPARE = RING
LDS_BYTES = 163840
NUNITS = 2

sX, sK, sV, sW, sO = 8, 12, 16, 20, 24
S_WAVE, S_J, S_R = 28, 29, 30
S_WR, S_RD = 31, 32
S_KOFF, S_VOFF, S_WOFF, S_OADV = 33, 34, 35, 36
S_CKV, S_CW, S_OT = 37, 38, 39
S_T0, S_T1, S_T2, S_T3 = 40, 41, 42, 43
S_LOOP, S_UNIT = 44, 45
S_SCALE = 46
S_OOFF = 47
S_WBASE = 48
S_RET = 50
S_DMIN = 52
S_FORCED = 53
S_XBASE, S_XOFF, S_CX, S_WREL0, S_XREL0 = 49, 54, 55, 87, 3
S_QUAD, S_ESND, S_ERCV, S_TWO = 56, 57, 58, 59
sWo, sC, sD = 60, 68, 72
S_FOWN, S_FPART, S_PQ, S_PBASE = 64, 65, 66, 67
S_SPARE = 76
S_GRP = 77
S_U0, S_U1, S_U2, S_U3 = 78, 79, 80, 81
S_PSRC, S_PADV, S_COFF = 82, 83, 84
S_C5 = 85
sP, sE = 8, 20
S_BLKC = 86
S_ST = 88


def srd(b): return f"s[{b}:{b+3}]"
def vq(b): return f"v[{b}:{b+3}]"
def aq(b): return f"a[{b}:{b+3}]"


def Qf(ks, i): return 4 * (5 * ks + i)
def Sr(st, i): return 120 + 20 * st + 4 * i
def Pr(par, i): return 160 + 20 * par + 4 * i
def NM(i): return 200 + 4 * i


L0, TS0, E0 = 220, 225, 230
KA, VA, CHK = 238, 240, 244
PAT_KV, PAT_W, PAT_X = 245, 248, 251
LP_K, LP_V, LP_W, LP_X = 252, 253, 254, 255
WA, XA = 240, 244
RL = L0
Q_OA2, Q_T, Q_D, TCH, SA = 225, 226, 234, 238, 239
OPV = [248, 249, 250, 251, 254]
def ACC(n, i): return 4 * (5 * n + i)
def acc_reg(n, i): return vq(ACC(n, i)) if n < 11 else aq(60 + 4 * i)
def Oa(n, i): return 4 * (5 * n + i)
def FR(b): return 240 + 4 * b
def XF(s, i): return 20 * (s & 1) + 4 * i
WOF = 40
UNIT_ITEMS = 62
NQI = 30
OP0 = UNIT_ITEMS * NUNITS


MF = "v_mfma_f32_16x16x32_bf16"
KV_POL = " nt"
W_POL = ""
X_POL = ""
WO_UNIT = 0
WARM1 = True
ROT = True
WO_KS = 16
KV_TOUCH = 0
ROT_OP = True
FAKE_OP = False
ALLREAL = False
VM_Q, VM_A, VM_OP = 3, 1, 1
A_DMA_PRIO = False
FINE = False
ASIG_BEFORE = 'a2'
STP = " sc1"
HAND = " sc1"
STAMPS = False
WARM = True
BAR_LEAD = 12


def ring_adv(s, tmp):
    return [I(f"s_add_u32 s{s}, s{s}, {SLOT}"),
            I(f"s_sub_u32 s{tmp}, s{s}, {RING}"),
            I(f"s_min_u32 s{s}, s{s}, s{tmp}")]


def item_kind(idx):
    if idx < NQI:
        it, k = divmod(idx, 3)
        return [('W', 2 * it), ('X', it), ('W', 2 * it + 1)][k]
    a = idx - NQI
    if a == 0:
        return ('K', 0)
    if a == 31:
        return ('V', 15)
    return ('K', (a + 1) // 2) if a % 2 == 1 else ('V', a // 2 - 1)


NK = 96
PITEM = 20480


def op_addrs():
    addr, when = {}, {}
    live = []
    for it in range(6):
        a = ((OP0 + it) % NSLOT) * SLOT
        addr[it] = a
        when[it] = None if it < 5 else 0
        live.append((a, a + PITEM, it // 2 + 1))
    for it in range(6, NK):
        best = None
        for j in range(8):
            a = j * PITEM
            t = max([f for (s0, e0, f) in live if s0 < a + PITEM and a < e0] + [0])
            if best is None or t < best[0]:
                best = (t, a)
        t, a = best
        t = max(t, when[it - 1] or 0)
        addr[it], when[it] = a, t
        live = [x for x in live if not (x[0] < a + PITEM and a < x[1])]
        live.append((a, a + PITEM, it // 2 + 1))
        assert t <= it // 2 - 1, (it, t)
    return addr, when


def dma_op_item(it, pv):
    gid = OP0 + it
    a = op_addrs()[0][it]
    out = [I(f"s_add_u32 m0, s{S_C5}, {a}")]
    for k in range(4):
        out.append(I(f"buffer_load_dwordx4 v{pv[k]}, {srd(sP)}, s{S_PSRC} offen offset:{1024*k}{HAND} lds", tag=gid))
    out.append(I(f"s_add_u32 m0, s{S_C5}, {a + 4096}"))
    out.append(I(f"buffer_load_dwordx4 v{pv[4]}, {srd(sP)}, s{S_PSRC} offen{HAND} lds", tag=gid))
    if it % 12 != 11:
        out.append(I(f"s_add_u32 s{S_PSRC}, s{S_PSRC}, s{S_PADV}"))
    else:
        rnd = (it + 1) // 48
        out += [I(f"s_add_u32 s{S_PQ}, s{S_PQ}, 1"), I(f"s_and_b32 s{S_PQ}, s{S_PQ}, 3"),
                I(f"s_mul_i32 s{S_T0}, s{S_PQ}, 24"), I(f"s_add_u32 s{S_T0}, s{S_T0}, {12*rnd}"),
                I(f"s_mul_i32 s{S_T0}, s{S_T0}, s{S_PADV}"), I(f"s_add_u32 s{S_PSRC}, s{S_PBASE}, s{S_T0}")]
    return out


def dma_item(gid):
    if gid >= OP0:
        return dma_op_item(gid - OP0, OPV)
    u, idx = divmod(gid, UNIT_ITEMS)
    kind, num = item_kind(idx)
    out = []
    if idx == 0:
        out += [I(f"s_add_u32 s{S_WBASE}, s{S_WBASE}, 768"),
                I(f"s_mov_b32 s{S_WOFF}, s{S_WREL0}"),
                I(f"s_mov_b32 s{S_XOFF}, s{S_XREL0}")]
    if kind in 'KV':
        off = S_KOFF if kind == 'K' else S_VOFF
        d = srd(sK if kind == 'K' else sV)
        out.append(I(f"s_add_u32 m0, s{S_WR}, s{S_CKV}"))
        for n in range(3):
            out.append(I(f"buffer_load_dwordx4 v{PAT_KV+n}, {d}, s{off} offen offset:{1024*n}{KV_POL} lds", tag=gid))
        out.append(I(f"s_add_u32 m0, m0, 3072"))
        out.append(I(f"s_add_u32 s{S_T0}, s{off}, 3072"))
        for n in range(3):
            out.append(I(f"buffer_load_dwordx4 v{PAT_KV+n}, {d}, s{S_T0} offen offset:{1024*n}{KV_POL} lds", tag=gid))
        adv = 12288 + (196608 if num == 15 else 0)
        out.append(I(f"s_add_u32 s{off}, s{off}, {adv}"))
    elif kind == 'W':
        out.append(I(f"s_add_u32 m0, s{S_WR}, s{S_CW}"))
        out.append(I(f"s_add_u32 s{S_T0}, s{S_WOFF}, s{S_WBASE}"))
        for n in range(3):
            out.append(I(f"buffer_load_dwordx4 v{PAT_W+n}, {srd(sW)}, s{S_T0} offen offset:{1024*n}{W_POL} lds", tag=gid))
        out.append(I(f"s_add_u32 m0, m0, {16*384}"))
        out.append(I(f"s_add_u32 s{S_T0}, s{S_T0}, {16*12288}"))
        for n in range(3):
            out.append(I(f"buffer_load_dwordx4 v{PAT_W+n}, {srd(sW)}, s{S_T0} offen offset:{1024*n}{W_POL} lds", tag=gid))
        out.append(I(f"s_add_u32 s{S_WOFF}, s{S_WOFF}, {32*12288}"))
        out.append(I(f"s_sub_u32 s{S_T0}, s{S_WOFF}, {640*12288}"))
        out.append(I(f"s_min_u32 s{S_WOFF}, s{S_WOFF}, s{S_T0}"))
    else:
        out.append(I(f"s_add_u32 m0, s{S_WR}, s{S_CX}"))
        out.append(I(f"s_add_u32 s{S_T0}, s{S_XOFF}, s{S_XBASE}"))
        for p in range(5):
            if p == 4:
                out.append(I(f"s_add_u32 m0, m0, 4096"))
                out.append(I(f"s_add_u32 s{S_T0}, s{S_T0}, {10240+3072}"))
                out.append(I(f"buffer_load_dwordx4 v{PAT_X}, {srd(sX)}, s{S_T0} offen{X_POL} lds", tag=gid))
            else:
                if p:
                    out.append(I(f"s_add_u32 s{S_T0}, s{S_T0}, {10240-1024}"))
                out.append(I(f"buffer_load_dwordx4 v{PAT_X}, {srd(sX)}, s{S_T0} offen offset:{1024*p}{X_POL} lds", tag=gid))
        out.append(I(f"s_add_u32 s{S_XOFF}, s{S_XOFF}, 128"))
        out.append(I(f"s_sub_u32 s{S_T0}, s{S_XOFF}, 1280"))
        out.append(I(f"s_min_u32 s{S_XOFF}, s{S_XOFF}, s{S_T0}"))
    out += ring_adv(S_WR, S_T1)
    return out


def drain_group(u, m, i, T, D, oa, oa2, packed, ntemp=8):
    o = []
    rl = RL + i
    for half in range(2):
        t = T + (4 * half if ntemp == 8 else 0)
        for k in range(4):
            o.append(I(f"v_accvgpr_read_b32 v{t+k}, a{Oa(2*m+half,i)+k}"))
        if packed:
            sel = "op_sel:[0,1] op_sel_hi:[1,1]" if rl & 1 else "op_sel_hi:[1,0]"
            rp = rl & ~1
            for k in (0, 2):
                o.append(I(f"v_pk_mul_f32 v[{t+k}:{t+k+1}], v[{t+k}:{t+k+1}], v[{rp}:{rp+1}] {sel}"))
        else:
            for k in range(4):
                o.append(I(f"v_mul_f32 v{t+k}, v{rl}, v{t+k}"))
        for k in range(2):
            o.append(I(f"v_cvt_pk_bf16_f32 v{D+2*half+k}, v{t+2*k}, v{t+2*k+1}"))
    if i == 0:
        o.append(I(f"s_add_u32 s{S_OT}, s{S_OOFF}, {m*10240}"))
    if i < 4:
        o.append(I(f"buffer_store_dwordx4 {vq(D)}, v{oa}, {srd(sO)}, s{S_OT} offen offset:{1024*i}{STP}", tag=('st', u)))
    else:
        o.append(I(f"buffer_store_dwordx4 {vq(D)}, v{oa2}, {srd(sO)}, s{S_OT} offen{STP}", tag=('st', u)))
    return o


def l_reduce():
    fin = []
    for i in range(5):
        fin.append(I(f"v_mov_b32 v{E0+i}, v{L0+i}"))
    for i in range(5):
        fin.append(I(f"v_permlane32_swap_b32 v{L0+i}, v{E0+i}"))
    for i in range(5):
        fin.append(I(f"v_add_f32 v{L0+i}, v{L0+i}, v{E0+i}"))
    for i in range(5):
        fin.append(I(f"v_mov_b32 v{E0+i}, v{L0+i}"))
    for i in range(5):
        fin.append(I(f"v_permlane16_swap_b32 v{L0+i}, v{E0+i}"))
    for i in range(5):
        fin.append(I(f"v_add_f32 v{L0+i}, v{L0+i}, v{E0+i}"))
    for i in range(5):
        fin.append(I(f"v_rcp_f32 v{RL+i}, v{L0+i}"))
    return fin


def straight(instrs):
    out = []
    for ins in instrs:
        if ins.kind == 'dma' and out and 'm0' in out[-1].txt.split(',')[0]:
            out.append(I("s_nop 0"))
        out.append(ins)
    return out


def open_item(kind):
    if kind == 'K':
        o = [I(f"v_add_u32 v{KA}, s{S_RD}, v{LP_K}"), I(f"v_xor_b32 v{KA+1}, 64, v{KA}")]
    elif kind in 'VW':
        lp = LP_V if kind == 'V' else LP_W
        o = [I(f"v_add_u32 v{VA}, s{S_RD}, v{lp}"), I(f"v_xor_b32 v{VA+1}, 32, v{VA}"),
             I(f"v_xor_b32 v{VA+2}, 64, v{VA}"), I(f"v_xor_b32 v{VA+3}, 64, v{VA+1}")]
    else:
        o = [I(f"v_add_u32 v{XA}, s{S_RD}, v{LP_X}")]
    return o + ring_adv(S_RD, S_T2)


def k_read(f, buf, tag):
    st, ks = divmod(f, 6)
    return [I(f"ds_read_b128 {aq(buf)}, v{KA + (ks & 1)} offset:{st*6144 + (ks >> 1)*128}", tag=tag)]


def v_read(n, buf, tag, half_off=6144):
    return [I(f"ds_read_b64_tr_b16 a[{buf+2*h}:{buf+2*h+1}], v{VA + (n & 3)} offset:{(n >> 2)*128 + h*half_off}", tag=tag)
            for h in range(2)]


def sm_ops(par, st, i, tbase):
    e = [E0 + (tbase + r) % 8 for r in range(4)]
    s = Sr(st, i)
    p = Pr(par, i) + 2 * st
    ts = TS0 + i
    o = [I(f"v_exp_f32 v{e[r]}, v{s+r}") for r in range(4)]
    o.append(I(f"v_cvt_pk_bf16_f32 v{p}, v{e[0]}, v{e[1]}"))
    if st == 0:
        o.append(I(f"v_add_f32 v{ts}, v{e[0]}, v{e[1]}"))
    else:
        o.append(I(f"v_add_f32 v{ts}, v{ts}, v{e[0]}"))
        o.append(I(f"v_add_f32 v{ts}, v{ts}, v{e[1]}"))
    o.append(I(f"v_cvt_pk_bf16_f32 v{p+1}, v{e[2]}, v{e[3]}"))
    o.append(I(f"v_add_f32 v{ts}, v{ts}, v{e[2]}"))
    o.append(I(f"v_add_f32 v{ts}, v{ts}, v{e[3]}"))
    return o


def qk_mfmas(first_zero=False):
    out = []
    for st in range(2):
        for ks in range(6):
            for i in range(5):
                f = st * 6 + ks
                c = (("0" if first_zero else vq(NM(i))) if ks == 0 else vq(Sr(st, i)))
                out.append((f, f"{MF} {vq(Sr(st,i))}, @FR@, {vq(Qf(ks,i))}, {c}"))
    return out


def pv_mfmas(par, zero=False):
    out = []
    for n in range(12):
        for i in range(5):
            c = "0" if zero else aq(Oa(n, i))
            out.append((n, f"{MF} {aq(Oa(n,i))}, @FR@, {vq(Pr(par,i))}, {c}"))
    return out


def flatten(mf, gaps, lo, hi):
    out = []
    for g in range(lo, hi):
        out.append(mf[g])
        out.extend(gaps[g])
    return out


def lane_id(v):
    return [I(f"v_mbcnt_lo_u32_b32 v{v}, -1, 0"), I(f"v_mbcnt_hi_u32_b32 v{v}, -1, v{v}")]


def q_phase(u):
    g0 = UNIT_ITEMS * u
    pu = u - 1
    blocks = []
    pre = []
    pre += lane_id(0)
    pre += [I(x) for x in (
        f"v_lshlrev_b32 v{TCH}, 7, v0",
        f"v_lshlrev_b32 v{SA}, 4, v0",
        f"v_add_u32 v{Q_OA2}, 4096, v{SA}")]
    blocks.append(('qpre0', pre))
    pre = []
    k = 0
    for m in range(2):
        for i in range(5):
            pre += drain_group(pu, m, i, 8 + 8 * (k % 4), 48 + 4 * (k % 4), SA, Q_OA2, True)
            k += 1
    blocks.append(('qdrain', pre))
    pre = []
    pre += [bothwait([g0, g0 + 1]), I("s_barrier")]
    pre += open_item('W') + open_item('X')
    mf = []
    for s_ in range(20):
        for n in range(12):
            for i in range(5):
                F = s_ * 12 + n
                c = "0" if s_ == 0 else acc_reg(n, i)
                mf.append(I(f"{MF} {acc_reg(n,i)}, {aq(FR(F % 4))}, {aq(XF(s_, i))}, {c}"))
    fixed = {}
    qds, qaddr, qdma, qwo, qx, qdr = [], [], [], [], [], []
    bar_gap = {s_: 60 * s_ - BAR_LEAD - 1 for s_ in range(1, 20)}

    def wreads(F):
        return v_read(F % 12, FR(F % 4), ('w', u, F), half_off=1536)

    def xreads(s_):
        return [I(f"ds_read_b128 {aq(XF(s_, i))}, v{XA} offset:{2048*i}", tag=('x', u, s_)) for i in range(5)]

    pre += wreads(0) + xreads(0) + wreads(1) + wreads(2)
    pre += straight(dma_item(g0 + 5))
    pre.append(dswait([('w', u, 0), ('x', u, 0)]))
    last_rd = {}
    for m in range(2, 6):
        for i in range(5):
            for o in drain_group(pu, m, i, Q_T, Q_D, SA, Q_OA2, False):
                t = Task(o, earliest=0)
                qdr.append(t)
                if o.txt.startswith('v_accvgpr_read'):
                    last_rd[m] = t
    qdr.append(Task(I(f"s_add_u32 s{S_OOFF}, s{S_OOFF}, s{S_OADV}"), earliest=0))
    last_read = None
    must_before = []
    wo_done = []
    for s_ in range(20):
        first = True
        addr_task = None
        if s_ >= 1:
            need = [g0 + 3 * (s_ // 2), g0 + 3 * (s_ // 2) + 1] if s_ % 2 == 0 else [g0 + 3 * (s_ // 2) + 2]
            fixed.setdefault(bar_gap[s_], []).extend([bothwait(need), I("s_barrier")])
            must_before.append((last_read, bar_gap[s_]))
            ops = open_item('W')
            if s_ % 2 == 0:
                ops += open_item('X')
            for k, o in enumerate(ops):
                t = Task(o, earliest=0, after=last_read if k == 0 else None, gapdist=1)
                qaddr.append(t)
                if o.kind == 'valu':
                    addr_task = t
        for n in range(12):
            F = s_ * 12 + n
            if s_ == 0 and n < 3:
                continue
            e = 5 * (F - 4) + 4
            if s_ >= 1:
                e = max(e, bar_gap[s_])
            rs = wreads(F)
            if n == 0 and s_ % 2 == 0:
                rs = rs + xreads(s_)
            if n == 6 and s_ % 2 == 0:
                rs = rs + [I(f"v_xor_b32 v{XA}, 64, v{XA}")] + xreads(s_ + 1)
            for r in rs:
                t = Task(r, earliest=e, after=addr_task if first else None, gapdist=1)
                first = False
                qds.append(t)
                last_read = t
        for n in range(12):
            F = s_ * 12 + n
            if F == 0:
                continue
            tags = [('w', u, F)] + ([('x', u, s_)] if n == 0 else [])
            fixed.setdefault(5 * F - 1, []).append(dswait(tags))
        if s_ >= 1:
            it = s_ // 2
            items = [3 * it + 5] if s_ % 2 == 0 else [3 * it + 6, 3 * it + 7]
            for x in items:
                for o in dma_item(g0 + x):
                    qdma.append(Task(o, earliest=bar_gap[s_] + 1))
        if s_ == WO_KS:
            for o in (I(f"s_mov_b32 m0, s{S_SPARE}"),
                      I(f"buffer_load_dword v{TCH}, {srd(sWo)}, s{S_TWO} offen lds", tag=('two', u)),
                      I(f"s_add_u32 s{S_TWO}, s{S_TWO}, 7680")):
                qdma.append(Task(o, earliest=0))
        if s_ == 16 and KV_TOUCH:
            qdma.append(Task(I(f"s_mov_b32 m0, s{S_SPARE}"), earliest=0))
            for x in range(5, 5 + KV_TOUCH):
                kind, num = item_kind(NQI + x)
                off, d = (S_KOFF, sK) if kind == 'K' else (S_VOFF, sV)
                qdma.append(Task(I(f"s_add_u32 s{S_T0}, s{off}, {num*12288}"), earliest=0))
                qdma.append(Task(I(f"buffer_load_dword v{TCH}, {srd(d)}, s{S_T0} offen nt lds", tag=('tkv', u)), earliest=0))
    gaps, left = schedule(mf, [qds, qaddr, qdma, qwo, qdr], fixed, tail_ok=False, greedy_scalar=lambda g: True, vm_space=VM_Q)
    for tk, g in must_before:
        assert tk.gap < g, (tk.gap, g)
    q_phase.info = dict(drain_end=qdr[-1].gap)
    blocks.append(('qpre', pre))
    for it in range(10):
        blocks.append((f'q{it}', flatten(mf, gaps, 120 * it, 120 * it + 120)))
    fin = [I("s_nop 7")]
    for m in range(6):
        for i in range(5):
            a0, a1, d = ACC(2 * m, i), ACC(2 * m + 1, i), Qf(m, i)
            if m == 5:
                a1 = Q_T + 4 * (i & 1)
                for k in range(4):
                    fin.append(I(f"v_accvgpr_read_b32 v{a1+k}, a{60+4*i+k}"))
            for a in (a0, a0 + 2, a1, a1 + 2):
                fin.append(I(f"v_pk_mul_f32 v[{a}:{a+1}], v[{a}:{a+1}], s[{S_SCALE}:{S_SCALE+1}] op_sel_hi:[1,0]"))
            fin.append(I(f"v_cvt_pk_bf16_f32 v{d}, v{a0}, v{a0+1}"))
            fin.append(I(f"v_cvt_pk_bf16_f32 v{d+1}, v{a0+2}, v{a0+3}"))
            fin.append(I(f"v_cvt_pk_bf16_f32 v{d+2}, v{a1}, v{a1+1}"))
            fin.append(I(f"v_cvt_pk_bf16_f32 v{d+3}, v{a1+2}, v{a1+3}"))
            prev = (m, i - 1) if i > 0 else ((m - 1, 4) if m > 0 else None)
            if prev:
                pd = Qf(*prev)
                fin.append(I(f"v_permlane16_swap_b32 v{pd}, v{pd+2}"))
                fin.append(I(f"v_permlane16_swap_b32 v{pd+1}, v{pd+3}"))
    pd = Qf(5, 4)
    fin.append(I("s_nop 1"))
    fin.append(I(f"v_permlane16_swap_b32 v{pd}, v{pd+2}"))
    fin.append(I(f"v_permlane16_swap_b32 v{pd+1}, v{pd+3}"))
    blocks.append(('qfin', fin))
    return blocks


def wb_code(label, tag):
    if STP:
        return []
    return [I(f"s_cmp_lg_u32 s{S_WAVE}, 0"), I(f"s_cbranch_scc1 {label}"),
            I("buffer_wbl2 sc1", kind='xsalu'),
            I(f"{label}:"), I("; marker", kind='mark', tag=tag)]


def sig_code(tv, amount_sgpr_or_imm, off, label, wtag=None):
    return [I(f"s_cmp_lg_u32 s{S_WAVE}, 0"), I(f"s_cbranch_scc1 {label}"),
            I(f"v_mov_b32 v{tv}, {amount_sgpr_or_imm}"), I(f"v_mov_b32 v{tv+1}, 0"),
            I("afterwait", kind='afterwait', tag=wtag),
            I("s_mov_b64 exec, 1"),
            I(f"buffer_atomic_add v{tv}, v{tv+1}, {srd(sD)}, s{off} offen sc1", kind='xvmem'),
            I("s_mov_b64 exec, -1"),
            I(f"{label}:")]


def a_phase(u):
    g0 = UNIT_ITEMS * u + NQI
    nxt = UNIT_ITEMS * (u + 1)
    blocks = []
    pre = [bothwait([g0, ('st', u - 1)]), I("s_barrier")]
    pre += wb_code("@L1@", ('wb', u))
    pre += open_item('K')
    for f in range(3):
        pre += k_read(f, FR(f), ('k', u, 0, f))
    for i in range(5):
        pre.append(I(f"v_mov_b32 v{L0+i}, 0"))
        for r in range(4):
            pre.append(I(f"v_mov_b32 v{NM(i)+r}, 0"))
    pre.append(dswait([('k', u, 0, 0)]))
    mf0 = [I(t.replace('@FR@', aq(FR(f % 4)))) for f, t in qk_mfmas(first_zero=True)]
    qds, qdma, fixed = [], [], {}
    for f in range(3, 12):
        for r in k_read(f, FR(f % 4), ('k', u, 0, f)):
            qds.append(Task(r, earliest=5 * (f - 4) + 4))
    for f in range(1, 12):
        fixed.setdefault(5 * f - 1, []).append(dswait([('k', u, 0, f)]))
    for x in (5,):
        for o in dma_item(g0 + x):
            qdma.append(Task(o, earliest=0))
    gaps, left = schedule(mf0, [qds, qdma], fixed, tail_ok=False, vm_space=VM_A)
    blk = pre + flatten(mf0, gaps, 0, 60)
    blk += [I(f"s_mov_b32 s{sO+2}, {192*10240}"), I(f"s_mov_b32 s{S_OADV}, {12*10240}")]
    blk += [I(f"s_mov_b32 s{S_DMIN}, 0xf149f2ca"), I(f"s_mov_b32 s{S_FORCED}, 1"),
            I(f"s_call_b64 s[{S_RET}:{S_RET+1}], L_slow0"),
            I(f"s_mov_b32 s{S_DMIN}, 0"), I(f"s_mov_b32 s{S_FORCED}, 0")]
    blk += [bothwait([g0 + 1]), I("s_barrier")]
    blk += open_item('K')
    for f in range(3):
        blk += k_read(f, FR(f), ('k', u, 1, f))
    blk.append(dswait([('k', u, 1, 0)]))
    blocks.append(('a0', blk))

    halves = []
    for t in range(1, 16):
        halves.append(('K', t))
        halves.append(('V', t - 1))
    halves.append(('V', 15))
    mf, fixed = [], {}
    qds, qaddr, qdma, qsm, qexp = [], [], [], [], []
    grp_last = []
    last_read = {'K': None, 'V': None}
    must_before = []
    for h, (kind, t) in enumerate(halves):
        base = 60 * h
        seq = qk_mfmas() if kind == 'K' else pv_mfmas(t & 1, zero=(t == 0))
        for f, txt in seq:
            F = 12 * h + f
            mf.append(I(txt.replace('@FR@', aq(FR(F % 4)))))
        bar = base - BAR_LEAD
        addr_task = None
        if h >= 1:
            fixed.setdefault(bar, []).extend([bothwait([g0 + h + 1]), I("s_barrier")])
            must_before.append((qds[-1], bar))
            for k, o in enumerate(open_item(kind)):
                tk = Task(o, earliest=(base - 60 if (kind == 'V' and t < 15) else 0),
                          after=last_read[kind] if k == 0 else None, gapdist=1)
                qaddr.append(tk)
                if o.kind == 'valu':
                    addr_task = tk
        first = True
        for f in range(12):
            F = 12 * h + f
            if h == 0 and f < 3:
                continue
            tag = (kind.lower(), u, t, f)
            rs = k_read(f, FR(F % 4), tag) if kind == 'K' else v_read(f, FR(F % 4), tag)
            e = 5 * (F - 4) + 4
            if h >= 1:
                e = max(e, bar)
            for r in rs:
                tk = Task(r, earliest=e, after=addr_task if first else None, gapdist=1)
                first = False
                qds.append(tk)
                last_read[kind] = tk
        for f in range(12):
            F = 12 * h + f
            if F == 0:
                continue
            fixed.setdefault(5 * F - 1, []).append(dswait([(kind.lower(), u, t, f)]))
        x = h + 6
        gid = g0 + x if x < 32 else nxt + (x - 32)
        e = base if (h % 2 == 0) else base + 60
        for o in dma_item(gid):
            qdma.append(Task(o, earliest=e))
        if kind == 'K':
            for i in range(5):
                qsm.append(Task(I(f"v_add_f32 v{L0+i}, v{L0+i}, v{TS0+i}"), earliest=base))
            tb = 0
            for st in range(2):
                for i in range(5):
                    ops = sm_ops(t & 1, st, i, tb)
                    tb += 4
                    ex = []
                    for k, o in enumerate(ops[:4]):
                        tk = Task(o, earliest=base, mf_after=base + 30 * st + 25 + i,
                                  after=(grp_last[-2] if (k == 0 and len(grp_last) >= 2) else None), gapdist=1)
                        qexp.append(tk)
                        ex.append(tk)
                    for o in ops[4:]:
                        dep = max(k for k in range(4) if f"v{E0 + (tb - 4 + k) % 8}" in [x.strip() for x in o.txt.split(None, 1)[1].split(',')[1:]])
                        tk = Task(o, earliest=base, after=ex[dep], gapdist=1)
                        qsm.append(tk)
                    grp_last.append(tk)
            qsm.append(Task(I(f"v_max3_f32 v{CHK}, v{TS0}, v{TS0+1}, v{TS0+2}"), earliest=base))
            qsm.append(Task(I(f"v_max3_f32 v{CHK}, v{CHK}, v{TS0+3}, v{TS0+4}"), earliest=base))
            chk = Task(I(f"v_cmp_ngt_f32 vcc, 2.0, v{CHK}"), earliest=base)
            chk.ins.extra = ('chk', base + 119)
            qsm.append(chk)
            fixed.setdefault(base + 119, []).append(I(f"s_cbranch_vccnz @TRAMP{t & 1}@"))
        if kind == 'V' and t == 15:
            for i in range(5):
                qsm.append(Task(I(f"v_add_f32 v{L0+i}, v{L0+i}, v{TS0+i}"), earliest=base))
    gaps, left = schedule(mf, [qds, qaddr, qdma, qexp, qsm] if A_DMA_PRIO else [qds, qaddr, qexp, qsm, qdma], fixed, tail_ok=False,
                          greedy_scalar=lambda g: (g % 120) < 28 or g >= 1800, vm_space=VM_A)
    for tk, g in must_before:
        assert tk.gap < g, (tk.gap, g)
    for tk in qsm:
        if isinstance(tk.ins.extra, tuple) and tk.ins.extra[0] == 'chk':
            assert tk.gap < tk.ins.extra[1], f"check placed too late: {tk.gap} vs {tk.ins.extra[1]}"
    for t in range(1, 16):
        blocks.append((f'a{t}', flatten(mf, gaps, 120 * (t - 1), 120 * t)))
    blocks.append(('apost', flatten(mf, gaps, 1800, 1860)))

    blocks.append(('lred', l_reduce()))
    sg = sig_code(E0, f"s{S_UNIT}", S_GRP, "@L1@", ('wb', u))
    k = [b[0] for b in blocks].index(ASIG_BEFORE)
    blocks[k:k] = [('asig', sg)]
    return blocks


def slow_path(par):
    o = [I(f"L_slow{par}:"), I("s_nop 7")]
    for i in range(5):
        a, b = Sr(0, i), Sr(1, i)
        e0, e1 = E0, E0 + 1
        o += [I(f"v_max3_f32 v{e0}, v{a}, v{a+1}, v{a+2}"),
              I(f"v_max3_f32 v{e0}, v{e0}, v{a+3}, v{b}"),
              I(f"v_max3_f32 v{e0}, v{e0}, v{b+1}, v{b+2}"),
              I(f"v_max_f32 v{e0}, v{e0}, v{b+3}"),
              I(f"v_mov_b32 v{e1}, v{e0}"),
              I("s_nop 1"),
              I(f"v_permlane32_swap_b32 v{e0}, v{e1}"),
              I(f"v_max_f32 v{e0}, v{e0}, v{e1}"),
              I(f"v_mov_b32 v{e1}, v{e0}"),
              I("s_nop 1"),
              I(f"v_permlane16_swap_b32 v{e0}, v{e1}"),
              I(f"v_max_f32 v{e0}, v{e0}, v{e1}"),
              I(f"v_ceil_f32 v{e0}, v{e0}"),
              I(f"v_add_f32 v{e0}, 0x40e00000, v{e0}"),
              I(f"v_max_f32 v{e0}, s{S_DMIN}, v{e0}")]
        for r in range(4):
            o.append(I(f"v_sub_f32 v{NM(i)+r}, v{NM(i)+r}, v{e0}"))
            o.append(I(f"v_sub_f32 v{a+r}, v{a+r}, v{e0}"))
            o.append(I(f"v_sub_f32 v{b+r}, v{b+r}, v{e0}"))
        o += [I(f"v_cvt_i32_f32 v{e1}, v{e0}"),
              I(f"v_sub_u32 v{TS0+i}, 0, v{e1}"),
              I(f"v_ldexp_f32 v{L0+i}, v{L0+i}, v{TS0+i}")]
    o += [I(f"s_cmp_eq_u32 s{S_FORCED}, 1"), I(f"s_cbranch_scc1 L_slow{par}_sm")]
    k = 0
    for n in range(12):
        for i in range(5):
            for r in range(4):
                e = E0 + k % 8
                k += 1
                o += [I(f"v_accvgpr_read_b32 v{e}, a{Oa(n,i)+r}"),
                      I(f"v_ldexp_f32 v{e}, v{e}, v{TS0+i}"),
                      I(f"v_accvgpr_write_b32 a{Oa(n,i)+r}, v{e}")]
    o.append(I(f"L_slow{par}_sm:"))
    tb = 0
    for st in range(2):
        for i in range(5):
            o += sm_ops(par, st, i, tb)
            tb += 4
    o += [I("s_nop 1"), I(f"s_setpc_b64 s[{S_RET}:{S_RET+1}]")]
    return o


def PACC(nt, i): return 4 * (5 * i + nt)
def PWF(s, nt): return 100 + 20 * (s % 2) + 4 * nt
NOB = 6
def POF(k): return 140 + 4 * (k % NOB)
P_RAO, P_RAW, VO, P_T, P_D, P_F = 164, 167, 174, 178, 186, 194
WIN = 61440
OP_CAP3 = 700
VM_OP2 = 3
OP_DRAIN_GAP = 0
OP_LEAD = 17
SIG_P = 13
POLL_P = 17


def poll_check(P, lab, d, soff, want):
    o = [I(x) for x in (
        f"s_mov_b32 s{S_T3}, 0x400000",
        f"{lab}:",
        f"v_cmp_ne_u32 vcc, {want}, v{P+1}",
        f"s_sub_u32 s{S_T3}, s{S_T3}, 1",
        f"s_cmp_eq_u32 s{S_T3}, 0",
        f"s_cbranch_scc1 {lab}_out",
        f"s_cbranch_vccz {lab}_out",
        "s_sleep 1")]
    o.append(I(f"buffer_load_dword v{P+1}, v{P}, {srd(d)}, {soff} offen sc1", kind='xvmem'))
    o += [I("s_waitcnt vmcnt(0)", kind='xsalu'), I(f"s_branch {lab}"), I(f"{lab}_out:")]
    return o


def tail1_issue(name, ws):
    e = E0
    o = [I(f"v_mov_b32 v{e}, 0"), I(f"s_mov_b32 m0, s{S_SPARE}"), I("s_nop 0"),
         I(f"buffer_load_dword v{e}, {srd(sD)}, s{S_GRP} offen sc1 lds", tag='poll0')]
    o += lane_id(e)
    o += [I(x) for x in (
        f"v_lshlrev_b32 v{LP_X}, 4, v{e}",
        f"s_cmp_eq_u32 s{S_J}, 0",
        f"s_cselect_b32 s{sP}, s{sO}, s{sWo}",
        f"s_cselect_b32 s{sP+1}, s{sO+1}, s{sWo+1}",
        f"s_cselect_b32 s{sP+2}, s{sO+2}, s{sWo+2}",
        f"s_cbranch_scc0 L_{name}_wpat")]
    o += [I(f"v_mov_b32 v{OPV[k]}, v{LP_X}") for k in range(4)]
    o += [I(f"v_add_u32 v{OPV[4]}, 4096, v{LP_X}"), I(f"s_branch L_{name}_wpatd"), I(f"L_{name}_wpat:")]
    for n in range(5):
        o += [I(x) for x in (
            f"v_add_u32 v{e+1}, {64*n}, v{e}",
            f"v_mul_u32_u24 v{e+2}, 205, v{e+1}",
            f"v_lshrrev_b32 v{e+2}, 12, v{e+2}",
            f"v_mul_u32_u24 v{e+3}, 20, v{e+2}",
            f"v_sub_u32 v{e+1}, v{e+1}, v{e+3}",
            f"v_lshrrev_b32 v{e+3}, 1, v{e+2}",
            f"v_and_b32 v{e+3}, 2, v{e+3}",
            f"v_xor_b32 v{e+1}, v{e+1}, v{e+3}",
            f"v_lshlrev_b32 v{e+1}, 4, v{e+1}",
            f"v_mul_u32_u24 v{e+2}, 1280, v{e+2}",
            f"v_add_u32 v{e+1}, v{e+1}, v{e+2}",
            f"v_subrev_u32 v{OPV[n]}, {1024*n if n < 4 else 0}, v{e+1}")]
    o += [I(x) for x in (
        f"L_{name}_wpatd:",
        f"s_add_u32 s{sE}, s6, {ws['e_off']}",
        f"s_addc_u32 s{sE+1}, s7, 0",
        f"s_and_b32 s{sE+1}, s{sE+1}, 0xffff",
        f"s_mov_b32 s{sE+2}, {ws['e_bytes']}")]
    return o


def tail1_check(name):
    o = [vmwait('poll0'), I(f"v_mov_b32 v{E0+2}, s{S_SPARE}"),
         I(f"ds_read_b32 v{E0+1}, v{E0+2}", tag='poll0d'), I(f"v_mov_b32 v{E0}, 0"), dswait('poll0d')]
    o += poll_check(E0, f"L_{name}_poll0", sD, f"s{S_GRP}", 8)
    return o


def op_phase(name):
    blocks = []
    u = NUNITS - 1
    addr, when = op_addrs()
    t = P_T
    pro = [I(x) for x in (
        f"v_mov_b32 v{VO}, v{LP_X}", f"v_add_u32 v{VO+1}, 4096, v{LP_X}",
        f"v_mov_b32 v{P_F}, 0")]
    pro += [I(f"buffer_load_dword v{P_F+2}, v{P_F}, {srd(sE)}, s{S_FOWN} offen sc1", tag='flag0'),
            I(f"buffer_load_dword v{P_F+3}, v{P_F}, {srd(sE)}, s{S_FPART} offen sc1", tag='flag0')]
    pro += [I(x) for x in (
        f"s_mul_i32 s{S_T3}, s{S_R}, 5120", f"v_add_u32 v{P_RAO}, s{S_T3}, v{LP_X}",
        f"v_lshrrev_b32 v{t}, 6, v{LP_X}",
        f"v_mul_u32_u24 v{t+1}, 320, v{t}",
        f"v_bfe_u32 v{t+2}, v{LP_X}, 4, 2",
        f"v_lshl_add_u32 v{t+1}, v{t+2}, 3, v{t+1}",
        f"s_mul_i32 s{S_T3}, s{S_J}, 160", f"s_add_u32 s{S_T3}, s{S_T3}, 10240",
        f"v_add_u32 v{t+1}, s{S_T3}, v{t+1}",
        f"v_bfe_u32 v{t+2}, v{t}, 2, 1",
        f"v_lshlrev_b32 v{t+2}, 5, v{t+2}",
        f"s_lshl_b32 s{S_T3}, s{S_J}, 1", f"s_sub_u32 s{S_T3}, 1, s{S_T3}",
        f"v_mul_lo_u32 v{t+2}, v{t+2}, s{S_T3}",
        f"v_add_u32 v{P_RAW}, v{t+1}, v{t+2}",
        f"v_sub_u32 v{P_RAW+3}, v{t+1}, v{t+2}")]
    for j in (1, 2):
        pro += [I(f"v_add_u32 v{P_RAO+j}, {WIN*j}, v{P_RAO}"), I(f"v_add_u32 v{P_RAW+j}, {WIN*j}, v{P_RAW}"),
                I(f"v_add_u32 v{P_RAW+3+j}, {WIN*j}, v{P_RAW+3}")]
    pro += [bothwait([OP0, OP0 + 1]), I("s_barrier")]

    def rd(s_, kind, k):
        j, rem = divmod(addr[s_], WIN)
        if kind == 'w':
            b = PWF(s_, k)
            return [I(f"ds_read_b64_tr_b16 v[{b+2*h}:{b+2*h+1}], v{P_RAW+3*(k & 1)+j} offset:{rem + 32*k + 5120*h}", tag=('pf', s_, 'w'))
                    for h in range(2)]
        return [I(f"ds_read_b128 {vq(POF(5*s_+k))}, v{P_RAO+j} offset:{rem + 1024*k}", tag=('pf', s_, k))]

    for k in range(5):
        pro += rd(0, 'w', k)
    for k in range(3):
        pro += rd(0, 'o', k)
    pro.append(dswait([('pf', 0, 0)]))
    mf, fixed = [], {}
    qds, qdma, qdr = [], [], []
    bar = {p: 50 * p - OP_LEAD for p in range(1, NK // 2)}
    bar[0] = -1
    must_before = []
    for s_ in range(NK):
        base = 25 * s_
        p = s_ // 2
        if s_ % 2 == 0 and p >= 1:
            fixed.setdefault(bar[p], []).extend([bothwait([OP0 + s_, OP0 + s_ + 1]), I("s_barrier")])
            must_before.append((qds[-1], bar[p]))
        for i in range(5):
            for nt in range(5):
                c = "0" if s_ == 0 else vq(PACC(nt, i))
                mf.append(I(f"{MF} {vq(PACC(nt,i))}, {vq(PWF(s_,nt))}, {vq(POF(5*s_+i))}, {c}"))
            if base + 5 * i > 0:
                tags = [('pf', s_, i)] + ([('pf', s_, 'w')] if i == 0 else [])
                fixed.setdefault(base + 5 * i - 1, []).append(dswait(tags))
        if s_ > 0:
            e = max(25 * (s_ - 1), bar[p])
            for k in range(5):
                for r in rd(s_, 'w', k):
                    qds.append(Task(r, earliest=e))
        for k in range(5):
            if s_ == 0 and k < 3:
                continue
            e = max(5 * (5 * s_ + k - NOB) + 4, bar[p])
            qds.append(Task(rd(s_, 'o', k)[0], earliest=e))
    first_r1 = None
    for it in range(5, NK):
        for o in dma_op_item(it, OPV):
            tk = Task(o, earliest=bar[when[it]] + 1)
            qdma.append(tk)
            if it == 48 and first_r1 is None:
                first_r1 = tk
    k = 0
    for m in range(6):
        for i in range(5):
            for o in drain_group(u, m, i, P_T, P_D + 4 * (k % 2), VO, VO + 1, False):
                qdr.append(Task(o, earliest=int((5 * m + i) * OP_DRAIN_GAP)))
            k += 1
    gaps, left = schedule(mf, [qds, qdma, qdr], fixed, tail_ok=False, greedy_scalar=lambda g: True,
                          capf=lambda g: (3 if g < OP_CAP3 else 2), vm_space=lambda g: (VM_OP if g < 50 * SIG_P else VM_OP2))
    for tk, g in must_before:
        assert tk.gap < g, (tk.gap, g)
    op_phase.info = dict(drain_end=qdr[-1].gap, first_r1=first_r1.gap)
    assert qdr[-1].gap < 50 * (SIG_P - 1), qdr[-1].gap
    assert first_r1.gap >= 50 * (POLL_P + 2), first_r1.gap
    blocks.append(('oppro', pro))
    for p in range(NK // 2):
        pre = []
        if p == SIG_P:
            pre += [vmwait([('st', u), 'flag0']), I("s_barrier")]
            pre += [I(f"s_add_u32 s{S_T3}, s{S_GRP}, 4")]
            pre += sig_code(P_T, "1", S_T3, f"L_{name}_sig1")
        if p == POLL_P:
            pre += [I(f"s_add_u32 s{S_U0}, s{S_GRP}, 4"),
                    I(f"buffer_load_dword v{P_F+1}, v{P_F}, {srd(sD)}, s{S_U0} offen sc1", tag='poll1')]
        if p == POLL_P + 2:
            pre.append(vmwait('poll1'))
            pre += poll_check(P_F, f"L_{name}_poll1", sD, f"s{S_U0}", 8)
        if pre:
            blocks.append((f'opx{p}', pre))
        blocks.append((f'op{p}', flatten(mf, gaps, 50 * p, 50 * p + 50)))
    epi = []
    E = lambda t, **kw: epi.append(I(t, **kw))
    CA, R0 = 200, 100
    E(f"v_add_u32 v{VO+2}, 8192, v{VO}")
    E(f"v_add_u32 v{VO+3}, 12288, v{VO}")
    E(f"v_add_u32 v{P_F+2}, 1, v{P_F+2}")
    E(f"v_add_u32 v{P_F+3}, 1, v{P_F+3}")
    E(f"v_lshrrev_b32 v{CA}, 4, v{VO}")
    E(f"v_and_b32 v{CA+1}, 15, v{CA}")
    E(f"v_lshrrev_b32 v{CA}, 4, v{CA}")
    E(f"v_lshlrev_b32 v{CA}, 3, v{CA}")
    E(f"v_mul_u32_u24 v{CA+1}, 2560, v{CA+1}")
    E(f"v_add_u32 v{CA}, v{CA}, v{CA+1}")
    E(f"s_cmp_ge_u32 s{S_QUAD}, 4")
    E(f"s_cbranch_scc1 L_{name}_ex1")
    for kh in range(2):
        if kh:
            E(f"L_{name}_ex1:")
        keep = list(range(0, 13)) if kh == 0 else list(range(13, 25))
        send = [t for t in range(25) if t not in keep]
        for k, tl in enumerate(send):
            E(f"buffer_store_dwordx4 {vq(4*tl)}, v{VO + k // 4}, {srd(sE)}, s{S_ESND} offen offset:{1024*(k % 4)} sc1", kind='xvmem')
        E("s_waitcnt vmcnt(0)")
        E("s_mov_b64 exec, 1")
        E(f"buffer_store_dword v{P_F+2}, v{P_F}, {srd(sE)}, s{S_FOWN} offen sc1", kind='xvmem')
        E("s_mov_b64 exec, -1")
        E(f"buffer_load_dword v{P_F+1}, v{P_F}, {srd(sE)}, s{S_FPART} offen sc1", kind='xvmem')
        E("s_waitcnt vmcnt(0)")
        epi += poll_check(P_F, f"L_{name}_pollx{kh}", sE, f"s{S_FPART}", f"v{P_F+3}")
        for k, tl in enumerate(keep):
            E(f"buffer_load_dwordx4 {vq(R0+4*k)}, v{VO + k // 4}, {srd(sE)}, s{S_ERCV} offen offset:{1024*(k % 4)} sc1", kind='xvmem')
        for k, tl in enumerate(keep):
            i, nt = divmod(tl, 5)
            a, r = 4 * tl, R0 + 4 * k
            if k == 0 or nt == 0:
                E(f"s_add_u32 s{S_T0}, s{S_COFF}, {i*16*2560}")
            E(f"s_waitcnt vmcnt({len(keep) - 1})")
            E(f"v_pk_add_f32 v[{a}:{a+1}], v[{a}:{a+1}], v[{r}:{r+1}]")
            E(f"v_pk_add_f32 v[{a+2}:{a+3}], v[{a+2}:{a+3}], v[{r+2}:{r+3}]")
            E(f"v_cvt_pk_bf16_f32 v{a}, v{a}, v{a+1}")
            E(f"v_cvt_pk_bf16_f32 v{a+1}, v{a+2}, v{a+3}")
            E(f"buffer_store_dwordx2 v[{a}:{a+1}], v{CA}, {srd(sC)}, s{S_T0} offen offset:{32*nt}", kind='xvmem')
        if kh == 0:
            E(f"s_branch L_{name}_exdone")
    E(f"L_{name}_exdone:")
    blocks.append(('opepi', epi))
    return blocks


def prologue(name, ws):
    o = []
    A = lambda t: o.append(I(t))
    A(f"{name}:")
    A("s_cmp_ge_u32 s2, 256")
    A(f"s_cbranch_scc1 L_{name}_done")
    XCD, IDX, BLK, B, QUAD = 88, 89, 90, 91, 92
    A(f"s_and_b32 s{XCD}, s2, 7")
    A(f"s_lshr_b32 s{IDX}, s2, 3")
    A(f"s_lshr_b32 s{BLK}, s{XCD}, 2")
    A(f"s_and_b32 s{B}, s{XCD}, 3")
    A(f"s_lshl_b32 s{B}, s{B}, 2")
    A(f"s_lshr_b32 s{QUAD}, s{IDX}, 3")
    A(f"s_add_u32 s{B}, s{B}, s{QUAD}")
    A(f"s_and_b32 s{QUAD}, s{IDX}, 7")
    A(f"s_mul_i32 s4, s{BLK}, 40")
    A("s_add_u32 s4, s0, s4")
    A("s_addc_u32 s5, s1, 0")
    A(f"s_load_dwordx2 s[{sX}:{sX+1}], s[4:5], 0")
    A(f"s_load_dwordx2 s[{sK}:{sK+1}], s[4:5], 8")
    A(f"s_load_dwordx2 s[{sV}:{sV+1}], s[4:5], 16")
    A(f"s_load_dwordx2 s[{sW}:{sW+1}], s[4:5], 24")
    A(f"s_load_dwordx2 s[{sWo}:{sWo+1}], s[4:5], 32")
    A(f"s_load_dwordx2 s[{sC}:{sC+1}], s[0:1], 80")
    A(f"s_load_dwordx2 s[{sD}:{sD+1}], s[0:1], 88")
    A("s_load_dwordx2 s[6:7], s[0:1], 96")
    A("v_lshrrev_b32 v1, 6, v0")
    A("v_and_b32 v0, 63, v0")
    A(f"v_readfirstlane_b32 s{S_WAVE}, v1")
    A("s_nop 3")
    A(f"s_lshr_b32 s{S_J}, s{S_WAVE}, 1")
    A(f"s_and_b32 s{S_R}, s{S_WAVE}, 1")
    T, T2, H, BH = 93, 94, 95, 96
    for n in range(3):
        A(f"v_add_u32 v3, {64*n}, v0")
        A("v_mul_u32_u24 v1, 171, v3")
        A("v_lshrrev_b32 v1, 12, v1")
        A("v_mul_u32_u24 v2, 24, v1")
        A("v_sub_u32 v2, v3, v2")
        A("v_bfe_u32 v4, v1, 1, 1")
        A("v_mul_u32_u24 v5, 3, v4")
        A("v_and_b32 v6, 4, v1")
        A("v_or_b32 v5, v5, v6")
        A("v_xor_b32 v5, v5, v2")
        A("v_lshlrev_b32 v5, 4, v5")
        A("v_mul_u32_u24 v6, 384, v1")
        A("v_add_u32 v5, v5, v6")
        A(f"v_subrev_u32 v{PAT_KV+n}, {1024*n}, v5")
        A("v_and_b32 v5, 2, v1")
        A(f"s_lshl_b32 s{T}, s{S_R}, 2")
        A(f"v_or_b32 v5, s{T}, v5")
        A("v_xor_b32 v5, v5, v2")
        A("v_lshlrev_b32 v5, 4, v5")
        A("v_mul_u32_u24 v6, 12288, v1")
        A("v_add_u32 v5, v5, v6")
        A(f"v_subrev_u32 v{PAT_W+n}, {1024*n}, v5")
    A("v_lshrrev_b32 v1, 3, v0")
    A("v_and_b32 v2, 7, v0")
    A("v_and_b32 v4, 6, v1")
    A("v_xor_b32 v2, v2, v4")
    A("v_lshlrev_b32 v2, 4, v2")
    A("v_mul_u32_u24 v1, 1280, v1")
    A(f"v_add_u32 v{PAT_X}, v1, v2")
    A(f"s_mul_i32 s{T}, s{S_J}, 12288")
    A(f"s_mul_i32 s{T2}, s{S_R}, {16*384}")
    A(f"s_add_u32 s{S_CKV}, s{T}, s{T2}")
    A(f"s_mul_i32 s{T2}, s{S_R}, {8*384}")
    A(f"s_add_u32 s{S_CW}, s{T}, s{T2}")
    A(f"s_mul_i32 s{S_C5}, s{S_WAVE}, 5120")
    A(f"s_lshl_b32 s{H}, s{QUAD}, 2")
    A(f"s_add_u32 s{H}, s{H}, s{S_J}")
    A(f"s_mul_i32 s{S_WBASE}, s{H}, 384")
    A(f"s_mul_i32 s{T2}, s{S_R}, {8*12288}")
    A(f"s_add_u32 s{S_WBASE}, s{S_WBASE}, s{T2}")
    A(f"s_sub_u32 s{S_WBASE}, s{S_WBASE}, 768")
    A(f"s_mul_i32 s{S_XBASE}, s{B}, 204800")
    A(f"s_mul_i32 s{T2}, s{S_WAVE}, {40*1280}")
    A(f"s_add_u32 s{S_XBASE}, s{S_XBASE}, s{T2}")
    A(f"s_mul_i32 s{S_CX}, s{S_WAVE}, 5120")
    A(f"s_and_b32 s{T}, s{XCD}, 3")
    A(f"s_mul_i32 s{T}, s{T}, 5")
    A(f"s_add_u32 s{T}, s{T}, 1")
    A(f"s_lshr_b32 s{T}, s{T}, 1")
    if not ROT:
        A(f"s_mov_b32 s{T}, 0")
    A(f"s_mul_i32 s{S_WREL0}, s{T}, {64*12288}")
    A(f"s_lshl_b32 s{S_XREL0}, s{T}, 7")
    A(f"s_mov_b32 s{S_WR}, 0")
    A(f"s_mov_b32 s{S_RD}, 0")
    A(f"s_lshl_b32 s{S_SPARE}, s{S_WAVE}, 12")
    A(f"s_add_u32 s{S_SPARE}, s{S_SPARE}, {SPARE}")
    A("s_waitcnt lgkmcnt(0)")
    for b, nbytes in ((sX, 16*160*640*2), (sK, 16*32*512*192*2), (sV, 16*32*512*192*2), (sW, 640*6144*2),
                      (sWo, 6144*640*2), (sC, 16*160*1280*2), (sD, 256)):
        A(f"s_and_b32 s{b+1}, s{b+1}, 0xffff")
        A(f"s_mov_b32 s{b+2}, {nbytes}")
        A(f"s_mov_b32 s{b+3}, 0x20000")
    for g in range(5):
        o += straight(dma_item(g))
    A(f"s_and_b32 s{T}, s{XCD}, 3")
    A(f"s_lshl_b32 s{T}, s{T}, 5")
    A(f"s_add_u32 s{T}, s{T}, s{IDX}")
    A(f"s_lshl_b32 s{T}, s{T}, 2")
    A(f"s_add_u32 s{T}, s{T}, s{S_WAVE}")
    A(f"s_mul_i32 s{S_TWO}, s{T}, 15360")
    if WARM:
        A(f"s_lshl_b32 s{T2}, s{QUAD}, 2")
        A(f"s_add_u32 s{T2}, s{T2}, s{S_WAVE}")
        A(f"s_mul_i32 s{T2}, s{T2}, 6400")
        A(f"s_mul_i32 s{T}, s{B}, 204800")
        A(f"s_add_u32 s{T}, s{T}, s{T2}")
        A(f"s_mov_b32 m0, s{S_SPARE}")
        A("v_lshlrev_b32 v4, 7, v0")
        o.append(I(f"buffer_load_dword v4, {srd(sX)}, s{T} offen lds", tag='touch'))
    A("v_and_b32 v1, 15, v0")
    A("v_lshrrev_b32 v2, 4, v0")
    A(f"s_mul_i32 s{T}, s{S_J}, 12288")
    A("v_and_b32 v3, 1, v2")
    A("v_lshlrev_b32 v3, 1, v3")
    A("v_lshrrev_b32 v4, 1, v2")
    A("v_or_b32 v3, v3, v4")
    A("v_bfe_u32 v4, v1, 1, 1")
    A("v_mul_u32_u24 v4, 3, v4")
    A("v_and_b32 v5, 4, v1")
    A("v_or_b32 v4, v4, v5")
    A("v_xor_b32 v3, v3, v4")
    A("v_lshlrev_b32 v3, 4, v3")
    A("v_mul_u32_u24 v4, 384, v1")
    A(f"v_add3_u32 v{LP_K}, v3, v4, s{T}")
    A("v_lshrrev_b32 v3, 2, v1")
    A("v_and_b32 v4, 3, v0")
    A("v_lshl_add_u32 v5, v2, 2, v3")
    A("v_bfe_u32 v6, v5, 1, 1")
    A("v_mul_u32_u24 v6, 3, v6")
    A("v_and_b32 v7, 4, v5")
    A("v_or_b32 v6, v6, v7")
    A("v_lshrrev_b32 v7, 1, v4")
    A("v_xor_b32 v6, v6, v7")
    A("v_lshlrev_b32 v6, 4, v6")
    A("v_and_b32 v8, 1, v4")
    A("v_lshl_add_u32 v6, v8, 3, v6")
    A("v_mul_u32_u24 v5, 384, v5")
    A(f"v_add3_u32 v{LP_V}, v5, v6, s{T}")
    A("v_lshl_add_u32 v5, v2, 3, v3")
    A("v_and_b32 v6, 2, v3")
    A("v_and_b32 v9, 1, v2")
    A("v_lshl_or_b32 v6, v9, 2, v6")
    A("v_xor_b32 v6, v6, v7")
    A("v_lshlrev_b32 v6, 4, v6")
    A("v_lshl_add_u32 v6, v8, 3, v6")
    A("v_mul_u32_u24 v5, 384, v5")
    A(f"v_add3_u32 v{LP_W}, v5, v6, s{T}")
    A(f"s_mul_i32 s{T}, s{S_R}, 10240")
    A("v_lshrrev_b32 v3, 3, v1")
    A("v_lshlrev_b32 v3, 10, v3")
    A("v_and_b32 v4, 7, v1")
    A("v_lshl_add_u32 v3, v4, 7, v3")
    A("v_and_b32 v4, 6, v1")
    A("v_xor_b32 v4, v4, v2")
    A("v_lshlrev_b32 v4, 4, v4")
    A(f"v_add3_u32 v{LP_X}, v3, v4, s{T}")
    A(f"s_lshl_b32 s{BH}, s{B}, 5")
    A(f"s_add_u32 s{BH}, s{BH}, s{H}")
    A(f"s_mul_i32 s{S_KOFF}, s{BH}, 196608")
    A(f"s_mul_i32 s{T2}, s{S_R}, {16*384}")
    A(f"s_add_u32 s{S_KOFF}, s{S_KOFF}, s{T2}")
    A(f"s_mov_b32 s{S_VOFF}, s{S_KOFF}")
    GB = 97
    A(f"s_lshl_b32 s{GB}, s{BLK}, 4")
    A(f"s_add_u32 s{GB}, s{GB}, s{B}")
    A(f"s_mul_i32 s{T}, s{GB}, {192*10240}")
    A(f"s_add_u32 s{T}, s{T}, {ws['o_off']}")
    A(f"s_add_u32 s{sO}, s6, s{T}")
    A(f"s_addc_u32 s{sO+1}, s7, 0")
    A(f"s_and_b32 s{sO+1}, s{sO+1}, 0xffff")
    A(f"s_mov_b32 s{sO+2}, 0")
    A(f"s_mov_b32 s{S_OADV}, 0")
    A(f"s_mov_b32 s{sO+3}, 0x20000")
    A(f"s_mul_i32 s{T}, s{QUAD}, 24")
    A(f"s_mul_i32 s{T2}, s{S_J}, 6")
    A(f"s_add_u32 s{T}, s{T}, s{T2}")
    A(f"s_mul_i32 s{S_OOFF}, s{T}, 10240")
    A(f"s_mul_i32 s{T2}, s{S_R}, 5120")
    A(f"s_add_u32 s{S_OOFF}, s{S_OOFF}, s{T2}")
    A(f"s_lshr_b32 s{T}, s{QUAD}, 2")
    A(f"s_and_b32 s{T2}, s{QUAD}, 3")
    A(f"s_mul_i32 s{S_PADV}, s{S_J}, 30720")
    A(f"s_add_u32 s{S_PADV}, s{S_PADV}, 10240")
    A(f"s_mul_i32 s{S_PSRC}, s{T}, 96")
    A(f"s_mul_i32 s{S_PSRC}, s{S_PSRC}, s{S_PADV}")
    A(f"s_mul_i32 s{H}, s{T2}, 320")
    A(f"s_mul_i32 s{H}, s{H}, s{S_J}")
    A(f"s_add_u32 s{S_PSRC}, s{S_PSRC}, s{H}")
    A(f"s_lshr_b32 s{H}, s{S_PADV}, 1")
    A(f"s_mul_i32 s{H}, s{H}, s{S_R}")
    A(f"s_add_u32 s{S_PSRC}, s{S_PSRC}, s{H}")
    A(f"s_mov_b32 s{S_PBASE}, s{S_PSRC}")
    A(f"s_and_b32 s{S_PQ}, s{XCD}, {3 if ROT_OP else 0}")
    A(f"s_mul_i32 s{H}, s{S_PQ}, 24")
    A(f"s_mul_i32 s{H}, s{H}, s{S_PADV}")
    A(f"s_add_u32 s{S_PSRC}, s{S_PSRC}, s{H}")
    if FAKE_OP:
        A(f"s_mov_b32 s{S_PADV}, 0")
    A(f"s_mul_i32 s{S_COFF}, s{B}, {160*2560}")
    A(f"s_mul_i32 s{H}, s{S_R}, {80*2560}")
    A(f"s_add_u32 s{S_COFF}, s{S_COFF}, s{H}")
    A(f"s_mul_i32 s{H}, s{BLK}, 1280")
    A(f"s_add_u32 s{S_COFF}, s{S_COFF}, s{H}")
    A(f"s_mul_i32 s{H}, s{T2}, 320")
    A(f"s_add_u32 s{S_COFF}, s{S_COFF}, s{H}")
    A(f"s_mul_i32 s{H}, s{S_J}, 160")
    A(f"s_add_u32 s{S_COFF}, s{S_COFF}, s{H}")
    A(f"s_mov_b32 s{S_QUAD}, s{QUAD}")
    A(f"s_lshl_b32 s{H}, s{GB}, 3")
    A(f"s_add_u32 s{T}, s{H}, s{QUAD}")
    A(f"s_lshl_b32 s{T}, s{T}, 2")
    A(f"s_add_u32 s{T}, s{T}, s{S_WAVE}")
    A(f"s_mul_i32 s{S_ESND}, s{T}, 13312")
    A(f"s_lshl_b32 s{S_FOWN}, s{T}, 7")
    A(f"s_add_u32 s{S_FOWN}, s{S_FOWN}, {1024*13312}")
    A(f"s_xor_b32 s{T}, s{T}, 16")
    A(f"s_mul_i32 s{S_ERCV}, s{T}, 13312")
    A(f"s_lshl_b32 s{S_FPART}, s{T}, 7")
    A(f"s_add_u32 s{S_FPART}, s{S_FPART}, {1024*13312}")
    A(f"s_lshl_b32 s{S_GRP}, s{GB}, 3")
    A(f"s_lshl_b32 s{S_BLKC}, s{BLK}, 7")
    c = math.log2(math.e) / math.sqrt(192.0)
    cb = struct.unpack('<I', struct.pack('<f', c))[0]
    A(f"s_mov_b32 s{S_SCALE}, 0x{cb:08x}")
    A(f"s_mov_b32 s{S_UNIT}, 0")
    A(f"s_mov_b32 s{S_DMIN}, 0")
    A(f"s_mov_b32 s{S_FORCED}, 0")
    return o


def build(name, ws):
    pro = prologue(name, ws)
    units = []
    for u in range(NUNITS):
        bl = q_phase(u) + a_phase(u)
        if u == 0:
            bl = [b for b in bl if b[0] != 'qdrain']
        else:
            k = [b[0] for b in bl].index('a12')
            bl[k:k] = [('t1issue', tail1_issue(name, ws))]
            k = [b[0] for b in bl].index('a14')
            bl[k:k] = [('t1check', tail1_check(name))]
        units.append(bl)
    opb = op_phase(name)
    stream = list(pro)
    for ub in units:
        for _, b in ub:
            stream += b
    for _, b in opb:
        stream += b
    resolve_waits(stream)
    errs = check_hazards(stream, name)
    for par in range(2):
        errs += check_hazards(slow_path(par), f'slow{par}')
    if errs:
        raise RuntimeError("\n".join(errs[:30]))
    ub, ub1 = dict(units[0]), dict(units[1])
    shared = ['qpre0', 'qpre', 'qfin', 'asig'] + [f'q{it}' for it in range(10)] + [f'a{t}' for t in range(12)]
    for k in shared:
        merge_min([ub[k], ub1[k]])
    ub.update(dict(opb))
    out = [x.text() for x in pro]
    tramp = []
    cnt = [0]
    nst = [0]

    def stamp(real=False, fine=False):
        if STAMPS and (fine == FINE or real):
            out.extend(["s_memrealtime s[4:5]" if (real or ALLREAL) else "s_memtime s[4:5]", "s_waitcnt lgkmcnt(0)", f"s_mov_b32 s{S_ST+nst[0]}, s4"])
            nst[0] += 1

    def flush_stamps(slot_expr):
        if STAMPS:
            out.extend([f"s_lshl_b32 s4, s2, 2", f"s_add_u32 s4, s4, s{S_WAVE}", "s_lshl_b32 s4, s4, 2",
                        f"s_add_u32 s4, s4, {slot_expr}", "s_lshl_b32 s4, s4, 6",
                        f"s_add_u32 s4, s4, s6", "s_addc_u32 s5, s7, 0",
                        f"s_add_u32 s4, s4, {ws['dbg_off']}", "s_addc_u32 s5, s5, 0",
                        "v_mov_b32 v1, 0"])
            for k in range(nst[0]):
                out.extend([f"v_mov_b32 v2, s{S_ST+k}", f"global_store_dword v1, v2, s[4:5] offset:{4*k}"])
            out.extend(["v_mov_b32 v2, s101", f"global_store_dword v1, v2, s[4:5] offset:{4*15}"])
            nst[0] = 0

    if STAMPS:
        out[3:3] = ["s_memrealtime s[4:5]" if ALLREAL else "s_memtime s[4:5]", "s_waitcnt lgkmcnt(0)", "s_mov_b32 s101, s4"]

    def emit(block, adv=None):
        k = cnt[0]
        cnt[0] += 1
        for x in block:
            t = x.text()
            if '@TRAMP' in t:
                par = t.split('@TRAMP')[1][0]
                kk = cnt[0]
                cnt[0] += 1
                out.append(t.replace(f'@TRAMP{par}@', f'L_tr{kk}'))
                out.append(f'L_back{kk}:')
                tramp.extend([f'L_tr{kk}:', f's_call_b64 s[{S_RET}:{S_RET+1}], L_slow{par}', f's_branch L_back{kk}'])
            elif '@L1@' in t:
                out.append(t.replace('@L1@', f'L_sig{k}'))
            elif '@OADV' in t or '@WADV' in t:
                key = t[t.index('@'):]
                if adv and key in adv:
                    out.append(t.replace(key, adv[key]))
                else:
                    out.append(t.replace(key, str(x.extra)))
            else:
                out.append(t)

    def loop(label, names_list, top=None, adv=None):
        body = [sum((ub[n] for n in names), []) for names in names_list]
        merged = merge_min(body)
        out.append(f"s_mov_b32 s{S_LOOP}, {len(names_list)}")
        out.append(".p2align 3")
        out.append(f"{label}:")
        if top:
            out.extend(top)
        emit(merged, adv)
        out.append(f"s_sub_u32 s{S_LOOP}, s{S_LOOP}, 1")
        out.append(f"s_cmp_lg_u32 s{S_LOOP}, 0")
        out.append(f"s_cbranch_scc1 {label}")

    out.append(f"L_{name}_unit:")
    stamp()
    emit(ub['qpre0'])
    out.append(f"s_cmp_eq_u32 s{S_UNIT}, 0")
    out.append(f"s_cbranch_scc1 L_{name}_nodrain")
    emit(ub1['qdrain'])
    out.append(f"L_{name}_nodrain:")
    emit(ub['qpre'])
    stamp()
    for it in range(10):
        stamp(fine=True)
        emit(ub[f'q{it}'])
    stamp(fine=True)
    stamp()
    emit(ub['qfin'])
    stamp()
    emit(ub['a0'])
    stamp()
    emit(ub['a1'])
    emit(ub['asig'])
    stamp()
    loop(f"L_{name}_a", [[f'a{t}', f'a{t+1}'] for t in range(2, 12, 2)])
    stamp()
    nsave = nst[0]
    out.append(f"s_cmp_eq_u32 s{S_UNIT}, {NUNITS-1}")
    out.append(f"s_cbranch_scc1 L_{name}_tail1")
    for t in (12, 13, 14, 15):
        emit(ub[f'a{t}'])
    emit(ub['apost'])
    stamp()
    emit(ub['lred'])
    stamp()
    stamp(True)
    flush_stamps("0")
    out.append(f"s_add_u32 s{S_UNIT}, s{S_UNIT}, 1")
    out.append(f"s_branch L_{name}_unit")
    out.append(f"L_{name}_tail1:")
    nst[0] = nsave
    for k in ('t1issue', 'a12', 'a13', 't1check', 'a14', 'a15', 'apost'):
        emit(ub1[k])
    stamp()
    emit(ub1['lred'])
    stamp()
    stamp(True)
    flush_stamps("1")
    stamp()
    stamp(True)
    emit(ub['oppro'])
    stamp()
    for nme, _ in opb:
        if nme in ('oppro', 'opepi'):
            continue
        if nme in ('op16', 'op24'):
            stamp()
        if nme in [f'op{x}' for x in range(0, 22, 2)]:
            stamp(fine=True)
        emit(ub[nme])
    stamp()
    emit(ub['opepi'])
    if STAMPS:
        out.append("s_waitcnt vmcnt(0)")
    stamp()
    stamp(True)
    flush_stamps("2")
    out.append(f"L_{name}_done:")
    out.append("s_endpgm")
    out += tramp
    for par in range(2):
        out += [x.text() for x in slow_path(par)]
    return out
```

```python
import sys, importlib
import kf, gen
def make(out, mod='kf', **kw):
    m = importlib.import_module(mod)
    importlib.reload(m)
    for k, v in kw.items():
        setattr(m, k, v)
    gen.kf = m
    gen.main(out, False)
    print(out)
if __name__ == "__main__":
    make('oa.s', WO_KS=19)
    make('ob.s', WO_KS=None)
    make('oc.s', WO_KS=None, ROT_OP=False)
    make('od.s', mod='kf_v3')
    make('oe.s', WO_KS=19, KV_POL='')
```

```python
import math
import struct
from asmlib import *

SLOT = 24576
NSLOT = 6
RING = SLOT * NSLOT
SPARE = RING
LDS_BYTES = 163840
NUNITS = 2

sX, sK, sV, sW, sO = 8, 12, 16, 20, 24
S_WAVE, S_J, S_R = 28, 29, 30
S_WR, S_RD = 31, 32
S_KOFF, S_VOFF, S_WOFF, S_OADV = 33, 34, 35, 36
S_CKV, S_CW, S_OT = 37, 38, 39
S_T0, S_T1, S_T2, S_T3 = 40, 41, 42, 43
S_LOOP, S_UNIT = 44, 45
S_SCALE = 46
S_OOFF = 47
S_WBASE = 48
S_RET = 50
S_DMIN = 52
S_FORCED = 53
S_XBASE, S_XOFF, S_CX, S_WREL0, S_XREL0 = 49, 54, 55, 87, 3
S_QUAD, S_ESND, S_ERCV, S_TWO = 56, 57, 58, 59
sWo, sC, sD = 60, 68, 72
S_FOWN, S_FPART, S_PQ, S_PBASE = 64, 65, 66, 67
S_SPARE = 76
S_GRP = 77
S_U0, S_U1, S_U2, S_U3 = 78, 79, 80, 81
S_PSRC, S_PADV, S_COFF = 82, 83, 84
S_C5 = 85
sP, sE = 8, 20
S_BLKC = 86
S_ST = 88


def srd(b): return f"s[{b}:{b+3}]"
def vq(b): return f"v[{b}:{b+3}]"
def aq(b): return f"a[{b}:{b+3}]"


def Qf(ks, i): return 4 * (5 * ks + i)
def Sr(st, i): return 120 + 20 * st + 4 * i
def Pr(par, i): return 160 + 20 * par + 4 * i
def NM(i): return 200 + 4 * i


L0, TS0, E0 = 220, 225, 230
KA, VA, CHK = 238, 240, 244
PAT_KV, PAT_W, PAT_X = 245, 248, 251
LP_K, LP_V, LP_W, LP_X = 252, 253, 254, 255
WA, XA = 240, 244
RL = L0
Q_OA2, Q_T, Q_D, TCH, SA = 225, 226, 234, 238, 239
OPV = [248, 249, 250, 251, 254]
def ACC(n, i): return 4 * (5 * n + i)
def acc_reg(n, i): return vq(ACC(n, i)) if n < 11 else aq(60 + 4 * i)
def Oa(n, i): return 4 * (5 * n + i)
def FR(b): return 240 + 4 * b
def XF(s, i): return 20 * (s & 1) + 4 * i
WOF = 40
UNIT_ITEMS = 62
NQI = 30
OP0 = UNIT_ITEMS * NUNITS


MF = "v_mfma_f32_16x16x32_bf16"
KV_POL = " nt"
W_POL = ""
X_POL = ""
WO_UNIT = 0
WARM1 = True
ROT = True
WO_KS = 19
KV_TOUCH = 0
ROT_OP = True
FAKE_OP = False
ALLREAL = False
VM_Q, VM_A, VM_OP = 3, 1, 1
A_DMA_PRIO = False
FINE = False
ASIG_BEFORE = 'a2'
STP = " sc1"
HAND = " sc1"
STAMPS = False
WARM = True
BAR_LEAD = 12


def ring_adv(s, tmp):
    return [I(f"s_add_u32 s{s}, s{s}, {SLOT}"),
            I(f"s_sub_u32 s{tmp}, s{s}, {RING}"),
            I(f"s_min_u32 s{s}, s{s}, s{tmp}")]


def item_kind(idx):
    if idx < NQI:
        it, k = divmod(idx, 3)
        return [('W', 2 * it), ('X', it), ('W', 2 * it + 1)][k]
    a = idx - NQI
    if a == 0:
        return ('K', 0)
    if a == 31:
        return ('V', 15)
    return ('K', (a + 1) // 2) if a % 2 == 1 else ('V', a // 2 - 1)


NK = 96
PITEM = 20480


def op_addrs():
    addr, when = {}, {}
    live = []
    for it in range(6):
        a = ((OP0 + it) % NSLOT) * SLOT
        addr[it] = a
        when[it] = None if it < 5 else 0
        live.append((a, a + PITEM, it // 2 + 1))
    for it in range(6, NK):
        best = None
        for j in range(8):
            a = j * PITEM
            t = max([f for (s0, e0, f) in live if s0 < a + PITEM and a < e0] + [0])
            if best is None or t < best[0]:
                best = (t, a)
        t, a = best
        t = max(t, when[it - 1] or 0)
        addr[it], when[it] = a, t
        live = [x for x in live if not (x[0] < a + PITEM and a < x[1])]
        live.append((a, a + PITEM, it // 2 + 1))
        assert t <= it // 2 - 1, (it, t)
    return addr, when


def dma_op_item(it, pv):
    gid = OP0 + it
    a = op_addrs()[0][it]
    out = [I(f"s_add_u32 m0, s{S_C5}, {a}")]
    for k in range(4):
        out.append(I(f"buffer_load_dwordx4 v{pv[k]}, {srd(sP)}, s{S_PSRC} offen offset:{1024*k}{HAND} lds", tag=gid))
    out.append(I(f"s_add_u32 m0, s{S_C5}, {a + 4096}"))
    out.append(I(f"buffer_load_dwordx4 v{pv[4]}, {srd(sP)}, s{S_PSRC} offen{HAND} lds", tag=gid))
    if it % 12 != 11:
        out.append(I(f"s_add_u32 s{S_PSRC}, s{S_PSRC}, s{S_PADV}"))
    else:
        rnd = (it + 1) // 48
        out += [I(f"s_add_u32 s{S_PQ}, s{S_PQ}, 1"), I(f"s_and_b32 s{S_PQ}, s{S_PQ}, 3"),
                I(f"s_mul_i32 s{S_T0}, s{S_PQ}, 24"), I(f"s_add_u32 s{S_T0}, s{S_T0}, {12*rnd}"),
                I(f"s_mul_i32 s{S_T0}, s{S_T0}, s{S_PADV}"), I(f"s_add_u32 s{S_PSRC}, s{S_PBASE}, s{S_T0}")]
    return out


def dma_item(gid):
    if gid >= OP0:
        return dma_op_item(gid - OP0, OPV)
    u, idx = divmod(gid, UNIT_ITEMS)
    kind, num = item_kind(idx)
    out = []
    if idx == 0:
        out += [I(f"s_add_u32 s{S_WBASE}, s{S_WBASE}, 768"),
                I(f"s_mov_b32 s{S_WOFF}, s{S_WREL0}"),
                I(f"s_mov_b32 s{S_XOFF}, s{S_XREL0}")]
    if kind in 'KV':
        off = S_KOFF if kind == 'K' else S_VOFF
        d = srd(sK if kind == 'K' else sV)
        out.append(I(f"s_add_u32 m0, s{S_WR}, s{S_CKV}"))
        for n in range(3):
            out.append(I(f"buffer_load_dwordx4 v{PAT_KV+n}, {d}, s{off} offen offset:{1024*n}{KV_POL} lds", tag=gid))
        out.append(I(f"s_add_u32 m0, m0, 3072"))
        out.append(I(f"s_add_u32 s{S_T0}, s{off}, 3072"))
        for n in range(3):
            out.append(I(f"buffer_load_dwordx4 v{PAT_KV+n}, {d}, s{S_T0} offen offset:{1024*n}{KV_POL} lds", tag=gid))
        adv = 12288 + (196608 if num == 15 else 0)
        out.append(I(f"s_add_u32 s{off}, s{off}, {adv}"))
    elif kind == 'W':
        out.append(I(f"s_add_u32 m0, s{S_WR}, s{S_CW}"))
        out.append(I(f"s_add_u32 s{S_T0}, s{S_WOFF}, s{S_WBASE}"))
        for n in range(3):
            out.append(I(f"buffer_load_dwordx4 v{PAT_W+n}, {srd(sW)}, s{S_T0} offen offset:{1024*n}{W_POL} lds", tag=gid))
        out.append(I(f"s_add_u32 m0, m0, {16*384}"))
        out.append(I(f"s_add_u32 s{S_T0}, s{S_T0}, {16*12288}"))
        for n in range(3):
            out.append(I(f"buffer_load_dwordx4 v{PAT_W+n}, {srd(sW)}, s{S_T0} offen offset:{1024*n}{W_POL} lds", tag=gid))
        out.append(I(f"s_add_u32 s{S_WOFF}, s{S_WOFF}, {32*12288}"))
        out.append(I(f"s_sub_u32 s{S_T0}, s{S_WOFF}, {640*12288}"))
        out.append(I(f"s_min_u32 s{S_WOFF}, s{S_WOFF}, s{S_T0}"))
    else:
        out.append(I(f"s_add_u32 m0, s{S_WR}, s{S_CX}"))
        out.append(I(f"s_add_u32 s{S_T0}, s{S_XOFF}, s{S_XBASE}"))
        for p in range(5):
            if p == 4:
                out.append(I(f"s_add_u32 m0, m0, 4096"))
                out.append(I(f"s_add_u32 s{S_T0}, s{S_T0}, {10240+3072}"))
                out.append(I(f"buffer_load_dwordx4 v{PAT_X}, {srd(sX)}, s{S_T0} offen{X_POL} lds", tag=gid))
            else:
                if p:
                    out.append(I(f"s_add_u32 s{S_T0}, s{S_T0}, {10240-1024}"))
                out.append(I(f"buffer_load_dwordx4 v{PAT_X}, {srd(sX)}, s{S_T0} offen offset:{1024*p}{X_POL} lds", tag=gid))
        out.append(I(f"s_add_u32 s{S_XOFF}, s{S_XOFF}, 128"))
        out.append(I(f"s_sub_u32 s{S_T0}, s{S_XOFF}, 1280"))
        out.append(I(f"s_min_u32 s{S_XOFF}, s{S_XOFF}, s{S_T0}"))
    out += ring_adv(S_WR, S_T1)
    return out


def drain_group(u, m, i, T, D, oa, oa2, packed, ntemp=8):
    o = []
    rl = RL + i
    for half in range(2):
        t = T + (4 * half if ntemp == 8 else 0)
        for k in range(4):
            o.append(I(f"v_accvgpr_read_b32 v{t+k}, a{Oa(2*m+half,i)+k}"))
        if packed:
            sel = "op_sel:[0,1] op_sel_hi:[1,1]" if rl & 1 else "op_sel_hi:[1,0]"
            rp = rl & ~1
            for k in (0, 2):
                o.append(I(f"v_pk_mul_f32 v[{t+k}:{t+k+1}], v[{t+k}:{t+k+1}], v[{rp}:{rp+1}] {sel}"))
        else:
            for k in range(4):
                o.append(I(f"v_mul_f32 v{t+k}, v{rl}, v{t+k}"))
        for k in range(2):
            o.append(I(f"v_cvt_pk_bf16_f32 v{D+2*half+k}, v{t+2*k}, v{t+2*k+1}"))
    if i == 0:
        o.append(I(f"s_add_u32 s{S_OT}, s{S_OOFF}, {m*10240}"))
    if i < 4:
        o.append(I(f"buffer_store_dwordx4 {vq(D)}, v{oa}, {srd(sO)}, s{S_OT} offen offset:{1024*i}{STP}", tag=('st', u)))
    else:
        o.append(I(f"buffer_store_dwordx4 {vq(D)}, v{oa2}, {srd(sO)}, s{S_OT} offen{STP}", tag=('st', u)))
    return o


def l_reduce():
    fin = []
    for i in range(5):
        fin.append(I(f"v_mov_b32 v{E0+i}, v{L0+i}"))
    for i in range(5):
        fin.append(I(f"v_permlane32_swap_b32 v{L0+i}, v{E0+i}"))
    for i in range(5):
        fin.append(I(f"v_add_f32 v{L0+i}, v{L0+i}, v{E0+i}"))
    for i in range(5):
        fin.append(I(f"v_mov_b32 v{E0+i}, v{L0+i}"))
    for i in range(5):
        fin.append(I(f"v_permlane16_swap_b32 v{L0+i}, v{E0+i}"))
    for i in range(5):
        fin.append(I(f"v_add_f32 v{L0+i}, v{L0+i}, v{E0+i}"))
    for i in range(5):
        fin.append(I(f"v_rcp_f32 v{RL+i}, v{L0+i}"))
    return fin


def straight(instrs):
    out = []
    for ins in instrs:
        if ins.kind == 'dma' and out and 'm0' in out[-1].txt.split(',')[0]:
            out.append(I("s_nop 0"))
        out.append(ins)
    return out


def open_item(kind):
    if kind == 'K':
        o = [I(f"v_add_u32 v{KA}, s{S_RD}, v{LP_K}"), I(f"v_xor_b32 v{KA+1}, 64, v{KA}")]
    elif kind in 'VW':
        lp = LP_V if kind == 'V' else LP_W
        o = [I(f"v_add_u32 v{VA}, s{S_RD}, v{lp}"), I(f"v_xor_b32 v{VA+1}, 32, v{VA}"),
             I(f"v_xor_b32 v{VA+2}, 64, v{VA}"), I(f"v_xor_b32 v{VA+3}, 64, v{VA+1}")]
    else:
        o = [I(f"v_add_u32 v{XA}, s{S_RD}, v{LP_X}")]
    return o + ring_adv(S_RD, S_T2)


def k_read(f, buf, tag):
    st, ks = divmod(f, 6)
    return [I(f"ds_read_b128 {aq(buf)}, v{KA + (ks & 1)} offset:{st*6144 + (ks >> 1)*128}", tag=tag)]


def v_read(n, buf, tag, half_off=6144):
    return [I(f"ds_read_b64_tr_b16 a[{buf+2*h}:{buf+2*h+1}], v{VA + (n & 3)} offset:{(n >> 2)*128 + h*half_off}", tag=tag)
            for h in range(2)]


def sm_ops(par, st, i, tbase):
    e = [E0 + (tbase + r) % 8 for r in range(4)]
    s = Sr(st, i)
    p = Pr(par, i) + 2 * st
    ts = TS0 + i
    o = [I(f"v_exp_f32 v{e[r]}, v{s+r}") for r in range(4)]
    o.append(I(f"v_cvt_pk_bf16_f32 v{p}, v{e[0]}, v{e[1]}"))
    if st == 0:
        o.append(I(f"v_add_f32 v{ts}, v{e[0]}, v{e[1]}"))
    else:
        o.append(I(f"v_add_f32 v{ts}, v{ts}, v{e[0]}"))
        o.append(I(f"v_add_f32 v{ts}, v{ts}, v{e[1]}"))
    o.append(I(f"v_cvt_pk_bf16_f32 v{p+1}, v{e[2]}, v{e[3]}"))
    o.append(I(f"v_add_f32 v{ts}, v{ts}, v{e[2]}"))
    o.append(I(f"v_add_f32 v{ts}, v{ts}, v{e[3]}"))
    return o


def qk_mfmas(first_zero=False):
    out = []
    for st in range(2):
        for ks in range(6):
            for i in range(5):
                f = st * 6 + ks
                c = (("0" if first_zero else vq(NM(i))) if ks == 0 else vq(Sr(st, i)))
                out.append((f, f"{MF} {vq(Sr(st,i))}, @FR@, {vq(Qf(ks,i))}, {c}"))
    return out


def pv_mfmas(par, zero=False):
    out = []
    for n in range(12):
        for i in range(5):
            c = "0" if zero else aq(Oa(n, i))
            out.append((n, f"{MF} {aq(Oa(n,i))}, @FR@, {vq(Pr(par,i))}, {c}"))
    return out


def flatten(mf, gaps, lo, hi):
    out = []
    for g in range(lo, hi):
        out.append(mf[g])
        out.extend(gaps[g])
    return out


def lane_id(v):
    return [I(f"v_mbcnt_lo_u32_b32 v{v}, -1, 0"), I(f"v_mbcnt_hi_u32_b32 v{v}, -1, v{v}")]


def q_phase(u):
    g0 = UNIT_ITEMS * u
    pu = u - 1
    blocks = []
    pre = []
    pre += lane_id(0)
    pre += [I(x) for x in (
        f"v_lshlrev_b32 v{TCH}, 7, v0",
        f"v_lshlrev_b32 v{SA}, 4, v0",
        f"v_add_u32 v{Q_OA2}, 4096, v{SA}")]
    blocks.append(('qpre0', pre))
    pre = []
    k = 0
    for m in range(2):
        for i in range(5):
            pre += drain_group(pu, m, i, 8 + 8 * (k % 4), 48 + 4 * (k % 4), SA, Q_OA2, True)
            k += 1
    blocks.append(('qdrain', pre))
    pre = []
    pre += [bothwait([g0, g0 + 1]), I("s_barrier")]
    pre += open_item('W') + open_item('X')
    mf = []
    for s_ in range(20):
        for n in range(12):
            for i in range(5):
                F = s_ * 12 + n
                c = "0" if s_ == 0 else acc_reg(n, i)
                mf.append(I(f"{MF} {acc_reg(n,i)}, {aq(FR(F % 4))}, {aq(XF(s_, i))}, {c}"))
    fixed = {}
    qds, qaddr, qdma, qwo, qx, qdr = [], [], [], [], [], []
    bar_gap = {s_: 60 * s_ - BAR_LEAD - 1 for s_ in range(1, 20)}

    def wreads(F):
        return v_read(F % 12, FR(F % 4), ('w', u, F), half_off=1536)

    def xreads(s_):
        return [I(f"ds_read_b128 {aq(XF(s_, i))}, v{XA} offset:{2048*i}", tag=('x', u, s_)) for i in range(5)]

    pre += wreads(0) + xreads(0) + wreads(1) + wreads(2)
    pre += straight(dma_item(g0 + 5))
    pre.append(dswait([('w', u, 0), ('x', u, 0)]))
    last_rd = {}
    for m in range(2, 6):
        for i in range(5):
            for o in drain_group(pu, m, i, Q_T, Q_D, SA, Q_OA2, False):
                t = Task(o, earliest=0)
                qdr.append(t)
                if o.txt.startswith('v_accvgpr_read'):
                    last_rd[m] = t
    qdr.append(Task(I(f"s_add_u32 s{S_OOFF}, s{S_OOFF}, s{S_OADV}"), earliest=0))
    last_read = None
    must_before = []
    wo_done = []
    for s_ in range(20):
        first = True
        addr_task = None
        if s_ >= 1:
            need = [g0 + 3 * (s_ // 2), g0 + 3 * (s_ // 2) + 1] if s_ % 2 == 0 else [g0 + 3 * (s_ // 2) + 2]
            fixed.setdefault(bar_gap[s_], []).extend([bothwait(need), I("s_barrier")])
            must_before.append((last_read, bar_gap[s_]))
            ops = open_item('W')
            if s_ % 2 == 0:
                ops += open_item('X')
            for k, o in enumerate(ops):
                t = Task(o, earliest=0, after=last_read if k == 0 else None, gapdist=1)
                qaddr.append(t)
                if o.kind == 'valu':
                    addr_task = t
        for n in range(12):
            F = s_ * 12 + n
            if s_ == 0 and n < 3:
                continue
            e = 5 * (F - 4) + 4
            if s_ >= 1:
                e = max(e, bar_gap[s_])
            rs = wreads(F)
            if n == 0 and s_ % 2 == 0:
                rs = rs + xreads(s_)
            if n == 6 and s_ % 2 == 0:
                rs = rs + [I(f"v_xor_b32 v{XA}, 64, v{XA}")] + xreads(s_ + 1)
            for r in rs:
                t = Task(r, earliest=e, after=addr_task if first else None, gapdist=1)
                first = False
                qds.append(t)
                last_read = t
        for n in range(12):
            F = s_ * 12 + n
            if F == 0:
                continue
            tags = [('w', u, F)] + ([('x', u, s_)] if n == 0 else [])
            fixed.setdefault(5 * F - 1, []).append(dswait(tags))
        if s_ >= 1:
            it = s_ // 2
            items = [3 * it + 5] if s_ % 2 == 0 else [3 * it + 6, 3 * it + 7]
            for x in items:
                for o in dma_item(g0 + x):
                    qdma.append(Task(o, earliest=bar_gap[s_] + 1))
        if s_ == WO_KS:
            for o in (I(f"s_mov_b32 m0, s{S_SPARE}"),
                      I(f"buffer_load_dword v{TCH}, {srd(sWo)}, s{S_TWO} offen lds", tag=('two', u)),
                      I(f"s_add_u32 s{S_TWO}, s{S_TWO}, 7680")):
                qdma.append(Task(o, earliest=0))
        if s_ == 16 and KV_TOUCH:
            qdma.append(Task(I(f"s_mov_b32 m0, s{S_SPARE}"), earliest=0))
            for x in range(5, 5 + KV_TOUCH):
                kind, num = item_kind(NQI + x)
                off, d = (S_KOFF, sK) if kind == 'K' else (S_VOFF, sV)
                qdma.append(Task(I(f"s_add_u32 s{S_T0}, s{off}, {num*12288}"), earliest=0))
                qdma.append(Task(I(f"buffer_load_dword v{TCH}, {srd(d)}, s{S_T0} offen nt lds", tag=('tkv', u)), earliest=0))
    gaps, left = schedule(mf, [qds, qaddr, qdma, qwo, qdr], fixed, tail_ok=False, greedy_scalar=lambda g: True, vm_space=VM_Q)
    for tk, g in must_before:
        assert tk.gap < g, (tk.gap, g)
    q_phase.info = dict(drain_end=qdr[-1].gap)
    blocks.append(('qpre', pre))
    for it in range(10):
        blocks.append((f'q{it}', flatten(mf, gaps, 120 * it, 120 * it + 120)))
    fin = [I("s_nop 7")]
    for m in range(6):
        for i in range(5):
            a0, a1, d = ACC(2 * m, i), ACC(2 * m + 1, i), Qf(m, i)
            if m == 5:
                a1 = Q_T + 4 * (i & 1)
                for k in range(4):
                    fin.append(I(f"v_accvgpr_read_b32 v{a1+k}, a{60+4*i+k}"))
            for a in (a0, a0 + 2, a1, a1 + 2):
                fin.append(I(f"v_pk_mul_f32 v[{a}:{a+1}], v[{a}:{a+1}], s[{S_SCALE}:{S_SCALE+1}] op_sel_hi:[1,0]"))
            fin.append(I(f"v_cvt_pk_bf16_f32 v{d}, v{a0}, v{a0+1}"))
            fin.append(I(f"v_cvt_pk_bf16_f32 v{d+1}, v{a0+2}, v{a0+3}"))
            fin.append(I(f"v_cvt_pk_bf16_f32 v{d+2}, v{a1}, v{a1+1}"))
            fin.append(I(f"v_cvt_pk_bf16_f32 v{d+3}, v{a1+2}, v{a1+3}"))
            prev = (m, i - 1) if i > 0 else ((m - 1, 4) if m > 0 else None)
            if prev:
                pd = Qf(*prev)
                fin.append(I(f"v_permlane16_swap_b32 v{pd}, v{pd+2}"))
                fin.append(I(f"v_permlane16_swap_b32 v{pd+1}, v{pd+3}"))
    pd = Qf(5, 4)
    fin.append(I("s_nop 1"))
    fin.append(I(f"v_permlane16_swap_b32 v{pd}, v{pd+2}"))
    fin.append(I(f"v_permlane16_swap_b32 v{pd+1}, v{pd+3}"))
    blocks.append(('qfin', fin))
    return blocks


def wb_code(label, tag):
    if STP:
        return []
    return [I(f"s_cmp_lg_u32 s{S_WAVE}, 0"), I(f"s_cbranch_scc1 {label}"),
            I("buffer_wbl2 sc1", kind='xsalu'),
            I(f"{label}:"), I("; marker", kind='mark', tag=tag)]


def sig_code(tv, amount_sgpr_or_imm, off, label, wtag=None):
    return [I(f"s_cmp_lg_u32 s{S_WAVE}, 0"), I(f"s_cbranch_scc1 {label}"),
            I(f"v_mov_b32 v{tv}, {amount_sgpr_or_imm}"), I(f"v_mov_b32 v{tv+1}, 0"),
            I("afterwait", kind='afterwait', tag=wtag),
            I("s_mov_b64 exec, 1"),
            I(f"buffer_atomic_add v{tv}, v{tv+1}, {srd(sD)}, s{off} offen sc1", kind='xvmem'),
            I("s_mov_b64 exec, -1"),
            I(f"{label}:")]


def a_phase(u):
    g0 = UNIT_ITEMS * u + NQI
    nxt = UNIT_ITEMS * (u + 1)
    blocks = []
    pre = [bothwait([g0, ('st', u - 1)]), I("s_barrier")]
    pre += wb_code("@L1@", ('wb', u))
    pre += open_item('K')
    for f in range(3):
        pre += k_read(f, FR(f), ('k', u, 0, f))
    for i in range(5):
        pre.append(I(f"v_mov_b32 v{L0+i}, 0"))
        for r in range(4):
            pre.append(I(f"v_mov_b32 v{NM(i)+r}, 0"))
    pre.append(dswait([('k', u, 0, 0)]))
    mf0 = [I(t.replace('@FR@', aq(FR(f % 4)))) for f, t in qk_mfmas(first_zero=True)]
    qds, qdma, fixed = [], [], {}
    for f in range(3, 12):
        for r in k_read(f, FR(f % 4), ('k', u, 0, f)):
            qds.append(Task(r, earliest=5 * (f - 4) + 4))
    for f in range(1, 12):
        fixed.setdefault(5 * f - 1, []).append(dswait([('k', u, 0, f)]))
    for x in (5,):
        for o in dma_item(g0 + x):
            qdma.append(Task(o, earliest=0))
    gaps, left = schedule(mf0, [qds, qdma], fixed, tail_ok=False, vm_space=VM_A)
    blk = pre + flatten(mf0, gaps, 0, 60)
    blk += [I(f"s_mov_b32 s{sO+2}, {192*10240}"), I(f"s_mov_b32 s{S_OADV}, {12*10240}")]
    blk += [I(f"s_mov_b32 s{S_DMIN}, 0xf149f2ca"), I(f"s_mov_b32 s{S_FORCED}, 1"),
            I(f"s_call_b64 s[{S_RET}:{S_RET+1}], L_slow0"),
            I(f"s_mov_b32 s{S_DMIN}, 0"), I(f"s_mov_b32 s{S_FORCED}, 0")]
    blk += [bothwait([g0 + 1]), I("s_barrier")]
    blk += open_item('K')
    for f in range(3):
        blk += k_read(f, FR(f), ('k', u, 1, f))
    blk.append(dswait([('k', u, 1, 0)]))
    blocks.append(('a0', blk))

    halves = []
    for t in range(1, 16):
        halves.append(('K', t))
        halves.append(('V', t - 1))
    halves.append(('V', 15))
    mf, fixed = [], {}
    qds, qaddr, qdma, qsm, qexp = [], [], [], [], []
    grp_last = []
    last_read = {'K': None, 'V': None}
    must_before = []
    for h, (kind, t) in enumerate(halves):
        base = 60 * h
        seq = qk_mfmas() if kind == 'K' else pv_mfmas(t & 1, zero=(t == 0))
        for f, txt in seq:
            F = 12 * h + f
            mf.append(I(txt.replace('@FR@', aq(FR(F % 4)))))
        bar = base - BAR_LEAD
        addr_task = None
        if h >= 1:
            fixed.setdefault(bar, []).extend([bothwait([g0 + h + 1]), I("s_barrier")])
            must_before.append((qds[-1], bar))
            for k, o in enumerate(open_item(kind)):
                tk = Task(o, earliest=(base - 60 if (kind == 'V' and t < 15) else 0),
                          after=last_read[kind] if k == 0 else None, gapdist=1)
                qaddr.append(tk)
                if o.kind == 'valu':
                    addr_task = tk
        first = True
        for f in range(12):
            F = 12 * h + f
            if h == 0 and f < 3:
                continue
            tag = (kind.lower(), u, t, f)
            rs = k_read(f, FR(F % 4), tag) if kind == 'K' else v_read(f, FR(F % 4), tag)
            e = 5 * (F - 4) + 4
            if h >= 1:
                e = max(e, bar)
            for r in rs:
                tk = Task(r, earliest=e, after=addr_task if first else None, gapdist=1)
                first = False
                qds.append(tk)
                last_read[kind] = tk
        for f in range(12):
            F = 12 * h + f
            if F == 0:
                continue
            fixed.setdefault(5 * F - 1, []).append(dswait([(kind.lower(), u, t, f)]))
        x = h + 6
        gid = g0 + x if x < 32 else nxt + (x - 32)
        e = base if (h % 2 == 0) else base + 60
        for o in dma_item(gid):
            qdma.append(Task(o, earliest=e))
        if kind == 'K':
            for i in range(5):
                qsm.append(Task(I(f"v_add_f32 v{L0+i}, v{L0+i}, v{TS0+i}"), earliest=base))
            tb = 0
            for st in range(2):
                for i in range(5):
                    ops = sm_ops(t & 1, st, i, tb)
                    tb += 4
                    ex = []
                    for k, o in enumerate(ops[:4]):
                        tk = Task(o, earliest=base, mf_after=base + 30 * st + 25 + i,
                                  after=(grp_last[-2] if (k == 0 and len(grp_last) >= 2) else None), gapdist=1)
                        qexp.append(tk)
                        ex.append(tk)
                    for o in ops[4:]:
                        dep = max(k for k in range(4) if f"v{E0 + (tb - 4 + k) % 8}" in [x.strip() for x in o.txt.split(None, 1)[1].split(',')[1:]])
                        tk = Task(o, earliest=base, after=ex[dep], gapdist=1)
                        qsm.append(tk)
                    grp_last.append(tk)
            qsm.append(Task(I(f"v_max3_f32 v{CHK}, v{TS0}, v{TS0+1}, v{TS0+2}"), earliest=base))
            qsm.append(Task(I(f"v_max3_f32 v{CHK}, v{CHK}, v{TS0+3}, v{TS0+4}"), earliest=base))
            chk = Task(I(f"v_cmp_ngt_f32 vcc, 2.0, v{CHK}"), earliest=base)
            chk.ins.extra = ('chk', base + 119)
            qsm.append(chk)
            fixed.setdefault(base + 119, []).append(I(f"s_cbranch_vccnz @TRAMP{t & 1}@"))
        if kind == 'V' and t == 15:
            for i in range(5):
                qsm.append(Task(I(f"v_add_f32 v{L0+i}, v{L0+i}, v{TS0+i}"), earliest=base))
    gaps, left = schedule(mf, [qds, qaddr, qdma, qexp, qsm] if A_DMA_PRIO else [qds, qaddr, qexp, qsm, qdma], fixed, tail_ok=False,
                          greedy_scalar=lambda g: (g % 120) < 28 or g >= 1800, vm_space=VM_A)
    for tk, g in must_before:
        assert tk.gap < g, (tk.gap, g)
    for tk in qsm:
        if isinstance(tk.ins.extra, tuple) and tk.ins.extra[0] == 'chk':
            assert tk.gap < tk.ins.extra[1], f"check placed too late: {tk.gap} vs {tk.ins.extra[1]}"
    for t in range(1, 16):
        blocks.append((f'a{t}', flatten(mf, gaps, 120 * (t - 1), 120 * t)))
    blocks.append(('apost', flatten(mf, gaps, 1800, 1860)))

    blocks.append(('lred', l_reduce()))
    sg = sig_code(E0, f"s{S_UNIT}", S_GRP, "@L1@", ('wb', u))
    k = [b[0] for b in blocks].index(ASIG_BEFORE)
    blocks[k:k] = [('asig', sg)]
    return blocks


def slow_path(par):
    o = [I(f"L_slow{par}:"), I("s_nop 7")]
    for i in range(5):
        a, b = Sr(0, i), Sr(1, i)
        e0, e1 = E0, E0 + 1
        o += [I(f"v_max3_f32 v{e0}, v{a}, v{a+1}, v{a+2}"),
              I(f"v_max3_f32 v{e0}, v{e0}, v{a+3}, v{b}"),
              I(f"v_max3_f32 v{e0}, v{e0}, v{b+1}, v{b+2}"),
              I(f"v_max_f32 v{e0}, v{e0}, v{b+3}"),
              I(f"v_mov_b32 v{e1}, v{e0}"),
              I("s_nop 1"),
              I(f"v_permlane32_swap_b32 v{e0}, v{e1}"),
              I(f"v_max_f32 v{e0}, v{e0}, v{e1}"),
              I(f"v_mov_b32 v{e1}, v{e0}"),
              I("s_nop 1"),
              I(f"v_permlane16_swap_b32 v{e0}, v{e1}"),
              I(f"v_max_f32 v{e0}, v{e0}, v{e1}"),
              I(f"v_ceil_f32 v{e0}, v{e0}"),
              I(f"v_add_f32 v{e0}, 0x40e00000, v{e0}"),
              I(f"v_max_f32 v{e0}, s{S_DMIN}, v{e0}")]
        for r in range(4):
            o.append(I(f"v_sub_f32 v{NM(i)+r}, v{NM(i)+r}, v{e0}"))
            o.append(I(f"v_sub_f32 v{a+r}, v{a+r}, v{e0}"))
            o.append(I(f"v_sub_f32 v{b+r}, v{b+r}, v{e0}"))
        o += [I(f"v_cvt_i32_f32 v{e1}, v{e0}"),
              I(f"v_sub_u32 v{TS0+i}, 0, v{e1}"),
              I(f"v_ldexp_f32 v{L0+i}, v{L0+i}, v{TS0+i}")]
    o += [I(f"s_cmp_eq_u32 s{S_FORCED}, 1"), I(f"s_cbranch_scc1 L_slow{par}_sm")]
    k = 0
    for n in range(12):
        for i in range(5):
            for r in range(4):
                e = E0 + k % 8
                k += 1
                o += [I(f"v_accvgpr_read_b32 v{e}, a{Oa(n,i)+r}"),
                      I(f"v_ldexp_f32 v{e}, v{e}, v{TS0+i}"),
                      I(f"v_accvgpr_write_b32 a{Oa(n,i)+r}, v{e}")]
    o.append(I(f"L_slow{par}_sm:"))
    tb = 0
    for st in range(2):
        for i in range(5):
            o += sm_ops(par, st, i, tb)
            tb += 4
    o += [I("s_nop 1"), I(f"s_setpc_b64 s[{S_RET}:{S_RET+1}]")]
    return o


def PACC(nt, i): return 4 * (5 * i + nt)
def PWF(s, nt): return 100 + 20 * (s % 2) + 4 * nt
NOB = 6
def POF(k): return 140 + 4 * (k % NOB)
P_RAO, P_RAW, VO, P_T, P_D, P_F = 164, 167, 174, 178, 186, 194
WIN = 61440
OP_CAP3 = 700
VM_OP2 = 3
OP_DRAIN_GAP = 0
OP_LEAD = 17
SIG_P = 13
POLL_P = 17


def poll_check(P, lab, d, soff, want):
    o = [I(x) for x in (
        f"s_mov_b32 s{S_T3}, 0x80000",
        f"{lab}:",
        f"v_cmp_{'gt' if want == 8 else 'ne'}_u32 vcc, {want}, v{P+1}",
        f"s_sub_u32 s{S_T3}, s{S_T3}, 1",
        f"s_cmp_eq_u32 s{S_T3}, 0",
        f"s_cbranch_scc1 {lab}_out",
        f"s_cbranch_vccz {lab}_out",
        "s_sleep 1")]
    o.append(I(f"buffer_load_dword v{P+1}, v{P}, {srd(d)}, {soff} offen sc1", kind='xvmem'))
    o += [I("s_waitcnt vmcnt(0)", kind='xsalu'), I(f"s_branch {lab}"), I(f"{lab}_out:")]
    return o


def tail1_issue(name, ws):
    e = E0
    o = [I(f"v_mov_b32 v{e}, 0"), I(f"s_mov_b32 m0, s{S_SPARE}"), I("s_nop 0"),
         I(f"buffer_load_dword v{e}, {srd(sD)}, s{S_GRP} offen sc1 lds", tag='poll0')]
    o += lane_id(e)
    o += [I(x) for x in (
        f"v_lshlrev_b32 v{LP_X}, 4, v{e}",
        f"s_cmp_eq_u32 s{S_J}, 0",
        f"s_cselect_b32 s{sP}, s{sO}, s{sWo}",
        f"s_cselect_b32 s{sP+1}, s{sO+1}, s{sWo+1}",
        f"s_cselect_b32 s{sP+2}, s{sO+2}, s{sWo+2}",
        f"s_cbranch_scc0 L_{name}_wpat")]
    o += [I(f"v_mov_b32 v{OPV[k]}, v{LP_X}") for k in range(4)]
    o += [I(f"v_add_u32 v{OPV[4]}, 4096, v{LP_X}"), I(f"s_branch L_{name}_wpatd"), I(f"L_{name}_wpat:")]
    for n in range(5):
        o += [I(x) for x in (
            f"v_add_u32 v{e+1}, {64*n}, v{e}",
            f"v_mul_u32_u24 v{e+2}, 205, v{e+1}",
            f"v_lshrrev_b32 v{e+2}, 12, v{e+2}",
            f"v_mul_u32_u24 v{e+3}, 20, v{e+2}",
            f"v_sub_u32 v{e+1}, v{e+1}, v{e+3}",
            f"v_lshrrev_b32 v{e+3}, 1, v{e+2}",
            f"v_and_b32 v{e+3}, 2, v{e+3}",
            f"v_xor_b32 v{e+1}, v{e+1}, v{e+3}",
            f"v_lshlrev_b32 v{e+1}, 4, v{e+1}",
            f"v_mul_u32_u24 v{e+2}, 1280, v{e+2}",
            f"v_add_u32 v{e+1}, v{e+1}, v{e+2}",
            f"v_subrev_u32 v{OPV[n]}, {1024*n if n < 4 else 0}, v{e+1}")]
    o += [I(x) for x in (
        f"L_{name}_wpatd:",
        f"s_add_u32 s{sE}, s6, {ws['e_off']}",
        f"s_addc_u32 s{sE+1}, s7, 0",
        f"s_and_b32 s{sE+1}, s{sE+1}, 0xffff",
        f"s_mov_b32 s{sE+2}, {ws['e_bytes']}")]
    return o


def tail1_check(name):
    o = [vmwait('poll0'), I(f"v_mov_b32 v{E0+2}, s{S_SPARE}"),
         I(f"ds_read_b32 v{E0+1}, v{E0+2}", tag='poll0d'), I(f"v_mov_b32 v{E0}, 0"), dswait('poll0d')]
    o += poll_check(E0, f"L_{name}_poll0", sD, f"s{S_GRP}", 8)
    return o


def op_phase(name):
    blocks = []
    u = NUNITS - 1
    addr, when = op_addrs()
    t = P_T
    pro = [I(x) for x in (
        f"v_mov_b32 v{VO}, v{LP_X}", f"v_add_u32 v{VO+1}, 4096, v{LP_X}",
        f"v_mov_b32 v{P_F}, 0")]
    pro += [I(f"buffer_load_dword v{P_F+2}, v{P_F}, {srd(sE)}, s{S_FOWN} offen sc1", tag='flag0'),
            I(f"buffer_load_dword v{P_F+3}, v{P_F}, {srd(sE)}, s{S_FPART} offen sc1", tag='flag0')]
    pro += [I(x) for x in (
        f"s_mul_i32 s{S_T3}, s{S_R}, 5120", f"v_add_u32 v{P_RAO}, s{S_T3}, v{LP_X}",
        f"v_lshrrev_b32 v{t}, 6, v{LP_X}",
        f"v_mul_u32_u24 v{t+1}, 320, v{t}",
        f"v_bfe_u32 v{t+2}, v{LP_X}, 4, 2",
        f"v_lshl_add_u32 v{t+1}, v{t+2}, 3, v{t+1}",
        f"s_mul_i32 s{S_T3}, s{S_J}, 160", f"s_add_u32 s{S_T3}, s{S_T3}, 10240",
        f"v_add_u32 v{t+1}, s{S_T3}, v{t+1}",
        f"v_bfe_u32 v{t+2}, v{t}, 2, 1",
        f"v_lshlrev_b32 v{t+2}, 5, v{t+2}",
        f"s_lshl_b32 s{S_T3}, s{S_J}, 1", f"s_sub_u32 s{S_T3}, 1, s{S_T3}",
        f"v_mul_lo_u32 v{t+2}, v{t+2}, s{S_T3}",
        f"v_add_u32 v{P_RAW}, v{t+1}, v{t+2}",
        f"v_sub_u32 v{P_RAW+3}, v{t+1}, v{t+2}")]
    for j in (1, 2):
        pro += [I(f"v_add_u32 v{P_RAO+j}, {WIN*j}, v{P_RAO}"), I(f"v_add_u32 v{P_RAW+j}, {WIN*j}, v{P_RAW}"),
                I(f"v_add_u32 v{P_RAW+3+j}, {WIN*j}, v{P_RAW+3}")]
    pro += [bothwait([OP0, OP0 + 1]), I("s_barrier")]

    def rd(s_, kind, k):
        j, rem = divmod(addr[s_], WIN)
        if kind == 'w':
            b = PWF(s_, k)
            return [I(f"ds_read_b64_tr_b16 v[{b+2*h}:{b+2*h+1}], v{P_RAW+3*(k & 1)+j} offset:{rem + 32*k + 5120*h}", tag=('pf', s_, 'w'))
                    for h in range(2)]
        return [I(f"ds_read_b128 {vq(POF(5*s_+k))}, v{P_RAO+j} offset:{rem + 1024*k}", tag=('pf', s_, k))]

    for k in range(5):
        pro += rd(0, 'w', k)
    for k in range(3):
        pro += rd(0, 'o', k)
    pro.append(dswait([('pf', 0, 0)]))
    mf, fixed = [], {}
    qds, qdma, qdr = [], [], []
    bar = {p: 50 * p - OP_LEAD for p in range(1, NK // 2)}
    bar[0] = -1
    must_before = []
    for s_ in range(NK):
        base = 25 * s_
        p = s_ // 2
        if s_ % 2 == 0 and p >= 1:
            fixed.setdefault(bar[p], []).extend([bothwait([OP0 + s_, OP0 + s_ + 1]), I("s_barrier")])
            must_before.append((qds[-1], bar[p]))
        for i in range(5):
            for nt in range(5):
                c = "0" if s_ == 0 else vq(PACC(nt, i))
                mf.append(I(f"{MF} {vq(PACC(nt,i))}, {vq(PWF(s_,nt))}, {vq(POF(5*s_+i))}, {c}"))
            if base + 5 * i > 0:
                tags = [('pf', s_, i)] + ([('pf', s_, 'w')] if i == 0 else [])
                fixed.setdefault(base + 5 * i - 1, []).append(dswait(tags))
        if s_ > 0:
            e = max(25 * (s_ - 1), bar[p])
            for k in range(5):
                for r in rd(s_, 'w', k):
                    qds.append(Task(r, earliest=e))
        for k in range(5):
            if s_ == 0 and k < 3:
                continue
            e = max(5 * (5 * s_ + k - NOB) + 4, bar[p])
            qds.append(Task(rd(s_, 'o', k)[0], earliest=e))
    first_r1 = None
    for it in range(5, NK):
        for o in dma_op_item(it, OPV):
            tk = Task(o, earliest=bar[when[it]] + 1)
            qdma.append(tk)
            if it == 48 and first_r1 is None:
                first_r1 = tk
    k = 0
    for m in range(6):
        for i in range(5):
            for o in drain_group(u, m, i, P_T, P_D + 4 * (k % 2), VO, VO + 1, False):
                qdr.append(Task(o, earliest=int((5 * m + i) * OP_DRAIN_GAP)))
            k += 1
    gaps, left = schedule(mf, [qds, qdma, qdr], fixed, tail_ok=False, greedy_scalar=lambda g: True,
                          capf=lambda g: (3 if g < OP_CAP3 else 2), vm_space=lambda g: (VM_OP if g < 50 * SIG_P else VM_OP2))
    for tk, g in must_before:
        assert tk.gap < g, (tk.gap, g)
    op_phase.info = dict(drain_end=qdr[-1].gap, first_r1=first_r1.gap)
    assert qdr[-1].gap < 50 * (SIG_P - 1), qdr[-1].gap
    assert first_r1.gap >= 50 * (POLL_P + 2), first_r1.gap
    blocks.append(('oppro', pro))
    for p in range(NK // 2):
        pre = []
        if p == SIG_P:
            pre += [vmwait([('st', u), 'flag0']), I("s_barrier")]
            pre += [I(f"s_add_u32 s{S_T3}, s{S_GRP}, 4")]
            pre += sig_code(P_T, "1", S_T3, f"L_{name}_sig1")
        if p == POLL_P:
            pre += [I(f"s_add_u32 s{S_U0}, s{S_GRP}, 4"),
                    I(f"buffer_load_dword v{P_F+1}, v{P_F}, {srd(sD)}, s{S_U0} offen sc1", tag='poll1')]
        if p == POLL_P + 2:
            pre.append(vmwait('poll1'))
            pre += poll_check(P_F, f"L_{name}_poll1", sD, f"s{S_U0}", 8)
        if pre:
            blocks.append((f'opx{p}', pre))
        blocks.append((f'op{p}', flatten(mf, gaps, 50 * p, 50 * p + 50)))
    epi = []
    E = lambda t, **kw: epi.append(I(t, **kw))
    CA, R0 = 200, 100
    E(f"v_add_u32 v{VO+2}, 8192, v{VO}")
    E(f"v_add_u32 v{VO+3}, 12288, v{VO}")
    E(f"v_add_u32 v{P_F+2}, 1, v{P_F+2}")
    E(f"v_add_u32 v{P_F+3}, 1, v{P_F+3}")
    E(f"v_lshrrev_b32 v{CA}, 4, v{VO}")
    E(f"v_and_b32 v{CA+1}, 15, v{CA}")
    E(f"v_lshrrev_b32 v{CA}, 4, v{CA}")
    E(f"v_lshlrev_b32 v{CA}, 3, v{CA}")
    E(f"v_mul_u32_u24 v{CA+1}, 2560, v{CA+1}")
    E(f"v_add_u32 v{CA}, v{CA}, v{CA+1}")
    E(f"s_cmp_ge_u32 s{S_QUAD}, 4")
    E(f"s_cbranch_scc1 L_{name}_ex1")
    for kh in range(2):
        if kh:
            E(f"L_{name}_ex1:")
        keep = list(range(0, 13)) if kh == 0 else list(range(13, 25))
        send = [t for t in range(25) if t not in keep]
        for k, tl in enumerate(send):
            E(f"buffer_store_dwordx4 {vq(4*tl)}, v{VO + k // 4}, {srd(sE)}, s{S_ESND} offen offset:{1024*(k % 4)} sc1", kind='xvmem')
        E("s_waitcnt vmcnt(0)")
        E("s_mov_b64 exec, 1")
        E(f"buffer_store_dword v{P_F+2}, v{P_F}, {srd(sE)}, s{S_FOWN} offen sc1", kind='xvmem')
        E("s_mov_b64 exec, -1")
        E(f"buffer_load_dword v{P_F+1}, v{P_F}, {srd(sE)}, s{S_FPART} offen sc1", kind='xvmem')
        E("s_waitcnt vmcnt(0)")
        epi += poll_check(P_F, f"L_{name}_pollx{kh}", sE, f"s{S_FPART}", f"v{P_F+3}")
        for k, tl in enumerate(keep):
            E(f"buffer_load_dwordx4 {vq(R0+4*k)}, v{VO + k // 4}, {srd(sE)}, s{S_ERCV} offen offset:{1024*(k % 4)} sc1", kind='xvmem')
        for k, tl in enumerate(keep):
            i, nt = divmod(tl, 5)
            a, r = 4 * tl, R0 + 4 * k
            if k == 0 or nt == 0:
                E(f"s_add_u32 s{S_T0}, s{S_COFF}, {i*16*2560}")
            E(f"s_waitcnt vmcnt({len(keep) - 1})")
            E(f"v_pk_add_f32 v[{a}:{a+1}], v[{a}:{a+1}], v[{r}:{r+1}]")
            E(f"v_pk_add_f32 v[{a+2}:{a+3}], v[{a+2}:{a+3}], v[{r+2}:{r+3}]")
            E(f"v_cvt_pk_bf16_f32 v{a}, v{a}, v{a+1}")
            E(f"v_cvt_pk_bf16_f32 v{a+1}, v{a+2}, v{a+3}")
            E(f"buffer_store_dwordx2 v[{a}:{a+1}], v{CA}, {srd(sC)}, s{S_T0} offen offset:{32*nt}", kind='xvmem')
        if kh == 0:
            E(f"s_branch L_{name}_exdone")
    E(f"L_{name}_exdone:")
    blocks.append(('opepi', epi))
    return blocks


def prologue(name, ws):
    o = []
    A = lambda t: o.append(I(t))
    A(f"{name}:")
    A("s_cmp_ge_u32 s2, 256")
    A(f"s_cbranch_scc1 L_{name}_done")
    XCD, IDX, BLK, B, QUAD = 88, 89, 90, 91, 92
    A(f"s_and_b32 s{XCD}, s2, 7")
    A(f"s_lshr_b32 s{IDX}, s2, 3")
    A(f"s_lshr_b32 s{BLK}, s{XCD}, 2")
    A(f"s_and_b32 s{B}, s{XCD}, 3")
    A(f"s_lshl_b32 s{B}, s{B}, 2")
    A(f"s_lshr_b32 s{QUAD}, s{IDX}, 3")
    A(f"s_add_u32 s{B}, s{B}, s{QUAD}")
    A(f"s_and_b32 s{QUAD}, s{IDX}, 7")
    A(f"s_mul_i32 s4, s{BLK}, 40")
    A("s_add_u32 s4, s0, s4")
    A("s_addc_u32 s5, s1, 0")
    A(f"s_load_dwordx2 s[{sX}:{sX+1}], s[4:5], 0")
    A(f"s_load_dwordx2 s[{sK}:{sK+1}], s[4:5], 8")
    A(f"s_load_dwordx2 s[{sV}:{sV+1}], s[4:5], 16")
    A(f"s_load_dwordx2 s[{sW}:{sW+1}], s[4:5], 24")
    A(f"s_load_dwordx2 s[{sWo}:{sWo+1}], s[4:5], 32")
    A(f"s_load_dwordx2 s[{sC}:{sC+1}], s[0:1], 80")
    A(f"s_load_dwordx2 s[{sD}:{sD+1}], s[0:1], 88")
    A("s_load_dwordx2 s[6:7], s[0:1], 96")
    A("v_lshrrev_b32 v1, 6, v0")
    A("v_and_b32 v0, 63, v0")
    A(f"v_readfirstlane_b32 s{S_WAVE}, v1")
    A("s_nop 3")
    A(f"s_lshr_b32 s{S_J}, s{S_WAVE}, 1")
    A(f"s_and_b32 s{S_R}, s{S_WAVE}, 1")
    T, T2, H, BH = 93, 94, 95, 96
    for n in range(3):
        A(f"v_add_u32 v3, {64*n}, v0")
        A("v_mul_u32_u24 v1, 171, v3")
        A("v_lshrrev_b32 v1, 12, v1")
        A("v_mul_u32_u24 v2, 24, v1")
        A("v_sub_u32 v2, v3, v2")
        A("v_bfe_u32 v4, v1, 1, 1")
        A("v_mul_u32_u24 v5, 3, v4")
        A("v_and_b32 v6, 4, v1")
        A("v_or_b32 v5, v5, v6")
        A("v_xor_b32 v5, v5, v2")
        A("v_lshlrev_b32 v5, 4, v5")
        A("v_mul_u32_u24 v6, 384, v1")
        A("v_add_u32 v5, v5, v6")
        A(f"v_subrev_u32 v{PAT_KV+n}, {1024*n}, v5")
        A("v_and_b32 v5, 2, v1")
        A(f"s_lshl_b32 s{T}, s{S_R}, 2")
        A(f"v_or_b32 v5, s{T}, v5")
        A("v_xor_b32 v5, v5, v2")
        A("v_lshlrev_b32 v5, 4, v5")
        A("v_mul_u32_u24 v6, 12288, v1")
        A("v_add_u32 v5, v5, v6")
        A(f"v_subrev_u32 v{PAT_W+n}, {1024*n}, v5")
    A("v_lshrrev_b32 v1, 3, v0")
    A("v_and_b32 v2, 7, v0")
    A("v_and_b32 v4, 6, v1")
    A("v_xor_b32 v2, v2, v4")
    A("v_lshlrev_b32 v2, 4, v2")
    A("v_mul_u32_u24 v1, 1280, v1")
    A(f"v_add_u32 v{PAT_X}, v1, v2")
    A(f"s_mul_i32 s{T}, s{S_J}, 12288")
    A(f"s_mul_i32 s{T2}, s{S_R}, {16*384}")
    A(f"s_add_u32 s{S_CKV}, s{T}, s{T2}")
    A(f"s_mul_i32 s{T2}, s{S_R}, {8*384}")
    A(f"s_add_u32 s{S_CW}, s{T}, s{T2}")
    A(f"s_mul_i32 s{S_C5}, s{S_WAVE}, 5120")
    A(f"s_lshl_b32 s{H}, s{QUAD}, 2")
    A(f"s_add_u32 s{H}, s{H}, s{S_J}")
    A(f"s_mul_i32 s{S_WBASE}, s{H}, 384")
    A(f"s_mul_i32 s{T2}, s{S_R}, {8*12288}")
    A(f"s_add_u32 s{S_WBASE}, s{S_WBASE}, s{T2}")
    A(f"s_sub_u32 s{S_WBASE}, s{S_WBASE}, 768")
    A(f"s_mul_i32 s{S_XBASE}, s{B}, 204800")
    A(f"s_mul_i32 s{T2}, s{S_WAVE}, {40*1280}")
    A(f"s_add_u32 s{S_XBASE}, s{S_XBASE}, s{T2}")
    A(f"s_mul_i32 s{S_CX}, s{S_WAVE}, 5120")
    A(f"s_and_b32 s{T}, s{XCD}, 3")
    A(f"s_mul_i32 s{T}, s{T}, 5")
    A(f"s_add_u32 s{T}, s{T}, 1")
    A(f"s_lshr_b32 s{T}, s{T}, 1")
    if not ROT:
        A(f"s_mov_b32 s{T}, 0")
    A(f"s_mul_i32 s{S_WREL0}, s{T}, {64*12288}")
    A(f"s_lshl_b32 s{S_XREL0}, s{T}, 7")
    A(f"s_mov_b32 s{S_WR}, 0")
    A(f"s_mov_b32 s{S_RD}, 0")
    A(f"s_lshl_b32 s{S_SPARE}, s{S_WAVE}, 12")
    A(f"s_add_u32 s{S_SPARE}, s{S_SPARE}, {SPARE}")
    A("s_waitcnt lgkmcnt(0)")
    for b, nbytes in ((sX, 16*160*640*2), (sK, 16*32*512*192*2), (sV, 16*32*512*192*2), (sW, 640*6144*2),
                      (sWo, 6144*640*2), (sC, 16*160*1280*2), (sD, 256)):
        A(f"s_and_b32 s{b+1}, s{b+1}, 0xffff")
        A(f"s_mov_b32 s{b+2}, {nbytes}")
        A(f"s_mov_b32 s{b+3}, 0x20000")
    for g in range(5):
        o += straight(dma_item(g))
    A(f"s_and_b32 s{T}, s{XCD}, 3")
    A(f"s_lshl_b32 s{T}, s{T}, 5")
    A(f"s_add_u32 s{T}, s{T}, s{IDX}")
    A(f"s_lshl_b32 s{T}, s{T}, 2")
    A(f"s_add_u32 s{T}, s{T}, s{S_WAVE}")
    A(f"s_mul_i32 s{S_TWO}, s{T}, 15360")
    if WARM:
        A(f"s_lshl_b32 s{T2}, s{QUAD}, 2")
        A(f"s_add_u32 s{T2}, s{T2}, s{S_WAVE}")
        A(f"s_mul_i32 s{T2}, s{T2}, 6400")
        A(f"s_mul_i32 s{T}, s{B}, 204800")
        A(f"s_add_u32 s{T}, s{T}, s{T2}")
        A(f"s_mov_b32 m0, s{S_SPARE}")
        A("v_lshlrev_b32 v4, 7, v0")
        o.append(I(f"buffer_load_dword v4, {srd(sX)}, s{T} offen lds", tag='touch'))
    A("v_and_b32 v1, 15, v0")
    A("v_lshrrev_b32 v2, 4, v0")
    A(f"s_mul_i32 s{T}, s{S_J}, 12288")
    A("v_and_b32 v3, 1, v2")
    A("v_lshlrev_b32 v3, 1, v3")
    A("v_lshrrev_b32 v4, 1, v2")
    A("v_or_b32 v3, v3, v4")
    A("v_bfe_u32 v4, v1, 1, 1")
    A("v_mul_u32_u24 v4, 3, v4")
    A("v_and_b32 v5, 4, v1")
    A("v_or_b32 v4, v4, v5")
    A("v_xor_b32 v3, v3, v4")
    A("v_lshlrev_b32 v3, 4, v3")
    A("v_mul_u32_u24 v4, 384, v1")
    A(f"v_add3_u32 v{LP_K}, v3, v4, s{T}")
    A("v_lshrrev_b32 v3, 2, v1")
    A("v_and_b32 v4, 3, v0")
    A("v_lshl_add_u32 v5, v2, 2, v3")
    A("v_bfe_u32 v6, v5, 1, 1")
    A("v_mul_u32_u24 v6, 3, v6")
    A("v_and_b32 v7, 4, v5")
    A("v_or_b32 v6, v6, v7")
    A("v_lshrrev_b32 v7, 1, v4")
    A("v_xor_b32 v6, v6, v7")
    A("v_lshlrev_b32 v6, 4, v6")
    A("v_and_b32 v8, 1, v4")
    A("v_lshl_add_u32 v6, v8, 3, v6")
    A("v_mul_u32_u24 v5, 384, v5")
    A(f"v_add3_u32 v{LP_V}, v5, v6, s{T}")
    A("v_lshl_add_u32 v5, v2, 3, v3")
    A("v_and_b32 v6, 2, v3")
    A("v_and_b32 v9, 1, v2")
    A("v_lshl_or_b32 v6, v9, 2, v6")
    A("v_xor_b32 v6, v6, v7")
    A("v_lshlrev_b32 v6, 4, v6")
    A("v_lshl_add_u32 v6, v8, 3, v6")
    A("v_mul_u32_u24 v5, 384, v5")
    A(f"v_add3_u32 v{LP_W}, v5, v6, s{T}")
    A(f"s_mul_i32 s{T}, s{S_R}, 10240")
    A("v_lshrrev_b32 v3, 3, v1")
    A("v_lshlrev_b32 v3, 10, v3")
    A("v_and_b32 v4, 7, v1")
    A("v_lshl_add_u32 v3, v4, 7, v3")
    A("v_and_b32 v4, 6, v1")
    A("v_xor_b32 v4, v4, v2")
    A("v_lshlrev_b32 v4, 4, v4")
    A(f"v_add3_u32 v{LP_X}, v3, v4, s{T}")
    A(f"s_lshl_b32 s{BH}, s{B}, 5")
    A(f"s_add_u32 s{BH}, s{BH}, s{H}")
    A(f"s_mul_i32 s{S_KOFF}, s{BH}, 196608")
    A(f"s_mul_i32 s{T2}, s{S_R}, {16*384}")
    A(f"s_add_u32 s{S_KOFF}, s{S_KOFF}, s{T2}")
    A(f"s_mov_b32 s{S_VOFF}, s{S_KOFF}")
    GB = 97
    A(f"s_lshl_b32 s{GB}, s{BLK}, 4")
    A(f"s_add_u32 s{GB}, s{GB}, s{B}")
    A(f"s_mul_i32 s{T}, s{GB}, {192*10240}")
    A(f"s_add_u32 s{T}, s{T}, {ws['o_off']}")
    A(f"s_add_u32 s{sO}, s6, s{T}")
    A(f"s_addc_u32 s{sO+1}, s7, 0")
    A(f"s_and_b32 s{sO+1}, s{sO+1}, 0xffff")
    A(f"s_mov_b32 s{sO+2}, 0")
    A(f"s_mov_b32 s{S_OADV}, 0")
    A(f"s_mov_b32 s{sO+3}, 0x20000")
    A(f"s_mul_i32 s{T}, s{QUAD}, 24")
    A(f"s_mul_i32 s{T2}, s{S_J}, 6")
    A(f"s_add_u32 s{T}, s{T}, s{T2}")
    A(f"s_mul_i32 s{S_OOFF}, s{T}, 10240")
    A(f"s_mul_i32 s{T2}, s{S_R}, 5120")
    A(f"s_add_u32 s{S_OOFF}, s{S_OOFF}, s{T2}")
    A(f"s_lshr_b32 s{T}, s{QUAD}, 2")
    A(f"s_and_b32 s{T2}, s{QUAD}, 3")
    A(f"s_mul_i32 s{S_PADV}, s{S_J}, 30720")
    A(f"s_add_u32 s{S_PADV}, s{S_PADV}, 10240")
    A(f"s_mul_i32 s{S_PSRC}, s{T}, 96")
    A(f"s_mul_i32 s{S_PSRC}, s{S_PSRC}, s{S_PADV}")
    A(f"s_mul_i32 s{H}, s{T2}, 320")
    A(f"s_mul_i32 s{H}, s{H}, s{S_J}")
    A(f"s_add_u32 s{S_PSRC}, s{S_PSRC}, s{H}")
    A(f"s_lshr_b32 s{H}, s{S_PADV}, 1")
    A(f"s_mul_i32 s{H}, s{H}, s{S_R}")
    A(f"s_add_u32 s{S_PSRC}, s{S_PSRC}, s{H}")
    A(f"s_mov_b32 s{S_PBASE}, s{S_PSRC}")
    A(f"s_and_b32 s{S_PQ}, s{XCD}, {3 if ROT_OP else 0}")
    A(f"s_mul_i32 s{H}, s{S_PQ}, 24")
    A(f"s_mul_i32 s{H}, s{H}, s{S_PADV}")
    A(f"s_add_u32 s{S_PSRC}, s{S_PSRC}, s{H}")
    if FAKE_OP:
        A(f"s_mov_b32 s{S_PADV}, 0")
    A(f"s_mul_i32 s{S_COFF}, s{B}, {160*2560}")
    A(f"s_mul_i32 s{H}, s{S_R}, {80*2560}")
    A(f"s_add_u32 s{S_COFF}, s{S_COFF}, s{H}")
    A(f"s_mul_i32 s{H}, s{BLK}, 1280")
    A(f"s_add_u32 s{S_COFF}, s{S_COFF}, s{H}")
    A(f"s_mul_i32 s{H}, s{T2}, 320")
    A(f"s_add_u32 s{S_COFF}, s{S_COFF}, s{H}")
    A(f"s_mul_i32 s{H}, s{S_J}, 160")
    A(f"s_add_u32 s{S_COFF}, s{S_COFF}, s{H}")
    A(f"s_mov_b32 s{S_QUAD}, s{QUAD}")
    A(f"s_lshl_b32 s{H}, s{GB}, 3")
    A(f"s_add_u32 s{T}, s{H}, s{QUAD}")
    A(f"s_lshl_b32 s{T}, s{T}, 2")
    A(f"s_add_u32 s{T}, s{T}, s{S_WAVE}")
    A(f"s_mul_i32 s{S_ESND}, s{T}, 13312")
    A(f"s_lshl_b32 s{S_FOWN}, s{T}, 7")
    A(f"s_add_u32 s{S_FOWN}, s{S_FOWN}, {1024*13312}")
    A(f"s_xor_b32 s{T}, s{T}, 16")
    A(f"s_mul_i32 s{S_ERCV}, s{T}, 13312")
    A(f"s_lshl_b32 s{S_FPART}, s{T}, 7")
    A(f"s_add_u32 s{S_FPART}, s{S_FPART}, {1024*13312}")
    A(f"s_lshl_b32 s{S_GRP}, s{GB}, 3")
    A(f"s_lshl_b32 s{S_BLKC}, s{BLK}, 7")
    c = math.log2(math.e) / math.sqrt(192.0)
    cb = struct.unpack('<I', struct.pack('<f', c))[0]
    A(f"s_mov_b32 s{S_SCALE}, 0x{cb:08x}")
    A(f"s_mov_b32 s{S_UNIT}, 0")
    A(f"s_mov_b32 s{S_DMIN}, 0")
    A(f"s_mov_b32 s{S_FORCED}, 0")
    return o


def build(name, ws):
    pro = prologue(name, ws)
    units = []
    for u in range(NUNITS):
        bl = q_phase(u) + a_phase(u)
        if u == 0:
            bl = [b for b in bl if b[0] != 'qdrain']
        else:
            k = [b[0] for b in bl].index('a12')
            bl[k:k] = [('t1issue', tail1_issue(name, ws))]
            k = [b[0] for b in bl].index('a14')
            bl[k:k] = [('t1check', tail1_check(name))]
        units.append(bl)
    opb = op_phase(name)
    stream = list(pro)
    for ub in units:
        for _, b in ub:
            stream += b
    for _, b in opb:
        stream += b
    resolve_waits(stream)
    errs = check_hazards(stream, name)
    for par in range(2):
        errs += check_hazards(slow_path(par), f'slow{par}')
    if errs:
        raise RuntimeError("\n".join(errs[:30]))
    ub, ub1 = dict(units[0]), dict(units[1])
    shared = ['qpre0', 'qpre', 'qfin', 'asig'] + [f'q{it}' for it in range(10)] + [f'a{t}' for t in range(12)]
    for k in shared:
        merge_min([ub[k], ub1[k]])
    ub.update(dict(opb))
    out = [x.text() for x in pro]
    tramp = []
    cnt = [0]
    nst = [0]

    def stamp(real=False, fine=False):
        if STAMPS and (fine == FINE or real):
            out.extend(["s_memrealtime s[4:5]" if (real or ALLREAL) else "s_memtime s[4:5]", "s_waitcnt lgkmcnt(0)", f"s_mov_b32 s{S_ST+nst[0]}, s4"])
            nst[0] += 1

    def flush_stamps(slot_expr):
        if STAMPS:
            out.extend([f"s_lshl_b32 s4, s2, 2", f"s_add_u32 s4, s4, s{S_WAVE}", "s_lshl_b32 s4, s4, 2",
                        f"s_add_u32 s4, s4, {slot_expr}", "s_lshl_b32 s4, s4, 6",
                        f"s_add_u32 s4, s4, s6", "s_addc_u32 s5, s7, 0",
                        f"s_add_u32 s4, s4, {ws['dbg_off']}", "s_addc_u32 s5, s5, 0",
                        "v_mov_b32 v1, 0"])
            for k in range(nst[0]):
                out.extend([f"v_mov_b32 v2, s{S_ST+k}", f"global_store_dword v1, v2, s[4:5] offset:{4*k}"])
            out.extend(["v_mov_b32 v2, s101", f"global_store_dword v1, v2, s[4:5] offset:{4*15}"])
            nst[0] = 0

    if STAMPS:
        out[3:3] = ["s_memrealtime s[4:5]" if ALLREAL else "s_memtime s[4:5]", "s_waitcnt lgkmcnt(0)", "s_mov_b32 s101, s4"]

    def emit(block, adv=None):
        k = cnt[0]
        cnt[0] += 1
        for x in block:
            t = x.text()
            if '@TRAMP' in t:
                par = t.split('@TRAMP')[1][0]
                kk = cnt[0]
                cnt[0] += 1
                out.append(t.replace(f'@TRAMP{par}@', f'L_tr{kk}'))
                out.append(f'L_back{kk}:')
                tramp.extend([f'L_tr{kk}:', f's_call_b64 s[{S_RET}:{S_RET+1}], L_slow{par}', f's_branch L_back{kk}'])
            elif '@L1@' in t:
                out.append(t.replace('@L1@', f'L_sig{k}'))
            elif '@OADV' in t or '@WADV' in t:
                key = t[t.index('@'):]
                if adv and key in adv:
                    out.append(t.replace(key, adv[key]))
                else:
                    out.append(t.replace(key, str(x.extra)))
            else:
                out.append(t)

    def loop(label, names_list, top=None, adv=None):
        body = [sum((ub[n] for n in names), []) for names in names_list]
        merged = merge_min(body)
        out.append(f"s_mov_b32 s{S_LOOP}, {len(names_list)}")
        out.append(".p2align 3")
        out.append(f"{label}:")
        if top:
            out.extend(top)
        emit(merged, adv)
        out.append(f"s_sub_u32 s{S_LOOP}, s{S_LOOP}, 1")
        out.append(f"s_cmp_lg_u32 s{S_LOOP}, 0")
        out.append(f"s_cbranch_scc1 {label}")

    out.append(f"L_{name}_unit:")
    stamp()
    emit(ub['qpre0'])
    out.append(f"s_cmp_eq_u32 s{S_UNIT}, 0")
    out.append(f"s_cbranch_scc1 L_{name}_nodrain")
    emit(ub1['qdrain'])
    out.append(f"L_{name}_nodrain:")
    emit(ub['qpre'])
    stamp()
    for it in range(10):
        stamp(fine=True)
        emit(ub[f'q{it}'])
    stamp(fine=True)
    stamp()
    emit(ub['qfin'])
    stamp()
    emit(ub['a0'])
    stamp()
    emit(ub['a1'])
    emit(ub['asig'])
    stamp()
    loop(f"L_{name}_a", [[f'a{t}', f'a{t+1}'] for t in range(2, 12, 2)])
    stamp()
    nsave = nst[0]
    out.append(f"s_cmp_eq_u32 s{S_UNIT}, {NUNITS-1}")
    out.append(f"s_cbranch_scc1 L_{name}_tail1")
    for t in (12, 13, 14, 15):
        emit(ub[f'a{t}'])
    emit(ub['apost'])
    stamp()
    emit(ub['lred'])
    stamp()
    stamp(True)
    flush_stamps("0")
    out.append(f"s_add_u32 s{S_UNIT}, s{S_UNIT}, 1")
    out.append(f"s_branch L_{name}_unit")
    out.append(f"L_{name}_tail1:")
    nst[0] = nsave
    for k in ('t1issue', 'a12', 'a13', 't1check', 'a14', 'a15', 'apost'):
        emit(ub1[k])
    stamp()
    emit(ub1['lred'])
    stamp()
    stamp(True)
    flush_stamps("1")
    stamp()
    stamp(True)
    emit(ub['oppro'])
    stamp()
    for nme, _ in opb:
        if nme in ('oppro', 'opepi'):
            continue
        if nme in ('op16', 'op24'):
            stamp()
        if nme in [f'op{x}' for x in range(0, 22, 2)]:
            stamp(fine=True)
        emit(ub[nme])
    stamp()
    emit(ub['opepi'])
    if STAMPS:
        out.append("s_waitcnt vmcnt(0)")
    stamp()
    stamp(True)
    flush_stamps("2")
    out.append(f"L_{name}_done:")
    out.append("s_endpgm")
    out += tramp
    for par in range(2):
        out += [x.text() for x in slow_path(par)]
    return out
```

```python
import sys, importlib
import kf, gen
def make(out, mod='kf', **kw):
    m = importlib.import_module(mod)
    importlib.reload(m)
    for k, v in kw.items():
        setattr(m, k, v)
    gen.kf = m
    gen.main(out, False)
    print(out)
if __name__ == "__main__":
    make('oa.s')
    make('ob.s', HAND=' nt', WO_KS=None)
    make('oc.s', HAND=' nt', STP=' sc1 nt', WO_KS=None)
    make('od.s', STP=' sc1 nt')
    make('oe.s', WARM=False)
    make('of.s', OP_LEAD=12, POLL_P=18)
```

```python
import math
import struct
from asmlib import *

SLOT = 24576
NSLOT = 6
RING = SLOT * NSLOT
SPARE = RING
LDS_BYTES = 163840
NUNITS = 2

sX, sK, sV, sW, sO = 8, 12, 16, 20, 24
S_WAVE, S_J, S_R = 28, 29, 30
S_WR, S_RD = 31, 32
S_KOFF, S_VOFF, S_WOFF, S_OADV = 33, 34, 35, 36
S_CKV, S_CW, S_OT = 37, 38, 39
S_T0, S_T1, S_T2, S_T3 = 40, 41, 42, 43
S_LOOP, S_UNIT = 44, 45
S_SCALE = 46
S_OOFF = 47
S_WBASE = 48
S_RET = 50
S_DMIN = 52
S_FORCED = 53
S_XBASE, S_XOFF, S_CX, S_WREL0, S_XREL0 = 49, 54, 55, 87, 3
S_QUAD, S_ESND, S_ERCV, S_TWO = 56, 57, 58, 59
sWo, sC, sD = 60, 68, 72
S_FOWN, S_FPART, S_PQ, S_PBASE = 64, 65, 66, 67
S_SPARE = 76
S_GRP = 77
S_U0, S_U1, S_U2, S_U3 = 78, 79, 80, 81
S_PSRC, S_PADV, S_COFF = 82, 83, 84
S_C5 = 85
sP, sE = 8, 20
S_BLKC = 86
S_WPF, S_WPB = 86, 59
S_PFS, S_PFQ, S_PFB = 35, 54, 48
S_ST = 88


def srd(b): return f"s[{b}:{b+3}]"
def vq(b): return f"v[{b}:{b+3}]"
def aq(b): return f"a[{b}:{b+3}]"


def Qf(ks, i): return 4 * (5 * ks + i)
def Sr(st, i): return 120 + 20 * st + 4 * i
def Pr(par, i): return 160 + 20 * par + 4 * i
def NM(i): return 200 + 4 * i


L0, TS0, E0 = 220, 225, 230
KA, VA, CHK = 238, 240, 244
PAT_KV, PAT_W, PAT_X = 245, 248, 251
LP_K, LP_V, LP_W, LP_X = 252, 253, 254, 255
WA, XA = 240, 244
RL = L0
Q_OA2, Q_T, Q_D, TCH, SA = 225, 226, 234, 238, 239
OPV = [248, 249, 250, 251, 254]
def ACC(n, i): return 4 * (5 * n + i)
def acc_reg(n, i): return vq(ACC(n, i)) if n < 11 else aq(60 + 4 * i)
def Oa(n, i): return 4 * (5 * n + i)
def FR(b): return 240 + 4 * b
def XF(s, i): return 20 * (s & 1) + 4 * i
WOF = 40
UNIT_ITEMS = 62
NQI = 30
OP0 = UNIT_ITEMS * NUNITS


MF = "v_mfma_f32_16x16x32_bf16"
KV_POL = " nt"
W_POL = ""
X_POL = ""
WO_UNIT = 0
WARM1 = True
ROT = True
WO_EV = (4, 6, 8, 10, 12, 14)
WO_WARM = True
CODE_WARM = True
FAKE_W = FAKE_X = False
QPF, QPF0, QPFD = True, 3, 4
OPF, OPFD = False, 5
ONLY = 0
DELAY = 0
DELAY_MASK = 1
NOPOLL = False
WO_KS = 19
KV_TOUCH = 0
ROT_OP = True
FAKE_OP = False
ALLREAL = False
VM_Q, VM_A, VM_OP = 3, 8, 1
A_DMA_PRIO = False
FINE = False
ASIG_BEFORE = 'a2'
STP = " sc1"
HAND = " sc1"
STAMPS = False
WARM = True
BAR_LEAD = 12


def ring_adv(s, tmp):
    return [I(f"s_add_u32 s{s}, s{s}, {SLOT}"),
            I(f"s_sub_u32 s{tmp}, s{s}, {RING}"),
            I(f"s_min_u32 s{s}, s{s}, s{tmp}")]


def item_kind(idx):
    if idx < NQI:
        it, k = divmod(idx, 3)
        return [('W', 2 * it), ('X', it), ('W', 2 * it + 1)][k]
    a = idx - NQI
    if a == 0:
        return ('K', 0)
    if a == 31:
        return ('V', 15)
    return ('K', (a + 1) // 2) if a % 2 == 1 else ('V', a // 2 - 1)


NK = 96
PITEM = 20480


def op_addrs():
    addr, when = {}, {}
    live = []
    for it in range(6):
        a = ((OP0 + it) % NSLOT) * SLOT
        addr[it] = a
        when[it] = None if it < 5 else 0
        live.append((a, a + PITEM, it // 2 + 1))
    for it in range(6, NK):
        best = None
        for j in range(8):
            a = j * PITEM
            t = max([f for (s0, e0, f) in live if s0 < a + PITEM and a < e0] + [0])
            if best is None or t < best[0]:
                best = (t, a)
        t, a = best
        t = max(t, when[it - 1] or 0)
        addr[it], when[it] = a, t
        live = [x for x in live if not (x[0] < a + PITEM and a < x[1])]
        live.append((a, a + PITEM, it // 2 + 1))
        assert t <= it // 2 - 1, (it, t)
    return addr, when


def dma_op_item(it, pv):
    gid = OP0 + it
    a = op_addrs()[0][it]
    out = [I(f"s_add_u32 m0, s{S_C5}, {a}")]
    for k in range(4):
        out.append(I(f"buffer_load_dwordx4 v{pv[k]}, {srd(sP)}, s{S_PSRC} offen offset:{1024*k}{HAND} lds", tag=gid))
    out.append(I(f"s_add_u32 m0, s{S_C5}, {a + 4096}"))
    out.append(I(f"buffer_load_dwordx4 v{pv[4]}, {srd(sP)}, s{S_PSRC} offen{HAND} lds", tag=gid))
    if it % 12 != 11:
        out.append(I(f"s_add_u32 s{S_PSRC}, s{S_PSRC}, s{S_PADV}"))
    else:
        rnd = (it + 1) // 48
        out += [I(f"s_add_u32 s{S_PQ}, s{S_PQ}, 1"), I(f"s_and_b32 s{S_PQ}, s{S_PQ}, 3"),
                I(f"s_mul_i32 s{S_T0}, s{S_PQ}, 24"), I(f"s_add_u32 s{S_T0}, s{S_T0}, {12*rnd}"),
                I(f"s_mul_i32 s{S_T0}, s{S_T0}, s{S_PADV}"), I(f"s_add_u32 s{S_PSRC}, s{S_PBASE}, s{S_T0}")]
    return out


def dma_item(gid):
    if gid >= OP0:
        return dma_op_item(gid - OP0, OPV)
    u, idx = divmod(gid, UNIT_ITEMS)
    kind, num = item_kind(idx)
    out = []
    if idx == 0:
        out += [I(f"s_add_u32 s{S_WBASE}, s{S_WBASE}, 768"),
                I(f"s_mov_b32 s{S_WOFF}, s{S_WREL0}"),
                I(f"s_mov_b32 s{S_XOFF}, s{S_XREL0}")]
    if kind in 'KV':
        off = S_KOFF if kind == 'K' else S_VOFF
        d = srd(sK if kind == 'K' else sV)
        out.append(I(f"s_add_u32 m0, s{S_WR}, s{S_CKV}"))
        for n in range(3):
            out.append(I(f"buffer_load_dwordx4 v{PAT_KV+n}, {d}, s{off} offen offset:{1024*n}{KV_POL} lds", tag=gid))
        out.append(I(f"s_add_u32 m0, m0, 3072"))
        out.append(I(f"s_add_u32 s{S_T0}, s{off}, 3072"))
        for n in range(3):
            out.append(I(f"buffer_load_dwordx4 v{PAT_KV+n}, {d}, s{S_T0} offen offset:{1024*n}{KV_POL} lds", tag=gid))
        adv = 12288 + (196608 if num == 15 else 0)
        out.append(I(f"s_add_u32 s{off}, s{off}, {adv}"))
    elif kind == 'W':
        out.append(I(f"s_add_u32 m0, s{S_WR}, s{S_CW}"))
        out.append(I(f"s_add_u32 s{S_T0}, s{S_WOFF}, s{S_WBASE}"))
        for n in range(3):
            out.append(I(f"buffer_load_dwordx4 v{PAT_W+n}, {srd(sW)}, s{S_T0} offen offset:{1024*n}{W_POL} lds", tag=gid))
        out.append(I(f"s_add_u32 m0, m0, {16*384}"))
        out.append(I(f"s_add_u32 s{S_T0}, s{S_T0}, {16*12288}"))
        for n in range(3):
            out.append(I(f"buffer_load_dwordx4 v{PAT_W+n}, {srd(sW)}, s{S_T0} offen offset:{1024*n}{W_POL} lds", tag=gid))
        out.append(I(f"s_add_u32 s{S_WOFF}, s{S_WOFF}, {0 if FAKE_W else 32*12288}"))
        out.append(I(f"s_sub_u32 s{S_T0}, s{S_WOFF}, {640*12288}"))
        out.append(I(f"s_min_u32 s{S_WOFF}, s{S_WOFF}, s{S_T0}"))
    else:
        out.append(I(f"s_add_u32 m0, s{S_WR}, s{S_CX}"))
        out.append(I(f"s_add_u32 s{S_T0}, s{S_XOFF}, s{S_XBASE}"))
        for p in range(5):
            if p == 4:
                out.append(I(f"s_add_u32 m0, m0, 4096"))
                out.append(I(f"s_add_u32 s{S_T0}, s{S_T0}, {10240+3072}"))
                out.append(I(f"buffer_load_dwordx4 v{PAT_X}, {srd(sX)}, s{S_T0} offen{X_POL} lds", tag=gid))
            else:
                if p:
                    out.append(I(f"s_add_u32 s{S_T0}, s{S_T0}, {10240-1024}"))
                out.append(I(f"buffer_load_dwordx4 v{PAT_X}, {srd(sX)}, s{S_T0} offen offset:{1024*p}{X_POL} lds", tag=gid))
        out.append(I(f"s_add_u32 s{S_XOFF}, s{S_XOFF}, {0 if FAKE_X else 128}"))
        out.append(I(f"s_sub_u32 s{S_T0}, s{S_XOFF}, 1280"))
        out.append(I(f"s_min_u32 s{S_XOFF}, s{S_XOFF}, s{S_T0}"))
    out += ring_adv(S_WR, S_T1)
    return out


def drain_group(u, m, i, T, D, oa, oa2, packed, ntemp=8):
    o = []
    rl = RL + i
    for half in range(2):
        t = T + (4 * half if ntemp == 8 else 0)
        for k in range(4):
            o.append(I(f"v_accvgpr_read_b32 v{t+k}, a{Oa(2*m+half,i)+k}"))
        if packed:
            sel = "op_sel:[0,1] op_sel_hi:[1,1]" if rl & 1 else "op_sel_hi:[1,0]"
            rp = rl & ~1
            for k in (0, 2):
                o.append(I(f"v_pk_mul_f32 v[{t+k}:{t+k+1}], v[{t+k}:{t+k+1}], v[{rp}:{rp+1}] {sel}"))
        else:
            for k in range(4):
                o.append(I(f"v_mul_f32 v{t+k}, v{rl}, v{t+k}"))
        for k in range(2):
            o.append(I(f"v_cvt_pk_bf16_f32 v{D+2*half+k}, v{t+2*k}, v{t+2*k+1}"))
    if i == 0:
        o.append(I(f"s_add_u32 s{S_OT}, s{S_OOFF}, {m*10240}"))
    if i < 4:
        o.append(I(f"buffer_store_dwordx4 {vq(D)}, v{oa}, {srd(sO)}, s{S_OT} offen offset:{1024*i}{STP}", tag=('st', u)))
    else:
        o.append(I(f"buffer_store_dwordx4 {vq(D)}, v{oa2}, {srd(sO)}, s{S_OT} offen{STP}", tag=('st', u)))
    return o


def l_reduce():
    fin = []
    for i in range(5):
        fin.append(I(f"v_mov_b32 v{E0+i}, v{L0+i}"))
    for i in range(5):
        fin.append(I(f"v_permlane32_swap_b32 v{L0+i}, v{E0+i}"))
    for i in range(5):
        fin.append(I(f"v_add_f32 v{L0+i}, v{L0+i}, v{E0+i}"))
    for i in range(5):
        fin.append(I(f"v_mov_b32 v{E0+i}, v{L0+i}"))
    for i in range(5):
        fin.append(I(f"v_permlane16_swap_b32 v{L0+i}, v{E0+i}"))
    for i in range(5):
        fin.append(I(f"v_add_f32 v{L0+i}, v{L0+i}, v{E0+i}"))
    for i in range(5):
        fin.append(I(f"v_rcp_f32 v{RL+i}, v{L0+i}"))
    return fin


def straight(instrs):
    out = []
    for ins in instrs:
        if ins.kind == 'dma' and out and 'm0' in out[-1].txt.split(',')[0]:
            out.append(I("s_nop 0"))
        out.append(ins)
    return out


def open_item(kind):
    if kind == 'K':
        o = [I(f"v_add_u32 v{KA}, s{S_RD}, v{LP_K}"), I(f"v_xor_b32 v{KA+1}, 64, v{KA}")]
    elif kind in 'VW':
        lp = LP_V if kind == 'V' else LP_W
        o = [I(f"v_add_u32 v{VA}, s{S_RD}, v{lp}"), I(f"v_xor_b32 v{VA+1}, 32, v{VA}"),
             I(f"v_xor_b32 v{VA+2}, 64, v{VA}"), I(f"v_xor_b32 v{VA+3}, 64, v{VA+1}")]
    else:
        o = [I(f"v_add_u32 v{XA}, s{S_RD}, v{LP_X}")]
    return o + ring_adv(S_RD, S_T2)


def k_read(f, buf, tag):
    st, ks = divmod(f, 6)
    return [I(f"ds_read_b128 {aq(buf)}, v{KA + (ks & 1)} offset:{st*6144 + (ks >> 1)*128}", tag=tag)]


def v_read(n, buf, tag, half_off=6144):
    return [I(f"ds_read_b64_tr_b16 a[{buf+2*h}:{buf+2*h+1}], v{VA + (n & 3)} offset:{(n >> 2)*128 + h*half_off}", tag=tag)
            for h in range(2)]


def sm_ops(par, st, i, tbase):
    e = [E0 + (tbase + r) % 8 for r in range(4)]
    s = Sr(st, i)
    p = Pr(par, i) + 2 * st
    ts = TS0 + i
    o = [I(f"v_exp_f32 v{e[r]}, v{s+r}") for r in range(4)]
    o.append(I(f"v_cvt_pk_bf16_f32 v{p}, v{e[0]}, v{e[1]}"))
    o.append(I(f"v_add_f32 v{ts}, v{e[0]}, v{e[1]}"))
    o.append(I(f"v_cvt_pk_bf16_f32 v{p+1}, v{e[2]}, v{e[3]}"))
    o.append(I(f"v_add_f32 v{ts}, v{ts}, v{e[2]}"))
    o.append(I(f"v_add_f32 v{ts}, v{ts}, v{e[3]}"))
    return o


def qk_mfmas(first_zero=False):
    out = []
    for st in range(2):
        for ks in range(6):
            for i in range(5):
                f = st * 6 + ks
                c = (("0" if first_zero else vq(NM(i))) if ks == 0 else vq(Sr(st, i)))
                out.append((f, f"{MF} {vq(Sr(st,i))}, @FR@, {vq(Qf(ks,i))}, {c}"))
    return out


def pv_mfmas(par, zero=False):
    out = []
    for n in range(12):
        for i in range(5):
            c = "0" if zero else aq(Oa(n, i))
            out.append((n, f"{MF} {aq(Oa(n,i))}, @FR@, {vq(Pr(par,i))}, {c}"))
    return out


def flatten(mf, gaps, lo, hi):
    out = []
    for g in range(lo, hi):
        out.append(mf[g])
        out.extend(gaps[g])
    return out


def lane_id(v):
    return [I(f"v_mbcnt_lo_u32_b32 v{v}, -1, 0"), I(f"v_mbcnt_hi_u32_b32 v{v}, -1, v{v}")]


def q_phase(u):
    g0 = UNIT_ITEMS * u
    pu = u - 1
    blocks = []
    pre = []
    pre += lane_id(0)
    pre += [I(x) for x in (
        "v_lshlrev_b32 v1, 7, v0",
        f"v_cmp_gt_u32 vcc, {120 // len(WO_EV)}, v0",
        "v_mov_b32 v2, 0x7ffffff0",
        "s_nop 0",
        f"v_cndmask_b32 v{TCH}, v2, v1, vcc",
        f"v_lshlrev_b32 v{SA}, 4, v0",
        f"v_add_u32 v{Q_OA2}, 4096, v{SA}")]
    blocks.append(('qpre0', pre))
    pre = []
    k = 0
    for m in range(2):
        for i in range(5):
            pre += drain_group(pu, m, i, 8 + 8 * (k % 4), 48 + 4 * (k % 4), SA, Q_OA2, True)
            k += 1
    blocks.append(('qdrain', pre))
    pre = []
    pre += [bothwait([g0, g0 + 1]), I("s_barrier")]
    pre += open_item('W') + open_item('X')
    mf = []
    for s_ in range(20):
        for n in range(12):
            for i in range(5):
                F = s_ * 12 + n
                c = "0" if s_ == 0 else acc_reg(n, i)
                mf.append(I(f"{MF} {acc_reg(n,i)}, {aq(FR(F % 4))}, {aq(XF(s_, i))}, {c}"))
    fixed = {}
    qds, qaddr, qdma, qwo, qx, qdr = [], [], [], [], [], []
    bar_gap = {s_: 60 * s_ - BAR_LEAD - 1 for s_ in range(1, 20)}

    def wreads(F):
        return v_read(F % 12, FR(F % 4), ('w', u, F), half_off=1536)

    def xreads(s_):
        return [I(f"ds_read_b128 {aq(XF(s_, i))}, v{XA} offset:{2048*i}", tag=('x', u, s_)) for i in range(5)]

    pre += wreads(0) + xreads(0) + wreads(1) + wreads(2)
    pre += straight(dma_item(g0 + 5))
    pre.append(dswait([('w', u, 0), ('x', u, 0)]))
    last_rd = {}
    for m in range(2, 6):
        for i in range(5):
            for o in drain_group(pu, m, i, Q_T, Q_D, SA, Q_OA2, False):
                t = Task(o, earliest=0)
                qdr.append(t)
                if o.txt.startswith('v_accvgpr_read'):
                    last_rd[m] = t
    qdr.append(Task(I(f"s_add_u32 s{S_OOFF}, s{S_OOFF}, s{S_OADV}"), earliest=0))
    last_read = None
    must_before = []
    wo_done = []
    for s_ in range(20):
        first = True
        addr_task = None
        if s_ >= 1:
            need = [g0 + 3 * (s_ // 2), g0 + 3 * (s_ // 2) + 1] if s_ % 2 == 0 else [g0 + 3 * (s_ // 2) + 2]
            fixed.setdefault(bar_gap[s_], []).extend([bothwait(need), I("s_barrier")])
            must_before.append((last_read, bar_gap[s_]))
            ops = open_item('W')
            if s_ % 2 == 0:
                ops += open_item('X')
            for k, o in enumerate(ops):
                t = Task(o, earliest=0, after=last_read if k == 0 else None, gapdist=1)
                qaddr.append(t)
                if o.kind == 'valu':
                    addr_task = t
        for n in range(12):
            F = s_ * 12 + n
            if s_ == 0 and n < 3:
                continue
            e = 5 * (F - 4) + 4
            if s_ >= 1:
                e = max(e, bar_gap[s_])
            rs = wreads(F)
            if n == 0 and s_ % 2 == 0:
                rs = rs + xreads(s_)
            if n == 6 and s_ % 2 == 0:
                rs = rs + [I(f"v_xor_b32 v{XA}, 64, v{XA}")] + xreads(s_ + 1)
            for r in rs:
                t = Task(r, earliest=e, after=addr_task if first else None, gapdist=1)
                first = False
                qds.append(t)
                last_read = t
        for n in range(12):
            F = s_ * 12 + n
            if F == 0:
                continue
            tags = [('w', u, F)] + ([('x', u, s_)] if n == 0 else [])
            fixed.setdefault(5 * F - 1, []).append(dswait(tags))
        if s_ >= 1:
            it = s_ // 2
            items = [3 * it + 5] if s_ % 2 == 0 else [3 * it + 6, 3 * it + 7]
            for x in items:
                for o in dma_item(g0 + x):
                    qdma.append(Task(o, earliest=bar_gap[s_] + 1))
        if s_ in WO_EV and WO_WARM:
            for o in (I(f"s_mov_b32 m0, s{S_SPARE}"),
                      I(f"buffer_load_dword v{TCH}, {srd(sWo)}, s{S_TWO} offen lds", tag=('two', u)),
                      I(f"s_add_u32 s{S_TWO}, s{S_TWO}, {15360 // len(WO_EV)}")):
                qdma.append(Task(o, earliest=60 * s_))
    gaps, left = schedule(mf, [qds, qaddr, qdma, qwo, qdr], fixed, tail_ok=False, greedy_scalar=lambda g: True, vm_space=VM_Q)
    for tk, g in must_before:
        assert tk.gap < g, (tk.gap, g)
    q_phase.info = dict(drain_end=qdr[-1].gap)
    blocks.append(('qpre', pre))
    for it in range(10):
        blocks.append((f'q{it}', flatten(mf, gaps, 120 * it, 120 * it + 120)))
    fin = [I("s_nop 7")]
    for m in range(6):
        for i in range(5):
            a0, a1, d = ACC(2 * m, i), ACC(2 * m + 1, i), Qf(m, i)
            if m == 5:
                a1 = Q_T + 4 * (i & 1)
                for k in range(4):
                    fin.append(I(f"v_accvgpr_read_b32 v{a1+k}, a{60+4*i+k}"))
            for a in (a0, a0 + 2, a1, a1 + 2):
                fin.append(I(f"v_pk_mul_f32 v[{a}:{a+1}], v[{a}:{a+1}], s[{S_SCALE}:{S_SCALE+1}] op_sel_hi:[1,0]"))
            fin.append(I(f"v_cvt_pk_bf16_f32 v{d}, v{a0}, v{a0+1}"))
            fin.append(I(f"v_cvt_pk_bf16_f32 v{d+1}, v{a0+2}, v{a0+3}"))
            fin.append(I(f"v_cvt_pk_bf16_f32 v{d+2}, v{a1}, v{a1+1}"))
            fin.append(I(f"v_cvt_pk_bf16_f32 v{d+3}, v{a1+2}, v{a1+3}"))
            prev = (m, i - 1) if i > 0 else ((m - 1, 4) if m > 0 else None)
            if prev:
                pd = Qf(*prev)
                fin.append(I(f"v_permlane16_swap_b32 v{pd}, v{pd+2}"))
                fin.append(I(f"v_permlane16_swap_b32 v{pd+1}, v{pd+3}"))
    pd = Qf(5, 4)
    fin.append(I("s_nop 1"))
    fin.append(I(f"v_permlane16_swap_b32 v{pd}, v{pd+2}"))
    fin.append(I(f"v_permlane16_swap_b32 v{pd+1}, v{pd+3}"))
    blocks.append(('qfin', fin))
    return blocks


def wb_code(label, tag):
    if STP:
        return []
    return [I(f"s_cmp_lg_u32 s{S_WAVE}, 0"), I(f"s_cbranch_scc1 {label}"),
            I("buffer_wbl2 sc1", kind='xsalu'),
            I(f"{label}:"), I("; marker", kind='mark', tag=tag)]


def sig_code(tv, amount_sgpr_or_imm, off, label, wtag=None):
    return [I(f"s_cmp_lg_u32 s{S_WAVE}, 0"), I(f"s_cbranch_scc1 {label}"),
            I(f"v_mov_b32 v{tv}, {amount_sgpr_or_imm}"), I(f"v_mov_b32 v{tv+1}, 0"),
            I("afterwait", kind='afterwait', tag=wtag),
            I("s_mov_b64 exec, 1"),
            I(f"buffer_atomic_add v{tv}, v{tv+1}, {srd(sD)}, s{off} offen sc1", kind='xvmem'),
            I("s_mov_b64 exec, -1"),
            I(f"{label}:")]


def a_phase(u):
    g0 = UNIT_ITEMS * u + NQI
    nxt = UNIT_ITEMS * (u + 1)
    blocks = []
    pre = [bothwait([g0, ('st', u - 1)]), I("s_barrier")]
    pre += wb_code("@L1@", ('wb', u))
    pre += open_item('K')
    for f in range(3):
        pre += k_read(f, FR(f), ('k', u, 0, f))
    for i in range(5):
        pre.append(I(f"v_mov_b32 v{L0+i}, 0"))
        for r in range(4):
            pre.append(I(f"v_mov_b32 v{NM(i)+r}, 0"))
    pre.append(dswait([('k', u, 0, 0)]))
    mf0 = [I(t.replace('@FR@', aq(FR(f % 4)))) for f, t in qk_mfmas(first_zero=True)]
    qds, qdma, fixed = [], [], {}
    for f in range(3, 12):
        for r in k_read(f, FR(f % 4), ('k', u, 0, f)):
            qds.append(Task(r, earliest=5 * (f - 4) + 4))
    for f in range(1, 12):
        fixed.setdefault(5 * f - 1, []).append(dswait([('k', u, 0, f)]))
    for x in (5,):
        for o in dma_item(g0 + x):
            qdma.append(Task(o, earliest=0))
    gaps, left = schedule(mf0, [qds, qdma], fixed, tail_ok=False, vm_space=6)
    blk = pre + flatten(mf0, gaps, 0, 60)
    blk += [I(f"s_mov_b32 s{sO+2}, {192*10240}"), I(f"s_mov_b32 s{S_OADV}, {12*10240}"),
            I(f"s_or_b32 s{S_TWO}, s{S_TWO}, 0x40000000")]
    blk += [I(f"s_mov_b32 s{S_DMIN}, 0xf149f2ca"), I(f"s_mov_b32 s{S_FORCED}, 1"),
            I(f"s_call_b64 s[{S_RET}:{S_RET+1}], L_slowF"),
            I(f"s_mov_b32 s{S_DMIN}, 0"), I(f"s_mov_b32 s{S_FORCED}, 0")]
    blk += [bothwait([g0 + 1]), I("s_barrier")]
    blk += open_item('K')
    for f in range(3):
        blk += k_read(f, FR(f), ('k', u, 1, f))
    blk.append(dswait([('k', u, 1, 0)]))
    blocks.append(('a0', blk))

    halves = []
    for t in range(1, 16):
        halves.append(('K', t))
        halves.append(('V', t - 1))
    halves.append(('V', 15))
    mf, fixed = [], {}
    qds, qaddr, qdma, qsm, qexp = [], [], [], [], []
    grp_last = []
    last_read = {'K': None, 'V': None}
    must_before, deadlines = [], []
    prev_branch = None
    for h, (kind, t) in enumerate(halves):
        base = 60 * h
        seq = qk_mfmas() if kind == 'K' else pv_mfmas(t & 1, zero=(t == 0))
        for f, txt in seq:
            F = 12 * h + f
            mf.append(I(txt.replace('@FR@', aq(FR(F % 4)))))
        bar = base - BAR_LEAD
        addr_task = None
        if h >= 1:
            fixed.setdefault(bar, []).extend([bothwait([g0 + h + 1]), I("s_barrier")])
            must_before.append((qds[-1], bar))
            for k, o in enumerate(open_item(kind)):
                tk = Task(o, earliest=0, after=last_read[kind] if k == 0 else None, gapdist=1)
                qaddr.append(tk)
                if o.kind == 'valu':
                    addr_task = tk
        first = True
        for f in range(12):
            F = 12 * h + f
            if h == 0 and f < 3:
                continue
            tag = (kind.lower(), u, t, f)
            rs = k_read(f, FR(F % 4), tag) if kind == 'K' else v_read(f, FR(F % 4), tag)
            e = 5 * (F - 4) + 4
            if h >= 1:
                e = max(e, bar)
            for r in rs:
                tk = Task(r, earliest=e, after=addr_task if first else None, gapdist=1)
                first = False
                qds.append(tk)
                last_read[kind] = tk
        for f in range(12):
            F = 12 * h + f
            if F == 0:
                continue
            fixed.setdefault(5 * F - 1, []).append(dswait([(kind.lower(), u, t, f)]))
        x = h + 6
        gid = g0 + x if x < 32 else nxt + (x - 32)
        for o in dma_item(gid):
            qdma.append(Task(o, earliest=max(0, bar + 1)))
        if kind == 'K':
            tb = 0
            for st in range(2):
                for i in range(5):
                    ops = sm_ops(t & 1, st, i, tb)
                    tb += 4
                    ex = []
                    for k, o in enumerate(ops[:4]):
                        aft = None
                        if k == 0:
                            aft = prev_branch if i == 0 else (grp_last[-2] if i >= 2 else None)
                        tk = Task(o, earliest=base + 30, mf_after=base + 30 * st + 25 + i, after=aft, gapdist=(0 if i == 0 else 1))
                        qexp.append(tk)
                        ex.append(tk)
                    for o in ops[4:]:
                        dep = max(k for k in range(4) if f"v{E0 + (tb - 4 + k) % 8}" in [x.strip() for x in o.txt.split(None, 1)[1].split(',')[1:]])
                        tk = Task(o, earliest=base, after=ex[dep], gapdist=1)
                        qsm.append(tk)
                    grp_last.append(tk)
                qsm.append(Task(I(f"v_max3_f32 v{CHK}, v{TS0}, v{TS0+1}, v{TS0+2}"), earliest=base))
                qsm.append(Task(I(f"v_max3_f32 v{CHK}, v{CHK}, v{TS0+3}, v{TS0+4}"), earliest=base))
                chk = Task(I(f"v_cmp_ngt_f32 vcc, 2.0, v{CHK}"), earliest=base)
                qsm.append(chk)
                br = I(f"s_cbranch_vccnz @TRAMP{'AB'[st]}{t & 1}@")
                if st == 0:
                    prev_branch = Task(br, earliest=base + 68, after=chk, gapdist=1)
                    qsm.append(prev_branch)
                    deadlines.append((prev_branch, base + 119))
                    e_add = base
                else:
                    bg = base + 149 if t < 15 else base + 119
                    fixed.setdefault(bg, []).append(br)
                    deadlines.append((chk, bg - 1))
                    prev_branch = None
                    e_add = bg + 1
                for i in range(5):
                    qsm.append(Task(I(f"v_add_f32 v{L0+i}, v{L0+i}, v{TS0+i}"), earliest=e_add))
    gaps, left = schedule(mf, [qds, qaddr, qdma, qexp, qsm], fixed, tail_ok=False,
                          greedy_scalar=lambda g: g >= 1800, vm_space=lambda g: (VM_A if g < 1790 else 3),
                          capf=lambda g: (3 if 1710 <= g < 1800 else 2))
    for tk, g in must_before:
        assert tk.gap < g, (tk.gap, g)
    for tk, g in deadlines:
        assert tk.gap <= g, f"softmax check too late: {tk.gap} vs {g}"
    blocks.append(('a1h', flatten(mf, gaps, 0, 30)))
    for t in range(1, 15):
        blocks.append((f'a{t}', flatten(mf, gaps, 120 * (t - 1) + 30, 120 * t + 30)))
    blocks.append(('a15', flatten(mf, gaps, 1710, 1800)))
    blocks.append(('apost', flatten(mf, gaps, 1800, 1860)))

    blocks.append(('lred', l_reduce()))
    sg = sig_code(E0, f"s{S_UNIT}", S_GRP, "@L1@", ('wb', u))
    k = [b[0] for b in blocks].index(ASIG_BEFORE)
    blocks[k:k] = [('asig', sg)]
    return blocks


S_RET2 = 80


def slow_paths():
    o = [I("L_slowC:"), I("s_nop 7")]
    for i in range(5):
        a, b = Sr(0, i), Sr(1, i)
        e0, e1 = E0, E0 + 1
        o += [I(f"v_max3_f32 v{e0}, v{a}, v{a+1}, v{a+2}"),
              I(f"v_max3_f32 v{e0}, v{e0}, v{a+3}, v{b}"),
              I(f"v_max3_f32 v{e0}, v{e0}, v{b+1}, v{b+2}"),
              I(f"v_max_f32 v{e0}, v{e0}, v{b+3}"),
              I(f"v_mov_b32 v{e1}, v{e0}"),
              I("s_nop 1"),
              I(f"v_permlane32_swap_b32 v{e0}, v{e1}"),
              I(f"v_max_f32 v{e0}, v{e0}, v{e1}"),
              I(f"v_mov_b32 v{e1}, v{e0}"),
              I("s_nop 1"),
              I(f"v_permlane16_swap_b32 v{e0}, v{e1}"),
              I(f"v_max_f32 v{e0}, v{e0}, v{e1}"),
              I(f"v_ceil_f32 v{e0}, v{e0}"),
              I(f"v_add_f32 v{e0}, 0x40e00000, v{e0}"),
              I(f"v_max_f32 v{e0}, s{S_DMIN}, v{e0}")]
        for r in range(4):
            o.append(I(f"v_sub_f32 v{NM(i)+r}, v{NM(i)+r}, v{e0}"))
            o.append(I(f"v_sub_f32 v{a+r}, v{a+r}, v{e0}"))
            o.append(I(f"v_sub_f32 v{b+r}, v{b+r}, v{e0}"))
        o += [I(f"v_cvt_i32_f32 v{e1}, v{e0}"),
              I(f"v_sub_u32 v{TS0+i}, 0, v{e1}"),
              I(f"v_ldexp_f32 v{L0+i}, v{L0+i}, v{TS0+i}")]
    o += [I(f"s_cmp_eq_u32 s{S_FORCED}, 1"), I(f"s_cbranch_scc1 L_slowC_ret")]
    k = 0
    for n in range(12):
        for i in range(5):
            for r in range(4):
                e = E0 + k % 8
                k += 1
                o += [I(f"v_accvgpr_read_b32 v{e}, a{Oa(n,i)+r}"),
                      I(f"v_ldexp_f32 v{e}, v{e}, v{TS0+i}"),
                      I(f"v_accvgpr_write_b32 a{Oa(n,i)+r}, v{e}")]
    o += [I("L_slowC_ret:"), I(f"s_setpc_b64 s[{S_RET2}:{S_RET2+1}]")]
    res = [o]

    def sm(par, st):
        out, tb = [], 0
        for i in range(5):
            out += sm_ops(par, st, i, tb)
            tb += 4
        return out

    def presc(regs_by_i):
        out = []
        for i, regs in enumerate(regs_by_i):
            for p in regs:
                out += [I(f"v_lshlrev_b32 v{E0}, 16, v{p}"), I(f"v_and_b32 v{E0+1}, 0xffff0000, v{p}"),
                        I(f"v_ldexp_f32 v{E0}, v{E0}, v{TS0+i}"), I(f"v_ldexp_f32 v{E0+1}, v{E0+1}, v{TS0+i}"),
                        I(f"v_cvt_pk_bf16_f32 v{p}, v{E0}, v{E0+1}")]
        return out

    call = I(f"s_call_b64 s[{S_RET2}:{S_RET2+1}], L_slowC")
    ret = [I("s_nop 1"), I(f"s_setpc_b64 s[{S_RET}:{S_RET+1}]")]
    for par in range(2):
        res.append([I(f"L_slowA{par}:"), call] + presc([[Pr(par ^ 1, i) + k for k in range(4)] for i in range(5)]) + sm(par, 0) + ret)
        res.append([I(f"L_slowB{par}:"), call] + presc([[Pr(par, i) + k for k in range(2)] for i in range(5)]) + sm(par, 1) + ret)
    ladd = [I(f"v_add_f32 v{L0+i}, v{L0+i}, v{TS0+i}") for i in range(5)]
    res.append([I("L_slowF:"), call] + sm(0, 0) + ladd + sm(0, 1) + ladd + ret)
    return res


def PACC(nt, i): return 4 * (5 * i + nt)
def PWF(s, nt): return 100 + 20 * (s % 2) + 4 * nt
NOB = 6
def POF(k): return 140 + 4 * (k % NOB)
P_RAO, P_RAW, VO, P_T, P_D, P_F = 164, 167, 174, 178, 186, 194
WIN = 61440
OP_CAP3 = 700
VM_OP2 = 3
OP_DRAIN_GAP = 0
OP_LEAD = 17
SIG_P = 13
POLL_P = 17


def poll_check(P, lab, d, soff, want):
    o = [I(x) for x in (
        f"s_mov_b32 s{S_T3}, 0x80000",
        f"{lab}:",
        f"v_cmp_{'gt' if want == 8 else 'ne'}_u32 vcc, {want}, v{P+1}",
        f"s_sub_u32 s{S_T3}, s{S_T3}, 1",
        f"s_cmp_eq_u32 s{S_T3}, 0",
        f"s_cbranch_scc1 {lab}_out",
        f"s_cbranch_vccz {lab}_out",
        "s_sleep 1")]
    o.append(I(f"buffer_load_dword v{P+1}, v{P}, {srd(d)}, {soff} offen sc1", kind='xvmem'))
    o += [I("s_waitcnt vmcnt(0)", kind='xsalu'), I(f"s_branch {lab}"), I(f"{lab}_out:")]
    return o


def tail1_issue(name, ws):
    e = E0
    o = [I(f"s_mov_b32 s{S_U1}, m0"), I(f"v_mov_b32 v{e}, 0"), I(f"s_mov_b32 m0, s{S_SPARE}"), I("s_nop 0"),
         I(f"buffer_load_dword v{e}, {srd(sD)}, s{S_GRP} offen sc1 lds", tag='poll0'),
         I(f"s_mov_b32 m0, s{S_U1}")]
    o += lane_id(e)
    o += [I(x) for x in (
        f"v_lshlrev_b32 v{LP_X}, 4, v{e}",
        f"s_cmp_eq_u32 s{S_J}, 0",
        f"s_cselect_b32 s{sP}, s{sO}, s{sWo}",
        f"s_cselect_b32 s{sP+1}, s{sO+1}, s{sWo+1}",
        f"s_cselect_b32 s{sP+2}, s{sO+2}, s{sWo+2}",
        f"s_cbranch_scc0 L_{name}_wpat")]
    o += [I(f"v_mov_b32 v{OPV[k]}, v{LP_X}") for k in range(4)]
    o += [I(f"v_add_u32 v{OPV[4]}, 4096, v{LP_X}"), I(f"s_branch L_{name}_wpatd"), I(f"L_{name}_wpat:")]
    for n in range(5):
        o += [I(x) for x in (
            f"v_add_u32 v{e+1}, {64*n}, v{e}",
            f"v_mul_u32_u24 v{e+2}, 205, v{e+1}",
            f"v_lshrrev_b32 v{e+2}, 12, v{e+2}",
            f"v_mul_u32_u24 v{e+3}, 20, v{e+2}",
            f"v_sub_u32 v{e+1}, v{e+1}, v{e+3}",
            f"v_lshrrev_b32 v{e+3}, 1, v{e+2}",
            f"v_and_b32 v{e+3}, 2, v{e+3}",
            f"v_xor_b32 v{e+1}, v{e+1}, v{e+3}",
            f"v_lshlrev_b32 v{e+1}, 4, v{e+1}",
            f"v_mul_u32_u24 v{e+2}, 1280, v{e+2}",
            f"v_add_u32 v{e+1}, v{e+1}, v{e+2}",
            f"v_subrev_u32 v{OPV[n]}, {1024*n if n < 4 else 0}, v{e+1}")]
    o += [I(x) for x in (
        f"L_{name}_wpatd:",
        f"s_add_u32 s{sE}, s6, {ws['e_off']}",
        f"s_addc_u32 s{sE+1}, s7, 0",
        f"s_and_b32 s{sE+1}, s{sE+1}, 0xffff",
        f"s_mov_b32 s{sE+2}, {ws['e_bytes']}")]
    return o


def tail1_check(name):
    o = [vmwait('poll0'), I(f"v_mov_b32 v{E0+2}, s{S_SPARE}"),
         I(f"ds_read_b32 v{E0+1}, v{E0+2}", tag='poll0d'), I(f"v_mov_b32 v{E0}, 0"), dswait('poll0d')]
    o += poll_check(E0, f"L_{name}_poll0", sD, f"s{S_GRP}", 8)
    return o


def op_phase(name):
    blocks = []
    u = NUNITS - 1
    addr, when = op_addrs()
    t = P_T
    pro = [I(x) for x in (
        f"v_mov_b32 v{VO}, v{LP_X}", f"v_add_u32 v{VO+1}, 4096, v{LP_X}",
        f"v_mov_b32 v{P_F}, 0")]
    pro += [I(f"buffer_load_dword v{P_F+2}, v{P_F}, {srd(sE)}, s{S_FOWN} offen sc1", tag='flag0'),
            I(f"buffer_load_dword v{P_F+3}, v{P_F}, {srd(sE)}, s{S_FPART} offen sc1", tag='flag0')]
    pro += [I(x) for x in (
        f"s_mul_i32 s{S_T3}, s{S_R}, 5120", f"v_add_u32 v{P_RAO}, s{S_T3}, v{LP_X}",
        f"v_lshrrev_b32 v{t}, 6, v{LP_X}",
        f"v_mul_u32_u24 v{t+1}, 320, v{t}",
        f"v_bfe_u32 v{t+2}, v{LP_X}, 4, 2",
        f"v_lshl_add_u32 v{t+1}, v{t+2}, 3, v{t+1}",
        f"s_mul_i32 s{S_T3}, s{S_J}, 160", f"s_add_u32 s{S_T3}, s{S_T3}, 10240",
        f"v_add_u32 v{t+1}, s{S_T3}, v{t+1}",
        f"v_bfe_u32 v{t+2}, v{t}, 2, 1",
        f"v_lshlrev_b32 v{t+2}, 5, v{t+2}",
        f"s_lshl_b32 s{S_T3}, s{S_J}, 1", f"s_sub_u32 s{S_T3}, 1, s{S_T3}",
        f"v_mul_lo_u32 v{t+2}, v{t+2}, s{S_T3}",
        f"v_add_u32 v{P_RAW}, v{t+1}, v{t+2}",
        f"v_sub_u32 v{P_RAW+3}, v{t+1}, v{t+2}")]
    P_PF = 198
    pro += [I(x) for x in (
        f"v_lshlrev_b32 v{t}, 3, v{LP_X}",
        f"v_cmp_gt_u32 vcc, {20*16}, v{LP_X}",
        f"v_mov_b32 v{t+1}, 0x7ffffff0",
        f"s_and_b32 s{S_PFQ}, s2, {3 if ROT_OP else 0}",
        f"v_cndmask_b32 v{P_PF}, v{t+1}, v{t}, vcc")]

    def pf(p):
        run, off, rnd = (p % 24) // 6, p % 6, p // 24
        return [I(f"s_add_u32 s{S_PFS}, s{S_PFQ}, {run}"), I(f"s_and_b32 s{S_PFS}, s{S_PFS}, 3"),
                I(f"s_mul_i32 s{S_PFS}, s{S_PFS}, 24"), I(f"s_add_u32 s{S_PFS}, s{S_PFS}, {12*rnd + 2*off}"),
                I(f"s_mul_i32 s{S_PFS}, s{S_PFS}, s{S_PADV}"), I(f"s_add_u32 s{S_PFS}, s{S_PFS}, s100"),
                I(f"buffer_load_dword v{P_PF+1}, v{P_PF}, {srd(sP)}, s{S_PFS} offen{HAND}", tag='opf')]
    for j in (1, 2):
        pro += [I(f"v_add_u32 v{P_RAO+j}, {WIN*j}, v{P_RAO}"), I(f"v_add_u32 v{P_RAW+j}, {WIN*j}, v{P_RAW}"),
                I(f"v_add_u32 v{P_RAW+3+j}, {WIN*j}, v{P_RAW+3}")]
    pro += [bothwait([OP0, OP0 + 1]), I("s_barrier")]

    def rd(s_, kind, k):
        j, rem = divmod(addr[s_], WIN)
        if kind == 'w':
            b = PWF(s_, k)
            return [I(f"ds_read_b64_tr_b16 v[{b+2*h}:{b+2*h+1}], v{P_RAW+3*(k & 1)+j} offset:{rem + 32*k + 5120*h}", tag=('pf', s_, 'w'))
                    for h in range(2)]
        return [I(f"ds_read_b128 {vq(POF(5*s_+k))}, v{P_RAO+j} offset:{rem + 1024*k}", tag=('pf', s_, k))]

    for k in range(5):
        pro += rd(0, 'w', k)
    for k in range(3):
        pro += rd(0, 'o', k)
    pro.append(dswait([('pf', 0, 0)]))
    mf, fixed = [], {}
    qds, qdma, qdr = [], [], []
    bar = {p: 50 * p - OP_LEAD for p in range(1, NK // 2)}
    bar[0] = -1
    must_before = []
    for s_ in range(NK):
        base = 25 * s_
        p = s_ // 2
        if s_ % 2 == 0 and p >= 1:
            fixed.setdefault(bar[p], []).extend([bothwait([OP0 + s_, OP0 + s_ + 1]), I("s_barrier")])
            must_before.append((qds[-1], bar[p]))
        for i in range(5):
            for nt in range(5):
                c = "0" if s_ == 0 else vq(PACC(nt, i))
                mf.append(I(f"{MF} {vq(PACC(nt,i))}, {vq(PWF(s_,nt))}, {vq(POF(5*s_+i))}, {c}"))
            if base + 5 * i > 0:
                tags = [('pf', s_, i)] + ([('pf', s_, 'w')] if i == 0 else [])
                fixed.setdefault(base + 5 * i - 1, []).append(dswait(tags))
        if s_ > 0:
            e = max(25 * (s_ - 1), bar[p])
            for k in range(5):
                for r in rd(s_, 'w', k):
                    qds.append(Task(r, earliest=e))
        for k in range(5):
            if s_ == 0 and k < 3:
                continue
            e = max(5 * (5 * s_ + k - NOB) + 4, bar[p])
            qds.append(Task(rd(s_, 'o', k)[0], earliest=e))
    first_r1 = None
    for it in range(5, NK):
        for o in dma_op_item(it, OPV):
            tk = Task(o, earliest=bar[when[it]] + 1)
            qdma.append(tk)
            if it == 48 and first_r1 is None:
                first_r1 = tk
    qpf = []
    if OPF:
        for p in range(4, NK // 2):
            e = max(0, 50 * (p - OPFD))
            if p >= 24:
                e = max(e, 50 * (POLL_P + 2))
            for o in pf(p):
                qpf.append(Task(o, earliest=e + 10))
    k = 0
    for m in range(6):
        for i in range(5):
            for o in drain_group(u, m, i, P_T, P_D + 4 * (k % 2), VO, VO + 1, False):
                qdr.append(Task(o, earliest=int((5 * m + i) * OP_DRAIN_GAP)))
            k += 1
    gaps, left = schedule(mf, [qds, qpf, qdma, qdr], fixed, tail_ok=False, greedy_scalar=lambda g: True,
                          capf=lambda g: (3 if g < OP_CAP3 else 2), vm_space=lambda g: (VM_OP if g < 50 * SIG_P else VM_OP2))
    for tk, g in must_before:
        assert tk.gap < g, (tk.gap, g)
    op_phase.info = dict(drain_end=qdr[-1].gap, first_r1=first_r1.gap)
    assert qdr[-1].gap < 50 * (SIG_P - 1), qdr[-1].gap
    assert first_r1.gap >= 50 * (POLL_P + 2), first_r1.gap
    blocks.append(('oppro', pro))
    for p in range(NK // 2):
        pre = []
        if p == SIG_P:
            pre += [vmwait([('st', u), 'flag0']), I("s_barrier")]
            pre += [I(f"s_add_u32 s{S_T3}, s{S_GRP}, 4")]
            pre += sig_code(P_T, "1", S_T3, f"L_{name}_sig1")
        if p == POLL_P:
            pre += [I(f"s_add_u32 s{S_U0}, s{S_GRP}, 4"),
                    I(f"buffer_load_dword v{P_F+1}, v{P_F}, {srd(sD)}, s{S_U0} offen sc1", tag='poll1')]
        if p == POLL_P + 2 and not NOPOLL:
            pre.append(vmwait('poll1'))
            pre += poll_check(P_F, f"L_{name}_poll1", sD, f"s{S_U0}", 8)
        if pre:
            blocks.append((f'opx{p}', pre))
        blocks.append((f'op{p}', flatten(mf, gaps, 50 * p, 50 * p + 50)))
    epi = []
    E = lambda t, **kw: epi.append(I(t, **kw))
    CA, R0 = 200, 100
    E(f"v_add_u32 v{VO+2}, 8192, v{VO}")
    E(f"v_add_u32 v{VO+3}, 12288, v{VO}")
    E(f"v_add_u32 v{P_F+2}, 1, v{P_F+2}")
    E(f"v_add_u32 v{P_F+3}, 1, v{P_F+3}")
    E(f"v_lshrrev_b32 v{CA}, 4, v{VO}")
    E(f"v_and_b32 v{CA+1}, 15, v{CA}")
    E(f"v_lshrrev_b32 v{CA}, 4, v{CA}")
    E(f"v_lshlrev_b32 v{CA}, 3, v{CA}")
    E(f"v_mul_u32_u24 v{CA+1}, 2560, v{CA+1}")
    E(f"v_add_u32 v{CA}, v{CA}, v{CA+1}")
    E(f"s_cmp_ge_u32 s{S_QUAD}, 4")
    E(f"s_cbranch_scc1 L_{name}_ex1")
    for kh in range(2):
        if kh:
            E(f"L_{name}_ex1:")
        keep = list(range(0, 13)) if kh == 0 else list(range(13, 25))
        send = [t for t in range(25) if t not in keep]
        for k, tl in enumerate(send):
            E(f"buffer_store_dwordx4 {vq(4*tl)}, v{VO + k // 4}, {srd(sE)}, s{S_ESND} offen offset:{1024*(k % 4)} sc1", kind='xvmem')
        E("s_waitcnt vmcnt(0)")
        E("s_mov_b64 exec, 1")
        E(f"buffer_store_dword v{P_F+2}, v{P_F}, {srd(sE)}, s{S_FOWN} offen sc1", kind='xvmem')
        E("s_mov_b64 exec, -1")
        E(f"buffer_load_dword v{P_F+1}, v{P_F}, {srd(sE)}, s{S_FPART} offen sc1", kind='xvmem')
        E("s_waitcnt vmcnt(0)")
        epi += poll_check(P_F, f"L_{name}_pollx{kh}", sE, f"s{S_FPART}", f"v{P_F+3}")
        for k, tl in enumerate(keep):
            E(f"buffer_load_dwordx4 {vq(R0+4*k)}, v{VO + k // 4}, {srd(sE)}, s{S_ERCV} offen offset:{1024*(k % 4)} sc1", kind='xvmem')
        for k, tl in enumerate(keep):
            i, nt = divmod(tl, 5)
            a, r = 4 * tl, R0 + 4 * k
            if k == 0 or nt == 0:
                E(f"s_add_u32 s{S_T0}, s{S_COFF}, {i*16*2560}")
            E(f"s_waitcnt vmcnt({len(keep) - 1})")
            E(f"v_pk_add_f32 v[{a}:{a+1}], v[{a}:{a+1}], v[{r}:{r+1}]")
            E(f"v_pk_add_f32 v[{a+2}:{a+3}], v[{a+2}:{a+3}], v[{r+2}:{r+3}]")
            E(f"v_cvt_pk_bf16_f32 v{a}, v{a}, v{a+1}")
            E(f"v_cvt_pk_bf16_f32 v{a+1}, v{a+2}, v{a+3}")
            E(f"buffer_store_dwordx2 v[{a}:{a+1}], v{CA}, {srd(sC)}, s{S_T0} offen offset:{32*nt}", kind='xvmem')
        if kh == 0:
            E(f"s_branch L_{name}_exdone")
    E(f"L_{name}_exdone:")
    blocks.append(('opepi', epi))
    return blocks


def prologue(name, ws):
    o = []
    A = lambda t: o.append(I(t))
    A(f"{name}:")
    A("s_cmp_ge_u32 s2, 256")
    A(f"s_cbranch_scc1 L_{name}_done")
    XCD, IDX, BLK, B, QUAD = 88, 89, 90, 91, 92
    A(f"s_and_b32 s{XCD}, s2, 7")
    A(f"s_lshr_b32 s{IDX}, s2, 3")
    A(f"s_lshr_b32 s{BLK}, s{XCD}, 2")
    A(f"s_and_b32 s{B}, s{XCD}, 3")
    A(f"s_lshl_b32 s{B}, s{B}, 2")
    A(f"s_lshr_b32 s{QUAD}, s{IDX}, 3")
    A(f"s_add_u32 s{B}, s{B}, s{QUAD}")
    A(f"s_and_b32 s{QUAD}, s{IDX}, 7")
    if ONLY:
        A(f"s_and_b32 s4, s{B}, {ONLY}")
        A("s_cmp_lg_u32 s4, 0")
        A(f"s_cbranch_scc1 L_{name}_done")
    if DELAY:
        A(f"s_and_b32 s4, s{B}, {DELAY_MASK}")
        A(f"s_mul_i32 s4, s4, {DELAY}")
        A(f"L_{name}_dl:")
        A("s_cmp_eq_u32 s4, 0")
        A(f"s_cbranch_scc1 L_{name}_dld")
        A("s_sleep 32")
        A("s_sub_u32 s4, s4, 1")
        A(f"s_branch L_{name}_dl")
        A(f"L_{name}_dld:")
    A(f"s_mul_i32 s4, s{BLK}, 40")
    A("s_add_u32 s4, s0, s4")
    A("s_addc_u32 s5, s1, 0")
    A(f"s_load_dwordx2 s[{sX}:{sX+1}], s[4:5], 0")
    A(f"s_load_dwordx2 s[{sK}:{sK+1}], s[4:5], 8")
    A(f"s_load_dwordx2 s[{sV}:{sV+1}], s[4:5], 16")
    A(f"s_load_dwordx2 s[{sW}:{sW+1}], s[4:5], 24")
    A(f"s_load_dwordx2 s[{sWo}:{sWo+1}], s[4:5], 32")
    A(f"s_load_dwordx2 s[{sC}:{sC+1}], s[0:1], 80")
    A(f"s_load_dwordx2 s[{sD}:{sD+1}], s[0:1], 88")
    A("s_load_dwordx2 s[6:7], s[0:1], 96")
    A("v_lshrrev_b32 v1, 6, v0")
    A("v_and_b32 v0, 63, v0")
    A(f"v_readfirstlane_b32 s{S_WAVE}, v1")
    A("s_nop 3")
    A(f"s_lshr_b32 s{S_J}, s{S_WAVE}, 1")
    A(f"s_and_b32 s{S_R}, s{S_WAVE}, 1")
    T, T2, H, BH = 93, 94, 95, 96
    for n in range(3):
        A(f"v_add_u32 v3, {64*n}, v0")
        A("v_mul_u32_u24 v1, 171, v3")
        A("v_lshrrev_b32 v1, 12, v1")
        A("v_mul_u32_u24 v2, 24, v1")
        A("v_sub_u32 v2, v3, v2")
        A("v_bfe_u32 v4, v1, 1, 1")
        A("v_mul_u32_u24 v5, 3, v4")
        A("v_and_b32 v6, 4, v1")
        A("v_or_b32 v5, v5, v6")
        A("v_xor_b32 v5, v5, v2")
        A("v_lshlrev_b32 v5, 4, v5")
        A("v_mul_u32_u24 v6, 384, v1")
        A("v_add_u32 v5, v5, v6")
        A(f"v_subrev_u32 v{PAT_KV+n}, {1024*n}, v5")
        A("v_and_b32 v5, 2, v1")
        A(f"s_lshl_b32 s{T}, s{S_R}, 2")
        A(f"v_or_b32 v5, s{T}, v5")
        A("v_xor_b32 v5, v5, v2")
        A("v_lshlrev_b32 v5, 4, v5")
        A("v_mul_u32_u24 v6, 12288, v1")
        A("v_add_u32 v5, v5, v6")
        A(f"v_subrev_u32 v{PAT_W+n}, {1024*n}, v5")
    A("v_lshrrev_b32 v1, 3, v0")
    A("v_and_b32 v2, 7, v0")
    A("v_and_b32 v4, 6, v1")
    A("v_xor_b32 v2, v2, v4")
    A("v_lshlrev_b32 v2, 4, v2")
    A("v_mul_u32_u24 v1, 1280, v1")
    A(f"v_add_u32 v{PAT_X}, v1, v2")
    A(f"s_mul_i32 s{T}, s{S_J}, 12288")
    A(f"s_mul_i32 s{T2}, s{S_R}, {16*384}")
    A(f"s_add_u32 s{S_CKV}, s{T}, s{T2}")
    A(f"s_mul_i32 s{T2}, s{S_R}, {8*384}")
    A(f"s_add_u32 s{S_CW}, s{T}, s{T2}")
    A(f"s_mul_i32 s{S_C5}, s{S_WAVE}, 5120")
    A(f"s_lshl_b32 s{H}, s{QUAD}, 2")
    A(f"s_add_u32 s{H}, s{H}, s{S_J}")
    A(f"s_mul_i32 s{S_WBASE}, s{H}, 384")
    A(f"s_mul_i32 s{T2}, s{S_R}, {8*12288}")
    A(f"s_add_u32 s{S_WBASE}, s{S_WBASE}, s{T2}")
    A(f"s_sub_u32 s{S_WBASE}, s{S_WBASE}, 768")
    A(f"s_mul_i32 s{S_XBASE}, s{B}, 204800")
    A(f"s_mul_i32 s{T2}, s{S_WAVE}, {40*1280}")
    A(f"s_add_u32 s{S_XBASE}, s{S_XBASE}, s{T2}")
    A(f"s_mul_i32 s{S_CX}, s{S_WAVE}, 5120")
    A(f"s_and_b32 s{T}, s{XCD}, 3")
    A(f"s_mul_i32 s{T}, s{T}, 5")
    A(f"s_add_u32 s{T}, s{T}, 1")
    A(f"s_lshr_b32 s{T}, s{T}, 1")
    if not ROT:
        A(f"s_mov_b32 s{T}, 0")
    A(f"s_mul_i32 s{S_WREL0}, s{T}, {64*12288}")
    A(f"s_lshl_b32 s{S_XREL0}, s{T}, 7")
    A(f"s_mov_b32 s{S_WR}, 0")
    A(f"s_mov_b32 s{S_RD}, 0")
    A(f"s_lshl_b32 s{S_SPARE}, s{S_WAVE}, 12")
    A(f"s_add_u32 s{S_SPARE}, s{S_SPARE}, {SPARE}")
    A("s_waitcnt lgkmcnt(0)")
    for b, nbytes in ((sX, 16*160*640*2), (sK, 16*32*512*192*2), (sV, 16*32*512*192*2), (sW, 640*6144*2),
                      (sWo, 6144*640*2), (sC, 16*160*1280*2), (sD, 256)):
        A(f"s_and_b32 s{b+1}, s{b+1}, 0xffff")
        A(f"s_mov_b32 s{b+2}, {nbytes}")
        A(f"s_mov_b32 s{b+3}, 0x20000")
    for g in range(5):
        o += straight(dma_item(g))
    A(f"s_and_b32 s{T}, s{XCD}, 3")
    A(f"s_lshl_b32 s{T}, s{T}, 5")
    A(f"s_add_u32 s{T}, s{T}, s{IDX}")
    A(f"s_lshl_b32 s{T}, s{T}, 2")
    A(f"s_add_u32 s{T}, s{T}, s{S_WAVE}")
    A(f"s_mul_i32 s{S_TWO}, s{T}, 15360")
    if CODE_WARM:
        A("s_getpc_b64 s[4:5]")
        A(f"s_lshl_b32 s{T}, s{IDX}, 2")
        A(f"s_add_u32 s{T}, s{T}, s{S_WAVE}")
        A(f"s_lshl_b32 s{T}, s{T}, 10")
        A("v_lshlrev_b32 v4, 4, v0")
        A(f"v_add_u32 v4, s{T}, v4")
        A(f"v_min_u32 v4, @CODELEN@, v4")
        o.append(I("global_load_dwordx4 a[236:239], v4, s[4:5]", tag='touch'))
    if WARM:
        A(f"s_lshl_b32 s{T2}, s{QUAD}, 2")
        A(f"s_add_u32 s{T2}, s{T2}, s{S_WAVE}")
        A(f"s_mul_i32 s{T2}, s{T2}, 6400")
        A(f"s_mul_i32 s{T}, s{B}, 204800")
        A(f"s_add_u32 s{T}, s{T}, s{T2}")
        A(f"s_mov_b32 m0, s{S_SPARE}")
        A("v_lshlrev_b32 v4, 7, v0")
        o.append(I(f"buffer_load_dword v4, {srd(sX)}, s{T} offen lds", tag='touch'))
    A("v_and_b32 v1, 15, v0")
    A("v_lshrrev_b32 v2, 4, v0")
    A(f"s_mul_i32 s{T}, s{S_J}, 12288")
    A("v_and_b32 v3, 1, v2")
    A("v_lshlrev_b32 v3, 1, v3")
    A("v_lshrrev_b32 v4, 1, v2")
    A("v_or_b32 v3, v3, v4")
    A("v_bfe_u32 v4, v1, 1, 1")
    A("v_mul_u32_u24 v4, 3, v4")
    A("v_and_b32 v5, 4, v1")
    A("v_or_b32 v4, v4, v5")
    A("v_xor_b32 v3, v3, v4")
    A("v_lshlrev_b32 v3, 4, v3")
    A("v_mul_u32_u24 v4, 384, v1")
    A(f"v_add3_u32 v{LP_K}, v3, v4, s{T}")
    A("v_lshrrev_b32 v3, 2, v1")
    A("v_and_b32 v4, 3, v0")
    A("v_lshl_add_u32 v5, v2, 2, v3")
    A("v_bfe_u32 v6, v5, 1, 1")
    A("v_mul_u32_u24 v6, 3, v6")
    A("v_and_b32 v7, 4, v5")
    A("v_or_b32 v6, v6, v7")
    A("v_lshrrev_b32 v7, 1, v4")
    A("v_xor_b32 v6, v6, v7")
    A("v_lshlrev_b32 v6, 4, v6")
    A("v_and_b32 v8, 1, v4")
    A("v_lshl_add_u32 v6, v8, 3, v6")
    A("v_mul_u32_u24 v5, 384, v5")
    A(f"v_add3_u32 v{LP_V}, v5, v6, s{T}")
    A("v_lshl_add_u32 v5, v2, 3, v3")
    A("v_and_b32 v6, 2, v3")
    A("v_and_b32 v9, 1, v2")
    A("v_lshl_or_b32 v6, v9, 2, v6")
    A("v_xor_b32 v6, v6, v7")
    A("v_lshlrev_b32 v6, 4, v6")
    A("v_lshl_add_u32 v6, v8, 3, v6")
    A("v_mul_u32_u24 v5, 384, v5")
    A(f"v_add3_u32 v{LP_W}, v5, v6, s{T}")
    A(f"s_mul_i32 s{T}, s{S_R}, 10240")
    A("v_lshrrev_b32 v3, 3, v1")
    A("v_lshlrev_b32 v3, 10, v3")
    A("v_and_b32 v4, 7, v1")
    A("v_lshl_add_u32 v3, v4, 7, v3")
    A("v_and_b32 v4, 6, v1")
    A("v_xor_b32 v4, v4, v2")
    A("v_lshlrev_b32 v4, 4, v4")
    A(f"v_add3_u32 v{LP_X}, v3, v4, s{T}")
    A(f"s_lshl_b32 s{BH}, s{B}, 5")
    A(f"s_add_u32 s{BH}, s{BH}, s{H}")
    A(f"s_mul_i32 s{S_KOFF}, s{BH}, 196608")
    A(f"s_mul_i32 s{T2}, s{S_R}, {16*384}")
    A(f"s_add_u32 s{S_KOFF}, s{S_KOFF}, s{T2}")
    A(f"s_mov_b32 s{S_VOFF}, s{S_KOFF}")
    GB = 97
    A(f"s_lshl_b32 s{GB}, s{BLK}, 4")
    A(f"s_add_u32 s{GB}, s{GB}, s{B}")
    A(f"s_mul_i32 s{T}, s{GB}, {192*10240}")
    A(f"s_add_u32 s{T}, s{T}, {ws['o_off']}")
    A(f"s_add_u32 s{sO}, s6, s{T}")
    A(f"s_addc_u32 s{sO+1}, s7, 0")
    A(f"s_and_b32 s{sO+1}, s{sO+1}, 0xffff")
    A(f"s_mov_b32 s{sO+2}, 0")
    A(f"s_mov_b32 s{S_OADV}, 0")
    A(f"s_mov_b32 s{sO+3}, 0x20000")
    A(f"s_mul_i32 s{T}, s{QUAD}, 24")
    A(f"s_mul_i32 s{T2}, s{S_J}, 6")
    A(f"s_add_u32 s{T}, s{T}, s{T2}")
    A(f"s_mul_i32 s{S_OOFF}, s{T}, 10240")
    A(f"s_mul_i32 s{T2}, s{S_R}, 5120")
    A(f"s_add_u32 s{S_OOFF}, s{S_OOFF}, s{T2}")
    A(f"s_lshr_b32 s{T}, s{QUAD}, 2")
    A(f"s_and_b32 s{T2}, s{QUAD}, 3")
    A(f"s_mul_i32 s{S_PADV}, s{S_J}, 30720")
    A(f"s_add_u32 s{S_PADV}, s{S_PADV}, 10240")
    A(f"s_mul_i32 s{S_PSRC}, s{T}, 96")
    A(f"s_mul_i32 s{S_PSRC}, s{S_PSRC}, s{S_PADV}")
    A(f"s_mul_i32 s{H}, s{T2}, 320")
    A(f"s_mul_i32 s{H}, s{H}, s{S_J}")
    A(f"s_add_u32 s{S_PSRC}, s{S_PSRC}, s{H}")
    A(f"s_lshr_b32 s{H}, s{S_PADV}, 1")
    A(f"s_mul_i32 s{H}, s{H}, s{S_R}")
    A(f"s_add_u32 s{S_PSRC}, s{S_PSRC}, s{H}")
    A(f"s_mul_i32 s100, s{T}, 96")
    A(f"s_mul_i32 s100, s100, s{S_PADV}")
    A(f"s_mul_i32 s{H}, s{T2}, 3")
    A(f"s_and_b32 s{BH}, s{B}, 3")
    A(f"s_add_u32 s{H}, s{H}, s{BH}")
    A(f"s_mul_i32 s{H}, s{H}, s{S_J}")
    A(f"s_add_u32 s{H}, s{H}, s{T2}")
    A(f"s_mul_i32 s{H}, s{H}, 5120")
    A(f"s_add_u32 s100, s100, s{H}")
    A(f"s_mul_i32 s{H}, s{S_R}, 2560")
    A(f"s_add_u32 s100, s100, s{H}")
    A(f"s_mov_b32 s{S_PBASE}, s{S_PSRC}")
    A(f"s_and_b32 s{S_PQ}, s{XCD}, {3 if ROT_OP else 0}")
    A(f"s_mul_i32 s{H}, s{S_PQ}, 24")
    A(f"s_mul_i32 s{H}, s{H}, s{S_PADV}")
    A(f"s_add_u32 s{S_PSRC}, s{S_PSRC}, s{H}")
    if FAKE_OP:
        A(f"s_mov_b32 s{S_PADV}, 0")
    A(f"s_mul_i32 s{S_COFF}, s{B}, {160*2560}")
    A(f"s_mul_i32 s{H}, s{S_R}, {80*2560}")
    A(f"s_add_u32 s{S_COFF}, s{S_COFF}, s{H}")
    A(f"s_mul_i32 s{H}, s{BLK}, 1280")
    A(f"s_add_u32 s{S_COFF}, s{S_COFF}, s{H}")
    A(f"s_mul_i32 s{H}, s{T2}, 320")
    A(f"s_add_u32 s{S_COFF}, s{S_COFF}, s{H}")
    A(f"s_mul_i32 s{H}, s{S_J}, 160")
    A(f"s_add_u32 s{S_COFF}, s{S_COFF}, s{H}")
    A(f"s_mov_b32 s{S_QUAD}, s{QUAD}")
    A(f"s_lshl_b32 s{H}, s{GB}, 3")
    A(f"s_add_u32 s{T}, s{H}, s{QUAD}")
    A(f"s_lshl_b32 s{T}, s{T}, 2")
    A(f"s_add_u32 s{T}, s{T}, s{S_WAVE}")
    A(f"s_mul_i32 s{S_ESND}, s{T}, 13312")
    A(f"s_lshl_b32 s{S_FOWN}, s{T}, 7")
    A(f"s_add_u32 s{S_FOWN}, s{S_FOWN}, {1024*13312}")
    A(f"s_xor_b32 s{T}, s{T}, 16")
    A(f"s_mul_i32 s{S_ERCV}, s{T}, 13312")
    A(f"s_lshl_b32 s{S_FPART}, s{T}, 7")
    A(f"s_add_u32 s{S_FPART}, s{S_FPART}, {1024*13312}")
    A(f"s_lshl_b32 s{S_GRP}, s{GB}, 3")
    c = math.log2(math.e) / math.sqrt(192.0)
    cb = struct.unpack('<I', struct.pack('<f', c))[0]
    A(f"s_mov_b32 s{S_SCALE}, 0x{cb:08x}")
    A(f"s_mov_b32 s{S_UNIT}, 0")
    A(f"s_mov_b32 s{S_DMIN}, 0")
    A(f"s_mov_b32 s{S_FORCED}, 0")
    return o


def build(name, ws):
    pro = prologue(name, ws)
    units = []
    for u in range(NUNITS):
        bl = q_phase(u) + a_phase(u)
        if u == 0:
            bl = [b for b in bl if b[0] != 'qdrain']
        else:
            k = [b[0] for b in bl].index('a12')
            bl[k:k] = [('t1issue', tail1_issue(name, ws))]
            k = [b[0] for b in bl].index('a13')
            bl[k:k] = [('t1check', tail1_check(name))]
        units.append(bl)
    opb = op_phase(name)
    stream = list(pro)
    for ub in units:
        for _, b in ub:
            stream += b
    for _, b in opb:
        stream += b
    resolve_waits(stream)
    errs = check_hazards(stream, name)
    for sp in slow_paths():
        errs += check_hazards(sp, 'slow')
    if errs:
        raise RuntimeError("\n".join(errs[:30]))
    ub, ub1 = dict(units[0]), dict(units[1])
    shared = ['qpre0', 'qpre', 'qfin', 'asig', 'a1h'] + [f'q{it}' for it in range(10)] + [f'a{t}' for t in range(12)]
    for k in shared:
        merge_min([ub[k], ub1[k]])
    ub.update(dict(opb))
    out = [x.text() for x in pro]
    tramp = []
    cnt = [0]
    nst = [0]

    def stamp(real=False, fine=False):
        if STAMPS and (fine == FINE or real):
            out.extend(["s_memrealtime s[4:5]" if (real or ALLREAL) else "s_memtime s[4:5]", "s_waitcnt lgkmcnt(0)", f"s_mov_b32 s{S_ST+nst[0]}, s4"])
            nst[0] += 1

    def flush_stamps(slot_expr):
        if STAMPS:
            out.extend([f"s_lshl_b32 s4, s2, 2", f"s_add_u32 s4, s4, s{S_WAVE}", "s_lshl_b32 s4, s4, 2",
                        f"s_add_u32 s4, s4, {slot_expr}", "s_lshl_b32 s4, s4, 6",
                        f"s_add_u32 s4, s4, s6", "s_addc_u32 s5, s7, 0",
                        f"s_add_u32 s4, s4, {ws['dbg_off']}", "s_addc_u32 s5, s5, 0",
                        "v_mov_b32 v1, 0"])
            for k in range(nst[0]):
                out.extend([f"v_mov_b32 v2, s{S_ST+k}", f"global_store_dword v1, v2, s[4:5] offset:{4*k}"])
            out.extend(["v_mov_b32 v2, s101", f"global_store_dword v1, v2, s[4:5] offset:{4*15}"])
            nst[0] = 0

    if STAMPS:
        out[3:3] = ["s_memrealtime s[4:5]" if ALLREAL else "s_memtime s[4:5]", "s_waitcnt lgkmcnt(0)", "s_mov_b32 s101, s4"]

    def emit(block, adv=None):
        k = cnt[0]
        cnt[0] += 1
        for x in block:
            t = x.text()
            if '@TRAMP' in t:
                par = t.split('@TRAMP')[1][:2]
                kk = cnt[0]
                cnt[0] += 1
                out.append(t.replace(f'@TRAMP{par}@', f'L_tr{kk}'))
                out.append(f'L_back{kk}:')
                tramp.extend([f'L_tr{kk}:', f's_call_b64 s[{S_RET}:{S_RET+1}], L_slow{par}', f's_branch L_back{kk}'])
            elif '@L1@' in t:
                out.append(t.replace('@L1@', f'L_sig{k}'))
            elif '@OADV' in t or '@WADV' in t:
                key = t[t.index('@'):]
                if adv and key in adv:
                    out.append(t.replace(key, adv[key]))
                else:
                    out.append(t.replace(key, str(x.extra)))
            else:
                out.append(t)

    def loop(label, names_list, top=None, adv=None):
        body = [sum((ub[n] for n in names), []) for names in names_list]
        merged = merge_min(body)
        out.append(f"s_mov_b32 s{S_LOOP}, {len(names_list)}")
        out.append(".p2align 3")
        out.append(f"{label}:")
        if top:
            out.extend(top)
        emit(merged, adv)
        out.append(f"s_sub_u32 s{S_LOOP}, s{S_LOOP}, 1")
        out.append(f"s_cmp_lg_u32 s{S_LOOP}, 0")
        out.append(f"s_cbranch_scc1 {label}")

    out.append(f"L_{name}_unit:")
    stamp()
    emit(ub['qpre0'])
    out.append(f"s_cmp_eq_u32 s{S_UNIT}, 0")
    out.append(f"s_cbranch_scc1 L_{name}_nodrain")
    emit(ub1['qdrain'])
    out.append(f"L_{name}_nodrain:")
    emit(ub['qpre'])
    stamp()
    for it in range(10):
        stamp(fine=True)
        emit(ub[f'q{it}'])
    stamp(fine=True)
    stamp()
    emit(ub['qfin'])
    stamp()
    emit(ub['a0'])
    stamp()
    emit(ub['a1h'])
    emit(ub['a1'])
    emit(ub['asig'])
    stamp()
    emit(ub['a2'])
    emit(ub['a3'])
    loop(f"L_{name}_a", [[f'a{t}', f'a{t+1}'] for t in range(4, 12, 2)])
    stamp()
    nsave = nst[0]
    out.append(f"s_cmp_eq_u32 s{S_UNIT}, {NUNITS-1}")
    out.append(f"s_cbranch_scc1 L_{name}_tail1")
    for t in (12, 13, 14, 15):
        emit(ub[f'a{t}'])
    emit(ub['apost'])
    stamp()
    emit(ub['lred'])
    stamp()
    stamp(True)
    flush_stamps("0")
    out.append(f"s_add_u32 s{S_UNIT}, s{S_UNIT}, 1")
    out.append(f"s_branch L_{name}_unit")
    out.append(f"L_{name}_tail1:")
    nst[0] = nsave
    for k in ('t1issue', 'a12', 't1check', 'a13', 'a14', 'a15', 'apost'):
        emit(ub1[k])
    stamp()
    emit(ub1['lred'])
    stamp()
    stamp(True)
    flush_stamps("1")
    stamp()
    stamp(True)
    emit(ub['oppro'])
    stamp()
    for nme, _ in opb:
        if nme in ('oppro', 'opepi'):
            continue
        if nme in ('op16', 'op24'):
            stamp()
        if nme in [f'op{x}' for x in range(0, 22, 2)]:
            stamp(fine=True)
        emit(ub[nme])
    stamp()
    emit(ub['opepi'])
    if STAMPS:
        out.append("s_waitcnt vmcnt(0)")
    stamp()
    stamp(True)
    flush_stamps("2")
    out.append(f"L_{name}_done:")
    out.append("s_endpgm")
    out += tramp
    for sp in slow_paths():
        out += [x.text() for x in sp]
    ninstr = sum(1 for l in out if not l.endswith(':') and not l.startswith((';', '.')))
    clen = min(131072 - 16, (ninstr * 6) & ~15)
    out = [l.replace('@CODELEN@', str(clen)) for l in out]
    return out
```

```python
import math
import struct
from asmlib import *

SLOT = 24576
NSLOT = 6
RING = SLOT * NSLOT
SPARE = RING
LDS_BYTES = 163840
NUNITS = 2

sX, sK, sV, sW, sO = 8, 12, 16, 20, 24
S_WAVE, S_J, S_R = 28, 29, 30
S_WR, S_RD = 31, 32
S_KOFF, S_VOFF, S_WOFF, S_OADV = 33, 34, 35, 36
S_CKV, S_CW, S_OT = 37, 38, 39
S_T0, S_T1, S_T2, S_T3 = 40, 41, 42, 43
S_LOOP, S_UNIT = 44, 45
S_SCALE = 46
S_OOFF = 47
S_WBASE = 48
S_RET = 50
S_DMIN = 52
S_FORCED = 53
S_XBASE, S_XOFF, S_CX, S_WREL0, S_XREL0 = 49, 54, 55, 87, 3
S_QUAD, S_ESND, S_ERCV, S_TWO = 56, 57, 58, 59
sWo, sC, sD = 60, 68, 72
S_FOWN, S_FPART, S_PQ, S_PBASE = 64, 65, 66, 67
S_SPARE = 76
S_GRP = 77
S_U0, S_U1, S_U2, S_U3 = 78, 79, 80, 81
S_PSRC, S_PADV, S_COFF = 82, 83, 84
S_C5 = 85
sP, sE = 8, 20
S_BLKC = 86
S_WPF, S_WPB = 86, 59
S_PFS, S_PFQ, S_PFB = 35, 54, 48
S_ST = 88


def srd(b): return f"s[{b}:{b+3}]"
def vq(b): return f"v[{b}:{b+3}]"
def aq(b): return f"a[{b}:{b+3}]"


def Qf(ks, i): return 4 * (5 * ks + i)
def Sr(st, i): return 120 + 20 * st + 4 * i
def Pr(par, i): return 160 + 20 * par + 4 * i
def NM(i): return 200 + 4 * i


L0, TS0, E0 = 220, 225, 230
KA, VA, CHK = 238, 240, 244
PAT_KV, PAT_W, PAT_X = 245, 248, 251
LP_K, LP_V, LP_W, LP_X = 252, 253, 254, 255
WA, XA = 240, 244
RL = L0
Q_OA2, Q_T, Q_D, TCH, SA = 225, 226, 234, 238, 239
OPV = [248, 249, 250, 251, 254]
def ACC(n, i): return 4 * (5 * n + i)
def acc_reg(n, i): return vq(ACC(n, i)) if n < 11 else aq(60 + 4 * i)
def Oa(n, i): return 4 * (5 * n + i)
def FR(b): return 240 + 4 * b
def XF(s, i): return 20 * (s & 1) + 4 * i
WOF = 40
UNIT_ITEMS = 62
NQI = 30
OP0 = UNIT_ITEMS * NUNITS


MF = "v_mfma_f32_16x16x32_bf16"
KV_POL = " nt"
W_POL = ""
X_POL = ""
WO_UNIT = 0
WARM1 = True
ROT = True
A_WIN = 5
A_BURST = False
XPERM = 0
FAST0 = True
WO_EV = (4, 6, 8, 10, 12)
TLN = 24
KV_EV = {}
KVT_POL = ''
WO_WARM = True
CODE_WARM = True
FAKE_W = FAKE_X = False
QPF, QPF0, QPFD = True, 3, 4
OPF, OPFD = False, 5
ONLY = 0
DELAY = 0
DELAY_MASK = 1
NOPOLL = False
WO_KS = 19
KV_TOUCH = 0
ROT_OP = True
FAKE_OP = False
ALLREAL = False
VM_Q, VM_A, VM_OP = 3, 8, 1
A_DMA_PRIO = False
FINE = False
ASIG_BEFORE = 'a2'
STP = " sc1"
HAND = " sc1"
STAMPS = False
WARM = True
BAR_LEAD = 12


def ring_adv(s, tmp):
    return [I(f"s_add_u32 s{s}, s{s}, {SLOT}"),
            I(f"s_sub_u32 s{tmp}, s{s}, {RING}"),
            I(f"s_min_u32 s{s}, s{s}, s{tmp}")]


def item_kind(idx):
    if idx < NQI:
        it, k = divmod(idx, 3)
        return [('W', 2 * it), ('X', it), ('W', 2 * it + 1)][k]
    a = idx - NQI
    if a == 0:
        return ('K', 0)
    if a == 31:
        return ('V', 15)
    return ('K', (a + 1) // 2) if a % 2 == 1 else ('V', a // 2 - 1)


NK = 96
PITEM = 20480


def op_addrs():
    addr, when = {}, {}
    live = []
    for it in range(6):
        a = ((OP0 + it) % NSLOT) * SLOT
        addr[it] = a
        when[it] = None if it < 5 else 0
        live.append((a, a + PITEM, it // 2 + 1))
    for it in range(6, NK):
        best = None
        for j in range(8):
            a = j * PITEM
            t = max([f for (s0, e0, f) in live if s0 < a + PITEM and a < e0] + [0])
            if best is None or t < best[0]:
                best = (t, a)
        t, a = best
        t = max(t, when[it - 1] or 0)
        addr[it], when[it] = a, t
        live = [x for x in live if not (x[0] < a + PITEM and a < x[1])]
        live.append((a, a + PITEM, it // 2 + 1))
        assert t <= it // 2 - 1, (it, t)
    return addr, when


def dma_op_item(it, pv):
    gid = OP0 + it
    a = op_addrs()[0][it]
    out = [I(f"s_add_u32 m0, s{S_C5}, {a}")]
    for k in range(4):
        out.append(I(f"buffer_load_dwordx4 v{pv[k]}, {srd(sP)}, s{S_PSRC} offen offset:{1024*k}{HAND} lds", tag=gid))
    out.append(I(f"s_add_u32 m0, s{S_C5}, {a + 4096}"))
    out.append(I(f"buffer_load_dwordx4 v{pv[4]}, {srd(sP)}, s{S_PSRC} offen{HAND} lds", tag=gid))
    if it % 12 != 11:
        out.append(I(f"s_add_u32 s{S_PSRC}, s{S_PSRC}, s{S_PADV}"))
    else:
        rnd = (it + 1) // 48
        out += [I(f"s_add_u32 s{S_PQ}, s{S_PQ}, 1"), I(f"s_and_b32 s{S_PQ}, s{S_PQ}, 3"),
                I(f"s_mul_i32 s{S_T0}, s{S_PQ}, 24"), I(f"s_add_u32 s{S_T0}, s{S_T0}, {12*rnd}"),
                I(f"s_mul_i32 s{S_T0}, s{S_T0}, s{S_PADV}"), I(f"s_add_u32 s{S_PSRC}, s{S_PBASE}, s{S_T0}")]
    return out


def dma_item(gid):
    if gid >= OP0:
        return dma_op_item(gid - OP0, OPV)
    u, idx = divmod(gid, UNIT_ITEMS)
    kind, num = item_kind(idx)
    out = []
    if idx == 0:
        out += [I(f"s_add_u32 s{S_WBASE}, s{S_WBASE}, 768"),
                I(f"s_mov_b32 s{S_WOFF}, s{S_WREL0}"),
                I(f"s_mov_b32 s{S_XOFF}, s{S_XREL0}")]
    if kind in 'KV':
        off = S_KOFF if kind == 'K' else S_VOFF
        d = srd(sK if kind == 'K' else sV)
        out.append(I(f"s_add_u32 m0, s{S_WR}, s{S_CKV}"))
        for n in range(3):
            out.append(I(f"buffer_load_dwordx4 v{PAT_KV+n}, {d}, s{off} offen offset:{1024*n}{KV_POL} lds", tag=gid))
        out.append(I(f"s_add_u32 m0, m0, 3072"))
        out.append(I(f"s_add_u32 s{S_T0}, s{off}, 3072"))
        for n in range(3):
            out.append(I(f"buffer_load_dwordx4 v{PAT_KV+n}, {d}, s{S_T0} offen offset:{1024*n}{KV_POL} lds", tag=gid))
        adv = 12288 + (196608 if num == 15 else 0)
        out.append(I(f"s_add_u32 s{off}, s{off}, {adv}"))
    elif kind == 'W':
        out.append(I(f"s_add_u32 m0, s{S_WR}, s{S_CW}"))
        out.append(I(f"s_add_u32 s{S_T0}, s{S_WOFF}, s{S_WBASE}"))
        for n in range(3):
            out.append(I(f"buffer_load_dwordx4 v{PAT_W+n}, {srd(sW)}, s{S_T0} offen offset:{1024*n}{W_POL} lds", tag=gid))
        out.append(I(f"s_add_u32 m0, m0, {16*384}"))
        out.append(I(f"s_add_u32 s{S_T0}, s{S_T0}, {16*12288}"))
        for n in range(3):
            out.append(I(f"buffer_load_dwordx4 v{PAT_W+n}, {srd(sW)}, s{S_T0} offen offset:{1024*n}{W_POL} lds", tag=gid))
        out.append(I(f"s_add_u32 s{S_WOFF}, s{S_WOFF}, {0 if FAKE_W else 32*12288}"))
        out.append(I(f"s_sub_u32 s{S_T0}, s{S_WOFF}, {640*12288}"))
        out.append(I(f"s_min_u32 s{S_WOFF}, s{S_WOFF}, s{S_T0}"))
    else:
        out.append(I(f"s_add_u32 m0, s{S_WR}, s{S_CX}"))
        out.append(I(f"s_add_u32 s{S_T0}, s{S_XOFF}, s{S_XBASE}"))
        for p in range(5):
            if p == 4:
                out.append(I(f"s_add_u32 m0, m0, 4096"))
                out.append(I(f"s_add_u32 s{S_T0}, s{S_T0}, {10240+3072}"))
                out.append(I(f"buffer_load_dwordx4 v{PAT_X}, {srd(sX)}, s{S_T0} offen{X_POL} lds", tag=gid))
            else:
                if p:
                    out.append(I(f"s_add_u32 s{S_T0}, s{S_T0}, {10240-1024}"))
                out.append(I(f"buffer_load_dwordx4 v{PAT_X}, {srd(sX)}, s{S_T0} offen offset:{1024*p}{X_POL} lds", tag=gid))
        out.append(I(f"s_add_u32 s{S_XOFF}, s{S_XOFF}, {0 if FAKE_X else 128}"))
        out.append(I(f"s_sub_u32 s{S_T0}, s{S_XOFF}, 1280"))
        out.append(I(f"s_min_u32 s{S_XOFF}, s{S_XOFF}, s{S_T0}"))
    out += ring_adv(S_WR, S_T1)
    return out


def drain_group(u, m, i, T, D, oa, oa2, packed, ntemp=8):
    o = []
    rl = RL + i
    for half in range(2):
        t = T + (4 * half if ntemp == 8 else 0)
        for k in range(4):
            o.append(I(f"v_accvgpr_read_b32 v{t+k}, a{Oa(2*m+half,i)+k}"))
        if packed:
            sel = "op_sel:[0,1] op_sel_hi:[1,1]" if rl & 1 else "op_sel_hi:[1,0]"
            rp = rl & ~1
            for k in (0, 2):
                o.append(I(f"v_pk_mul_f32 v[{t+k}:{t+k+1}], v[{t+k}:{t+k+1}], v[{rp}:{rp+1}] {sel}"))
        else:
            for k in range(4):
                o.append(I(f"v_mul_f32 v{t+k}, v{rl}, v{t+k}"))
        for k in range(2):
            o.append(I(f"v_cvt_pk_bf16_f32 v{D+2*half+k}, v{t+2*k}, v{t+2*k+1}"))
    if i == 0:
        o.append(I(f"s_add_u32 s{S_OT}, s{S_OOFF}, {m*10240}"))
    if i < 4:
        o.append(I(f"buffer_store_dwordx4 {vq(D)}, v{oa}, {srd(sO)}, s{S_OT} offen offset:{1024*i}{STP}", tag=('st', u)))
    else:
        o.append(I(f"buffer_store_dwordx4 {vq(D)}, v{oa2}, {srd(sO)}, s{S_OT} offen{STP}", tag=('st', u)))
    return o


def l_reduce():
    fin = []
    for i in range(5):
        fin.append(I(f"v_mov_b32 v{E0+i}, v{L0+i}"))
    for i in range(5):
        fin.append(I(f"v_permlane32_swap_b32 v{L0+i}, v{E0+i}"))
    for i in range(5):
        fin.append(I(f"v_add_f32 v{L0+i}, v{L0+i}, v{E0+i}"))
    for i in range(5):
        fin.append(I(f"v_mov_b32 v{E0+i}, v{L0+i}"))
    for i in range(5):
        fin.append(I(f"v_permlane16_swap_b32 v{L0+i}, v{E0+i}"))
    for i in range(5):
        fin.append(I(f"v_add_f32 v{L0+i}, v{L0+i}, v{E0+i}"))
    for i in range(5):
        fin.append(I(f"v_rcp_f32 v{RL+i}, v{L0+i}"))
    return fin


def straight(instrs):
    out = []
    for ins in instrs:
        if ins.kind == 'dma' and out and 'm0' in out[-1].txt.split(',')[0]:
            out.append(I("s_nop 0"))
        out.append(ins)
    return out


def open_item(kind):
    if kind == 'K':
        o = [I(f"v_add_u32 v{KA}, s{S_RD}, v{LP_K}"), I(f"v_xor_b32 v{KA+1}, 64, v{KA}")]
    elif kind in 'VW':
        lp = LP_V if kind == 'V' else LP_W
        o = [I(f"v_add_u32 v{VA}, s{S_RD}, v{lp}"), I(f"v_xor_b32 v{VA+1}, 32, v{VA}"),
             I(f"v_xor_b32 v{VA+2}, 64, v{VA}"), I(f"v_xor_b32 v{VA+3}, 64, v{VA+1}")]
    else:
        o = [I(f"v_add_u32 v{XA}, s{S_RD}, v{LP_X}")]
    return o + ring_adv(S_RD, S_T2)


def k_read(f, buf, tag):
    st, ks = divmod(f, 6)
    return [I(f"ds_read_b128 {aq(buf)}, v{KA + (ks & 1)} offset:{st*6144 + (ks >> 1)*128}", tag=tag)]


def v_read(n, buf, tag, half_off=6144):
    return [I(f"ds_read_b64_tr_b16 a[{buf+2*h}:{buf+2*h+1}], v{VA + (n & 3)} offset:{(n >> 2)*128 + h*half_off}", tag=tag)
            for h in range(2)]


def sm_ops(par, st, i, tbase):
    e = [E0 + (tbase + r) % 8 for r in range(4)]
    s = Sr(st, i)
    p = Pr(par, i) + 2 * st
    ts = TS0 + i
    o = [I(f"v_exp_f32 v{e[r]}, v{s+r}") for r in range(4)]
    o.append(I(f"v_cvt_pk_bf16_f32 v{p}, v{e[0]}, v{e[1]}"))
    o.append(I(f"v_add_f32 v{ts}, v{e[0]}, v{e[1]}"))
    o.append(I(f"v_cvt_pk_bf16_f32 v{p+1}, v{e[2]}, v{e[3]}"))
    o.append(I(f"v_add_f32 v{ts}, v{ts}, v{e[2]}"))
    o.append(I(f"v_add_f32 v{ts}, v{ts}, v{e[3]}"))
    return o


def qk_mfmas(first_zero=False):
    out = []
    for st in range(2):
        for ks in range(6):
            for i in range(5):
                f = st * 6 + ks
                c = (("0" if first_zero else vq(NM(i))) if ks == 0 else vq(Sr(st, i)))
                out.append((f, f"{MF} {vq(Sr(st,i))}, @FR@, {vq(Qf(ks,i))}, {c}"))
    return out


def pv_mfmas(par, zero=False):
    out = []
    for n in range(12):
        for i in range(5):
            c = "0" if zero else aq(Oa(n, i))
            out.append((n, f"{MF} {aq(Oa(n,i))}, @FR@, {vq(Pr(par,i))}, {c}"))
    return out


def flatten(mf, gaps, lo, hi):
    out = []
    for g in range(lo, hi):
        out.append(mf[g])
        out.extend(gaps[g])
    return out


def lane_id(v):
    return [I(f"v_mbcnt_lo_u32_b32 v{v}, -1, 0"), I(f"v_mbcnt_hi_u32_b32 v{v}, -1, v{v}")]


def q_phase(u):
    g0 = UNIT_ITEMS * u
    pu = u - 1
    blocks = []
    pre = []
    pre += lane_id(0)
    pre += [I(x) for x in (
        "v_lshlrev_b32 v1, 7, v0",
        f"v_cmp_gt_u32 vcc, {TLN}, v0",
        "v_mov_b32 v2, 0x7ffffff0",
        "s_nop 0",
        f"v_cndmask_b32 v{TCH}, v2, v1, vcc",
        f"v_lshlrev_b32 v{SA}, 4, v0",
        f"v_add_u32 v{Q_OA2}, 4096, v{SA}")]
    blocks.append(('qpre0', pre))
    pre = []
    k = 0
    for m in range(2):
        for i in range(5):
            pre += drain_group(pu, m, i, 8 + 8 * (k % 4), 48 + 4 * (k % 4), SA, Q_OA2, True)
            k += 1
    blocks.append(('qdrain', pre))
    pre = []
    pre += [bothwait([g0, g0 + 1]), I("s_barrier")]
    pre += open_item('W') + open_item('X')
    mf = []
    for s_ in range(20):
        for n in range(12):
            for i in range(5):
                F = s_ * 12 + n
                c = "0" if s_ == 0 else acc_reg(n, i)
                mf.append(I(f"{MF} {acc_reg(n,i)}, {aq(FR(F % 4))}, {aq(XF(s_, i))}, {c}"))
    fixed = {}
    qds, qaddr, qdma, qwo, qx, qdr = [], [], [], [], [], []
    bar_gap = {s_: 60 * s_ - BAR_LEAD - 1 for s_ in range(1, 20)}

    def wreads(F):
        return v_read(F % 12, FR(F % 4), ('w', u, F), half_off=1536)

    def xreads(s_):
        return [I(f"ds_read_b128 {aq(XF(s_, i))}, v{XA} offset:{2048*i}", tag=('x', u, s_)) for i in range(5)]

    pre += wreads(0) + xreads(0) + wreads(1) + wreads(2)
    if u > 0 or not FAST0:
        pre += straight(dma_item(g0 + 5))
    pre.append(dswait([('w', u, 0), ('x', u, 0)]))
    last_rd = {}
    for m in range(2, 6):
        for i in range(5):
            for o in drain_group(pu, m, i, Q_T, Q_D, SA, Q_OA2, False):
                t = Task(o, earliest=0)
                qdr.append(t)
                if o.txt.startswith('v_accvgpr_read'):
                    last_rd[m] = t
    qdr.append(Task(I(f"s_add_u32 s{S_OOFF}, s{S_OOFF}, s{S_OADV}"), earliest=0))
    last_read = None
    must_before = []
    wo_done = []
    for s_ in range(20):
        first = True
        addr_task = None
        if s_ >= 1:
            need = [g0 + 3 * (s_ // 2), g0 + 3 * (s_ // 2) + 1] if s_ % 2 == 0 else [g0 + 3 * (s_ // 2) + 2]
            fixed.setdefault(bar_gap[s_], []).extend([bothwait(need), I("s_barrier")])
            must_before.append((last_read, bar_gap[s_]))
            ops = open_item('W')
            if s_ % 2 == 0:
                ops += open_item('X')
            for k, o in enumerate(ops):
                t = Task(o, earliest=0, after=last_read if k == 0 else None, gapdist=1)
                qaddr.append(t)
                if o.kind == 'valu':
                    addr_task = t
        for n in range(12):
            F = s_ * 12 + n
            if s_ == 0 and n < 3:
                continue
            e = 5 * (F - 4) + 4
            if s_ >= 1:
                e = max(e, bar_gap[s_])
            rs = wreads(F)
            if n == 0 and s_ % 2 == 0:
                rs = rs + xreads(s_)
            if n == 6 and s_ % 2 == 0:
                rs = rs + [I(f"v_xor_b32 v{XA}, 64, v{XA}")] + xreads(s_ + 1)
            for r in rs:
                t = Task(r, earliest=e, after=addr_task if first else None, gapdist=1)
                first = False
                qds.append(t)
                last_read = t
        for n in range(12):
            F = s_ * 12 + n
            if F == 0:
                continue
            tags = [('w', u, F)] + ([('x', u, s_)] if n == 0 else [])
            fixed.setdefault(5 * F - 1, []).append(dswait(tags))
        if s_ >= 1:
            it = s_ // 2
            items = [3 * it + 5] if s_ % 2 == 0 else [3 * it + 6, 3 * it + 7]
            for x in items:
                for o in dma_item(g0 + x):
                    qdma.append(Task(o, earliest=bar_gap[s_] + 1))
        if s_ in WO_EV and WO_WARM:
            for o in (I(f"s_mov_b32 m0, s{S_SPARE}"),
                      I(f"buffer_load_dword v{TCH}, {srd(sWo)}, s{S_TWO} offen lds", tag=('two', u)),
                      I(f"s_add_u32 s{S_TWO}, s{S_TWO}, {TLN * 128}")):
                qdma.append(Task(o, earliest=60 * s_))
        if s_ in KV_EV:
            for x, part in KV_EV[s_]:
                kind, num = item_kind(NQI + x)
                off, d = (S_KOFF, sK) if kind == 'K' else (S_VOFF, sV)
                for o in (I(f"s_mov_b32 m0, s{S_SPARE}"),
                          I(f"s_add_u32 s{S_T0}, s{off}, {num*12288 + part*TLN*128}"),
                          I(f"buffer_load_dword v{TCH}, {srd(d)}, s{S_T0} offen{KVT_POL} lds", tag=('tkv', u))):
                    qdma.append(Task(o, earliest=60 * s_ + 30 * part))
    gaps, left = schedule(mf, [qds, qaddr, qdma, qwo, qdr], fixed, tail_ok=False, greedy_scalar=lambda g: True, vm_space=VM_Q)
    for tk, g in must_before:
        assert tk.gap < g, (tk.gap, g)
    q_phase.info = dict(drain_end=qdr[-1].gap)
    if u == 0 and FAST0:
        drop = set(id(t.ins) for t in qdr)
        pend = sum((dma_item(g0 + x) for x in (4, 5)), [])
        lastvm = -9
        for g in range(bar_gap[1]):
            gaps[g] = [x for x in gaps[g] if id(x) not in drop]
            while pend and pend[0].kind == 'salu' and len(gaps[g]) < 3 and not any(x.kind == 'dma' for x in gaps[g]):
                k = sum(1 for x in gaps[g] if x.kind in ('salu', 'dswait', 'vmwait', 'bothwait'))
                gaps[g].insert(k, pend.pop(0))
            if pend and pend[0].kind == 'dma' and not gaps[g] and g - lastvm >= 2:
                gaps[g].append(pend.pop(0))
                lastvm = g
        assert not pend, len(pend)
    blocks.append(('qpre', pre))
    for it in range(10):
        blocks.append((f'q{it}', flatten(mf, gaps, 120 * it, 120 * it + 120)))
    fin = [I("s_nop 7")]
    for m in range(6):
        for i in range(5):
            a0, a1, d = ACC(2 * m, i), ACC(2 * m + 1, i), Qf(m, i)
            if m == 5:
                a1 = Q_T + 4 * (i & 1)
                for k in range(4):
                    fin.append(I(f"v_accvgpr_read_b32 v{a1+k}, a{60+4*i+k}"))
            for a in (a0, a0 + 2, a1, a1 + 2):
                fin.append(I(f"v_pk_mul_f32 v[{a}:{a+1}], v[{a}:{a+1}], s[{S_SCALE}:{S_SCALE+1}] op_sel_hi:[1,0]"))
            fin.append(I(f"v_cvt_pk_bf16_f32 v{d}, v{a0}, v{a0+1}"))
            fin.append(I(f"v_cvt_pk_bf16_f32 v{d+1}, v{a0+2}, v{a0+3}"))
            fin.append(I(f"v_cvt_pk_bf16_f32 v{d+2}, v{a1}, v{a1+1}"))
            fin.append(I(f"v_cvt_pk_bf16_f32 v{d+3}, v{a1+2}, v{a1+3}"))
            prev = (m, i - 1) if i > 0 else ((m - 1, 4) if m > 0 else None)
            if prev:
                pd = Qf(*prev)
                fin.append(I(f"v_permlane16_swap_b32 v{pd}, v{pd+2}"))
                fin.append(I(f"v_permlane16_swap_b32 v{pd+1}, v{pd+3}"))
    pd = Qf(5, 4)
    fin.append(I("s_nop 1"))
    fin.append(I(f"v_permlane16_swap_b32 v{pd}, v{pd+2}"))
    fin.append(I(f"v_permlane16_swap_b32 v{pd+1}, v{pd+3}"))
    blocks.append(('qfin', fin))
    return blocks


def wb_code(label, tag):
    if STP:
        return []
    return [I(f"s_cmp_lg_u32 s{S_WAVE}, 0"), I(f"s_cbranch_scc1 {label}"),
            I("buffer_wbl2 sc1", kind='xsalu'),
            I(f"{label}:"), I("; marker", kind='mark', tag=tag)]


def sig_code(tv, amount_sgpr_or_imm, off, label, wtag=None):
    return [I(f"s_cmp_lg_u32 s{S_WAVE}, 0"), I(f"s_cbranch_scc1 {label}"),
            I(f"v_mov_b32 v{tv}, {amount_sgpr_or_imm}"), I(f"v_mov_b32 v{tv+1}, 0"),
            I("afterwait", kind='afterwait', tag=wtag),
            I("s_mov_b64 exec, 1"),
            I(f"buffer_atomic_add v{tv}, v{tv+1}, {srd(sD)}, s{off} offen sc1", kind='xvmem'),
            I("s_mov_b64 exec, -1"),
            I(f"{label}:")]


def a_phase(u):
    g0 = UNIT_ITEMS * u + NQI
    nxt = UNIT_ITEMS * (u + 1)
    blocks = []
    pre = [bothwait([g0, ('st', u - 1)]), I("s_barrier")]
    pre += wb_code("@L1@", ('wb', u))
    pre += open_item('K')
    for f in range(3):
        pre += k_read(f, FR(f), ('k', u, 0, f))
    for i in range(5):
        pre.append(I(f"v_mov_b32 v{L0+i}, 0"))
        for r in range(4):
            pre.append(I(f"v_mov_b32 v{NM(i)+r}, 0"))
    pre.append(dswait([('k', u, 0, 0)]))
    mf0 = [I(t.replace('@FR@', aq(FR(f % 4)))) for f, t in qk_mfmas(first_zero=True)]
    qds, qdma, fixed = [], [], {}
    for f in range(3, 12):
        for r in k_read(f, FR(f % 4), ('k', u, 0, f)):
            qds.append(Task(r, earliest=5 * (f - 4) + 4))
    for f in range(1, 12):
        fixed.setdefault(5 * f - 1, []).append(dswait([('k', u, 0, f)]))
    for x in (5,):
        for o in dma_item(g0 + x):
            qdma.append(Task(o, earliest=0))
    gaps, left = schedule(mf0, [qds, qdma], fixed, tail_ok=False, vm_space=6)
    blk = pre + flatten(mf0, gaps, 0, 60)
    blk += [I(f"s_mov_b32 s{sO+2}, {192*10240}"), I(f"s_mov_b32 s{S_OADV}, {12*10240}"),
            I(f"s_or_b32 s{S_TWO}, s{S_TWO}, 0x40000000")]
    blk += [I(f"s_mov_b32 s{S_DMIN}, 0xf149f2ca"), I(f"s_mov_b32 s{S_FORCED}, 1"),
            I(f"s_call_b64 s[{S_RET}:{S_RET+1}], L_slowF"),
            I(f"s_mov_b32 s{S_DMIN}, 0"), I(f"s_mov_b32 s{S_FORCED}, 0")]
    blk += [bothwait([g0 + 1]), I("s_barrier")]
    blk += open_item('K')
    for f in range(3):
        blk += k_read(f, FR(f), ('k', u, 1, f))
    blk.append(dswait([('k', u, 1, 0)]))
    blocks.append(('a0', blk))

    halves = []
    for t in range(1, 16):
        halves.append(('K', t))
        halves.append(('V', t - 1))
    halves.append(('V', 15))
    mf, fixed = [], {}
    qds, qaddr, qdma, qsm, qexp = [], [], [], [], []
    grp_last = []
    last_read = {'K': None, 'V': None}
    must_before, deadlines = [], []
    prev_branch = None
    for h, (kind, t) in enumerate(halves):
        base = 60 * h
        seq = qk_mfmas() if kind == 'K' else pv_mfmas(t & 1, zero=(t == 0))
        for f, txt in seq:
            F = 12 * h + f
            mf.append(I(txt.replace('@FR@', aq(FR(F % 4)))))
        bar = base - BAR_LEAD
        addr_task = None
        if h >= 1:
            fixed.setdefault(bar, []).extend([bothwait([g0 + h + 1]), I("s_barrier")])
            must_before.append((qds[-1], bar))
            for k, o in enumerate(open_item(kind)):
                tk = Task(o, earliest=0, after=last_read[kind] if k == 0 else None, gapdist=1)
                qaddr.append(tk)
                if o.kind == 'valu':
                    addr_task = tk
        first = True
        for f in range(12):
            F = 12 * h + f
            if h == 0 and f < 3:
                continue
            tag = (kind.lower(), u, t, f)
            rs = k_read(f, FR(F % 4), tag) if kind == 'K' else v_read(f, FR(F % 4), tag)
            e = 5 * (F - 4) + 4
            if h >= 1:
                e = max(e, bar)
            for r in rs:
                tk = Task(r, earliest=e, after=addr_task if first else None, gapdist=1)
                first = False
                qds.append(tk)
                last_read[kind] = tk
        for f in range(12):
            F = 12 * h + f
            if F == 0:
                continue
            fixed.setdefault(5 * F - 1, []).append(dswait([(kind.lower(), u, t, f)]))
        x = h + 6
        gid = g0 + x if x < 32 else nxt + (x - 32)
        ops = []
        for o in dma_item(gid):
            if A_WIN is not None and o.kind == 'dma' and x < 32:
                ops.append(I(f"s_waitcnt vmcnt({A_WIN})"))
            ops.append(o)
        for o in ops:
            if A_BURST and h < 26:
                qdma.append(Task(o, earliest=max(0, (bar + 1) if h % 2 == 0 else (bar + 61))))
            else:
                qdma.append(Task(o, earliest=max(0, bar + 1)))
        if kind == 'K':
            tb = 0
            for st in range(2):
                for i in range(5):
                    ops = sm_ops(t & 1, st, i, tb)
                    tb += 4
                    ex = []
                    for k, o in enumerate(ops[:4]):
                        aft = None
                        if k == 0:
                            aft = prev_branch if i == 0 else (grp_last[-2] if i >= 2 else None)
                        tk = Task(o, earliest=base + 30, mf_after=base + 30 * st + 25 + i, after=aft, gapdist=(0 if i == 0 else 1))
                        qexp.append(tk)
                        ex.append(tk)
                    for o in ops[4:]:
                        dep = max(k for k in range(4) if f"v{E0 + (tb - 4 + k) % 8}" in [x.strip() for x in o.txt.split(None, 1)[1].split(',')[1:]])
                        tk = Task(o, earliest=base, after=ex[dep], gapdist=1)
                        qsm.append(tk)
                    grp_last.append(tk)
                qsm.append(Task(I(f"v_max3_f32 v{CHK}, v{TS0}, v{TS0+1}, v{TS0+2}"), earliest=base))
                qsm.append(Task(I(f"v_max3_f32 v{CHK}, v{CHK}, v{TS0+3}, v{TS0+4}"), earliest=base))
                chk = Task(I(f"v_cmp_ngt_f32 vcc, 2.0, v{CHK}"), earliest=base)
                qsm.append(chk)
                br = I(f"s_cbranch_vccnz @TRAMP{'AB'[st]}{t & 1}@")
                if st == 0:
                    prev_branch = Task(br, earliest=base + 68, after=chk, gapdist=1)
                    qsm.append(prev_branch)
                    deadlines.append((prev_branch, base + 119))
                    e_add = base
                else:
                    bg = base + 149 if t < 15 else base + 119
                    fixed.setdefault(bg, []).append(br)
                    deadlines.append((chk, bg - 1))
                    prev_branch = None
                    e_add = bg + 1
                for i in range(5):
                    qsm.append(Task(I(f"v_add_f32 v{L0+i}, v{L0+i}, v{TS0+i}"), earliest=e_add))
    gaps, left = schedule(mf, [qds, qaddr, qdma, qexp, qsm], fixed, tail_ok=False,
                          greedy_scalar=lambda g: g >= 1800 or (A_BURST and ((g + 12) % 120) < 40), vm_space=lambda g: (VM_A if g < 1790 else 3),
                          capf=lambda g: (3 if 1710 <= g < 1800 else 2))
    for tk, g in must_before:
        assert tk.gap < g, (tk.gap, g)
    for tk, g in deadlines:
        assert tk.gap <= g, f"softmax check too late: {tk.gap} vs {g}"
    blocks.append(('a1h', flatten(mf, gaps, 0, 30)))
    for t in range(1, 15):
        blocks.append((f'a{t}', flatten(mf, gaps, 120 * (t - 1) + 30, 120 * t + 30)))
    blocks.append(('a15', flatten(mf, gaps, 1710, 1800)))
    blocks.append(('apost', flatten(mf, gaps, 1800, 1860)))

    blocks.append(('lred', l_reduce()))
    sg = sig_code(E0, f"s{S_UNIT}", S_GRP, "@L1@", ('wb', u))
    k = [b[0] for b in blocks].index(ASIG_BEFORE)
    blocks[k:k] = [('asig', sg)]
    return blocks


S_RET2 = 80


def slow_paths():
    o = [I("L_slowC:"), I("s_nop 7")]
    for i in range(5):
        a, b = Sr(0, i), Sr(1, i)
        e0, e1 = E0, E0 + 1
        o += [I(f"v_max3_f32 v{e0}, v{a}, v{a+1}, v{a+2}"),
              I(f"v_max3_f32 v{e0}, v{e0}, v{a+3}, v{b}"),
              I(f"v_max3_f32 v{e0}, v{e0}, v{b+1}, v{b+2}"),
              I(f"v_max_f32 v{e0}, v{e0}, v{b+3}"),
              I(f"v_mov_b32 v{e1}, v{e0}"),
              I("s_nop 1"),
              I(f"v_permlane32_swap_b32 v{e0}, v{e1}"),
              I(f"v_max_f32 v{e0}, v{e0}, v{e1}"),
              I(f"v_mov_b32 v{e1}, v{e0}"),
              I("s_nop 1"),
              I(f"v_permlane16_swap_b32 v{e0}, v{e1}"),
              I(f"v_max_f32 v{e0}, v{e0}, v{e1}"),
              I(f"v_ceil_f32 v{e0}, v{e0}"),
              I(f"v_add_f32 v{e0}, 0x40e00000, v{e0}"),
              I(f"v_max_f32 v{e0}, s{S_DMIN}, v{e0}")]
        for r in range(4):
            o.append(I(f"v_sub_f32 v{NM(i)+r}, v{NM(i)+r}, v{e0}"))
            o.append(I(f"v_sub_f32 v{a+r}, v{a+r}, v{e0}"))
            o.append(I(f"v_sub_f32 v{b+r}, v{b+r}, v{e0}"))
        o += [I(f"v_cvt_i32_f32 v{e1}, v{e0}"),
              I(f"v_sub_u32 v{TS0+i}, 0, v{e1}"),
              I(f"v_ldexp_f32 v{L0+i}, v{L0+i}, v{TS0+i}")]
    o += [I(f"s_cmp_eq_u32 s{S_FORCED}, 1"), I(f"s_cbranch_scc1 L_slowC_ret")]
    k = 0
    for n in range(12):
        for i in range(5):
            for r in range(4):
                e = E0 + k % 8
                k += 1
                o += [I(f"v_accvgpr_read_b32 v{e}, a{Oa(n,i)+r}"),
                      I(f"v_ldexp_f32 v{e}, v{e}, v{TS0+i}"),
                      I(f"v_accvgpr_write_b32 a{Oa(n,i)+r}, v{e}")]
    o += [I("L_slowC_ret:"), I(f"s_setpc_b64 s[{S_RET2}:{S_RET2+1}]")]
    res = [o]

    def sm(par, st):
        out, tb = [], 0
        for i in range(5):
            out += sm_ops(par, st, i, tb)
            tb += 4
        return out

    def presc(regs_by_i):
        out = []
        for i, regs in enumerate(regs_by_i):
            for p in regs:
                out += [I(f"v_lshlrev_b32 v{E0}, 16, v{p}"), I(f"v_and_b32 v{E0+1}, 0xffff0000, v{p}"),
                        I(f"v_ldexp_f32 v{E0}, v{E0}, v{TS0+i}"), I(f"v_ldexp_f32 v{E0+1}, v{E0+1}, v{TS0+i}"),
                        I(f"v_cvt_pk_bf16_f32 v{p}, v{E0}, v{E0+1}")]
        return out

    call = I(f"s_call_b64 s[{S_RET2}:{S_RET2+1}], L_slowC")
    ret = [I("s_nop 1"), I(f"s_setpc_b64 s[{S_RET}:{S_RET+1}]")]
    for par in range(2):
        res.append([I(f"L_slowA{par}:"), call] + presc([[Pr(par ^ 1, i) + k for k in range(4)] for i in range(5)]) + sm(par, 0) + ret)
        res.append([I(f"L_slowB{par}:"), call] + presc([[Pr(par, i) + k for k in range(2)] for i in range(5)]) + sm(par, 1) + ret)
    ladd = [I(f"v_add_f32 v{L0+i}, v{L0+i}, v{TS0+i}") for i in range(5)]
    res.append([I("L_slowF:"), call] + sm(0, 0) + ladd + sm(0, 1) + ladd + ret)
    return res


def PACC(nt, i): return 4 * (5 * i + nt)
def PWF(s, nt): return 100 + 20 * (s % 2) + 4 * nt
NOB = 6
def POF(k): return 140 + 4 * (k % NOB)
P_RAO, P_RAW, VO, P_T, P_D, P_F = 164, 167, 174, 178, 186, 194
WIN = 61440
OP_CAP3 = 700
VM_OP2 = 3
OP_DRAIN_GAP = 0
OP_LEAD = 17
SIG_P = 13
POLL_P = 17


def poll_check(P, lab, d, soff, want):
    o = [I(x) for x in (
        f"s_mov_b32 s{S_T3}, 0x80000",
        f"{lab}:",
        f"v_cmp_{'gt' if want == 8 else 'ne'}_u32 vcc, {want}, v{P+1}",
        f"s_sub_u32 s{S_T3}, s{S_T3}, 1",
        f"s_cmp_eq_u32 s{S_T3}, 0",
        f"s_cbranch_scc1 {lab}_out",
        f"s_cbranch_vccz {lab}_out",
        "s_sleep 1")]
    o.append(I(f"buffer_load_dword v{P+1}, v{P}, {srd(d)}, {soff} offen sc1", kind='xvmem'))
    o += [I("s_waitcnt vmcnt(0)", kind='xsalu'), I(f"s_branch {lab}"), I(f"{lab}_out:")]
    return o


def tail1_issue(name, ws):
    e = E0
    o = [I(f"s_mov_b32 s{S_U1}, m0"), I(f"v_mov_b32 v{e}, 0"), I(f"s_mov_b32 m0, s{S_SPARE}"), I("s_nop 0"),
         I(f"buffer_load_dword v{e}, {srd(sD)}, s{S_GRP} offen sc1 lds", tag='poll0'),
         I(f"s_mov_b32 m0, s{S_U1}")]
    o += lane_id(e)
    o += [I(x) for x in (
        f"v_lshlrev_b32 v{LP_X}, 4, v{e}",
        f"s_cmp_eq_u32 s{S_J}, 0",
        f"s_cselect_b32 s{sP}, s{sO}, s{sWo}",
        f"s_cselect_b32 s{sP+1}, s{sO+1}, s{sWo+1}",
        f"s_cselect_b32 s{sP+2}, s{sO+2}, s{sWo+2}",
        f"s_cbranch_scc0 L_{name}_wpat")]
    o += [I(f"v_mov_b32 v{OPV[k]}, v{LP_X}") for k in range(4)]
    o += [I(f"v_add_u32 v{OPV[4]}, 4096, v{LP_X}"), I(f"s_branch L_{name}_wpatd"), I(f"L_{name}_wpat:")]
    for n in range(5):
        o += [I(x) for x in (
            f"v_add_u32 v{e+1}, {64*n}, v{e}",
            f"v_mul_u32_u24 v{e+2}, 205, v{e+1}",
            f"v_lshrrev_b32 v{e+2}, 12, v{e+2}",
            f"v_mul_u32_u24 v{e+3}, 20, v{e+2}",
            f"v_sub_u32 v{e+1}, v{e+1}, v{e+3}",
            f"v_lshrrev_b32 v{e+3}, 1, v{e+2}",
            f"v_and_b32 v{e+3}, 2, v{e+3}",
            f"v_xor_b32 v{e+1}, v{e+1}, v{e+3}",
            f"v_lshlrev_b32 v{e+1}, 4, v{e+1}",
            f"v_mul_u32_u24 v{e+2}, 1280, v{e+2}",
            f"v_add_u32 v{e+1}, v{e+1}, v{e+2}",
            f"v_subrev_u32 v{OPV[n]}, {1024*n if n < 4 else 0}, v{e+1}")]
    o += [I(x) for x in (
        f"L_{name}_wpatd:",
        f"s_add_u32 s{sE}, s6, {ws['e_off']}",
        f"s_addc_u32 s{sE+1}, s7, 0",
        f"s_and_b32 s{sE+1}, s{sE+1}, 0xffff",
        f"s_mov_b32 s{sE+2}, {ws['e_bytes']}")]
    return o


def tail1_check(name):
    o = [vmwait('poll0'), I(f"v_mov_b32 v{E0+2}, s{S_SPARE}"),
         I(f"ds_read_b32 v{E0+1}, v{E0+2}", tag='poll0d'), I(f"v_mov_b32 v{E0}, 0"), dswait('poll0d')]
    o += poll_check(E0, f"L_{name}_poll0", sD, f"s{S_GRP}", 8)
    return o


def op_phase(name):
    blocks = []
    u = NUNITS - 1
    addr, when = op_addrs()
    t = P_T
    pro = [I(x) for x in (
        f"v_mov_b32 v{VO}, v{LP_X}", f"v_add_u32 v{VO+1}, 4096, v{LP_X}",
        f"v_mov_b32 v{P_F}, 0")]
    pro += [I(f"buffer_load_dword v{P_F+2}, v{P_F}, {srd(sE)}, s{S_FOWN} offen sc1", tag='flag0'),
            I(f"buffer_load_dword v{P_F+3}, v{P_F}, {srd(sE)}, s{S_FPART} offen sc1", tag='flag0')]
    pro += [I(x) for x in (
        f"s_mul_i32 s{S_T3}, s{S_R}, 5120", f"v_add_u32 v{P_RAO}, s{S_T3}, v{LP_X}",
        f"v_lshrrev_b32 v{t}, 6, v{LP_X}",
        f"v_mul_u32_u24 v{t+1}, 320, v{t}",
        f"v_bfe_u32 v{t+2}, v{LP_X}, 4, 2",
        f"v_lshl_add_u32 v{t+1}, v{t+2}, 3, v{t+1}",
        f"s_mul_i32 s{S_T3}, s{S_J}, 160", f"s_add_u32 s{S_T3}, s{S_T3}, 10240",
        f"v_add_u32 v{t+1}, s{S_T3}, v{t+1}",
        f"v_bfe_u32 v{t+2}, v{t}, 2, 1",
        f"v_lshlrev_b32 v{t+2}, 5, v{t+2}",
        f"s_lshl_b32 s{S_T3}, s{S_J}, 1", f"s_sub_u32 s{S_T3}, 1, s{S_T3}",
        f"v_mul_lo_u32 v{t+2}, v{t+2}, s{S_T3}",
        f"v_add_u32 v{P_RAW}, v{t+1}, v{t+2}",
        f"v_sub_u32 v{P_RAW+3}, v{t+1}, v{t+2}")]
    P_PF = 198
    pro += [I(x) for x in (
        f"v_lshlrev_b32 v{t}, 3, v{LP_X}",
        f"v_cmp_gt_u32 vcc, {20*16}, v{LP_X}",
        f"v_mov_b32 v{t+1}, 0x7ffffff0",
        f"s_and_b32 s{S_PFQ}, s2, {3 if ROT_OP else 0}",
        f"v_cndmask_b32 v{P_PF}, v{t+1}, v{t}, vcc")]

    def pf(p):
        run, off, rnd = (p % 24) // 6, p % 6, p // 24
        return [I(f"s_add_u32 s{S_PFS}, s{S_PFQ}, {run}"), I(f"s_and_b32 s{S_PFS}, s{S_PFS}, 3"),
                I(f"s_mul_i32 s{S_PFS}, s{S_PFS}, 24"), I(f"s_add_u32 s{S_PFS}, s{S_PFS}, {12*rnd + 2*off}"),
                I(f"s_mul_i32 s{S_PFS}, s{S_PFS}, s{S_PADV}"), I(f"s_add_u32 s{S_PFS}, s{S_PFS}, s100"),
                I(f"buffer_load_dword v{P_PF+1}, v{P_PF}, {srd(sP)}, s{S_PFS} offen{HAND}", tag='opf')]
    for j in (1, 2):
        pro += [I(f"v_add_u32 v{P_RAO+j}, {WIN*j}, v{P_RAO}"), I(f"v_add_u32 v{P_RAW+j}, {WIN*j}, v{P_RAW}"),
                I(f"v_add_u32 v{P_RAW+3+j}, {WIN*j}, v{P_RAW+3}")]
    pro += [bothwait([OP0, OP0 + 1]), I("s_barrier")]

    def rd(s_, kind, k):
        j, rem = divmod(addr[s_], WIN)
        if kind == 'w':
            b = PWF(s_, k)
            return [I(f"ds_read_b64_tr_b16 v[{b+2*h}:{b+2*h+1}], v{P_RAW+3*(k & 1)+j} offset:{rem + 32*k + 5120*h}", tag=('pf', s_, 'w'))
                    for h in range(2)]
        return [I(f"ds_read_b128 {vq(POF(5*s_+k))}, v{P_RAO+j} offset:{rem + 1024*k}", tag=('pf', s_, k))]

    for k in range(5):
        pro += rd(0, 'w', k)
    for k in range(3):
        pro += rd(0, 'o', k)
    pro.append(dswait([('pf', 0, 0)]))
    mf, fixed = [], {}
    qds, qdma, qdr = [], [], []
    bar = {p: 50 * p - OP_LEAD for p in range(1, NK // 2)}
    bar[0] = -1
    must_before = []
    for s_ in range(NK):
        base = 25 * s_
        p = s_ // 2
        if s_ % 2 == 0 and p >= 1:
            fixed.setdefault(bar[p], []).extend([bothwait([OP0 + s_, OP0 + s_ + 1]), I("s_barrier")])
            must_before.append((qds[-1], bar[p]))
        for i in range(5):
            for nt in range(5):
                c = "0" if s_ == 0 else vq(PACC(nt, i))
                mf.append(I(f"{MF} {vq(PACC(nt,i))}, {vq(PWF(s_,nt))}, {vq(POF(5*s_+i))}, {c}"))
            if base + 5 * i > 0:
                tags = [('pf', s_, i)] + ([('pf', s_, 'w')] if i == 0 else [])
                fixed.setdefault(base + 5 * i - 1, []).append(dswait(tags))
        if s_ > 0:
            e = max(25 * (s_ - 1), bar[p])
            for k in range(5):
                for r in rd(s_, 'w', k):
                    qds.append(Task(r, earliest=e))
        for k in range(5):
            if s_ == 0 and k < 3:
                continue
            e = max(5 * (5 * s_ + k - NOB) + 4, bar[p])
            qds.append(Task(rd(s_, 'o', k)[0], earliest=e))
    first_r1 = None
    for it in range(5, NK):
        for o in dma_op_item(it, OPV):
            tk = Task(o, earliest=bar[when[it]] + 1)
            qdma.append(tk)
            if it == 48 and first_r1 is None:
                first_r1 = tk
    qpf = []
    if OPF:
        for p in range(4, NK // 2):
            e = max(0, 50 * (p - OPFD))
            if p >= 24:
                e = max(e, 50 * (POLL_P + 2))
            for o in pf(p):
                qpf.append(Task(o, earliest=e + 10))
    k = 0
    for m in range(6):
        for i in range(5):
            for o in drain_group(u, m, i, P_T, P_D + 4 * (k % 2), VO, VO + 1, False):
                qdr.append(Task(o, earliest=int((5 * m + i) * OP_DRAIN_GAP)))
            k += 1
    gaps, left = schedule(mf, [qds, qpf, qdma, qdr], fixed, tail_ok=False, greedy_scalar=lambda g: True,
                          capf=lambda g: (3 if g < OP_CAP3 else 2), vm_space=lambda g: (VM_OP if g < 50 * SIG_P else VM_OP2))
    for tk, g in must_before:
        assert tk.gap < g, (tk.gap, g)
    op_phase.info = dict(drain_end=qdr[-1].gap, first_r1=first_r1.gap)
    assert qdr[-1].gap < 50 * (SIG_P - 1), qdr[-1].gap
    assert first_r1.gap >= 50 * (POLL_P + 2), first_r1.gap
    blocks.append(('oppro', pro))
    for p in range(NK // 2):
        pre = []
        if p == SIG_P:
            pre += [vmwait([('st', u), 'flag0']), I("s_barrier")]
            pre += [I(f"s_add_u32 s{S_T3}, s{S_GRP}, 4")]
            pre += sig_code(P_T, "1", S_T3, f"L_{name}_sig1")
        if p == POLL_P:
            pre += [I(f"s_add_u32 s{S_U0}, s{S_GRP}, 4"),
                    I(f"buffer_load_dword v{P_F+1}, v{P_F}, {srd(sD)}, s{S_U0} offen sc1", tag='poll1')]
        if p == POLL_P + 2 and not NOPOLL:
            pre.append(vmwait('poll1'))
            pre += poll_check(P_F, f"L_{name}_poll1", sD, f"s{S_U0}", 8)
        if pre:
            blocks.append((f'opx{p}', pre))
        blocks.append((f'op{p}', flatten(mf, gaps, 50 * p, 50 * p + 50)))
    epi = []
    E = lambda t, **kw: epi.append(I(t, **kw))
    CA, R0 = 200, 100
    E(f"v_add_u32 v{VO+2}, 8192, v{VO}")
    E(f"v_add_u32 v{VO+3}, 12288, v{VO}")
    E(f"v_add_u32 v{P_F+2}, 1, v{P_F+2}")
    E(f"v_add_u32 v{P_F+3}, 1, v{P_F+3}")
    E(f"v_lshrrev_b32 v{CA}, 4, v{VO}")
    E(f"v_and_b32 v{CA+1}, 15, v{CA}")
    E(f"v_lshrrev_b32 v{CA}, 4, v{CA}")
    E(f"v_lshlrev_b32 v{CA}, 3, v{CA}")
    E(f"v_mul_u32_u24 v{CA+1}, 2560, v{CA+1}")
    E(f"v_add_u32 v{CA}, v{CA}, v{CA+1}")
    E(f"s_cmp_ge_u32 s{S_QUAD}, 4")
    E(f"s_cbranch_scc1 L_{name}_ex1")
    for kh in range(2):
        if kh:
            E(f"L_{name}_ex1:")
        keep = list(range(0, 13)) if kh == 0 else list(range(13, 25))
        send = [t for t in range(25) if t not in keep]
        for k, tl in enumerate(send):
            E(f"buffer_store_dwordx4 {vq(4*tl)}, v{VO + k // 4}, {srd(sE)}, s{S_ESND} offen offset:{1024*(k % 4)} sc1", kind='xvmem')
        E("s_waitcnt vmcnt(0)")
        E("s_mov_b64 exec, 1")
        E(f"buffer_store_dword v{P_F+2}, v{P_F}, {srd(sE)}, s{S_FOWN} offen sc1", kind='xvmem')
        E("s_mov_b64 exec, -1")
        E(f"buffer_load_dword v{P_F+1}, v{P_F}, {srd(sE)}, s{S_FPART} offen sc1", kind='xvmem')
        E("s_waitcnt vmcnt(0)")
        epi += poll_check(P_F, f"L_{name}_pollx{kh}", sE, f"s{S_FPART}", f"v{P_F+3}")
        for k, tl in enumerate(keep):
            E(f"buffer_load_dwordx4 {vq(R0+4*k)}, v{VO + k // 4}, {srd(sE)}, s{S_ERCV} offen offset:{1024*(k % 4)} sc1", kind='xvmem')
        for k, tl in enumerate(keep):
            i, nt = divmod(tl, 5)
            a, r = 4 * tl, R0 + 4 * k
            if k == 0 or nt == 0:
                E(f"s_add_u32 s{S_T0}, s{S_COFF}, {i*16*2560}")
            E(f"s_waitcnt vmcnt({len(keep) - 1})")
            E(f"v_pk_add_f32 v[{a}:{a+1}], v[{a}:{a+1}], v[{r}:{r+1}]")
            E(f"v_pk_add_f32 v[{a+2}:{a+3}], v[{a+2}:{a+3}], v[{r+2}:{r+3}]")
            E(f"v_cvt_pk_bf16_f32 v{a}, v{a}, v{a+1}")
            E(f"v_cvt_pk_bf16_f32 v{a+1}, v{a+2}, v{a+3}")
            E(f"buffer_store_dwordx2 v[{a}:{a+1}], v{CA}, {srd(sC)}, s{S_T0} offen offset:{32*nt}", kind='xvmem')
        if kh == 0:
            E(f"s_branch L_{name}_exdone")
    E(f"L_{name}_exdone:")
    blocks.append(('opepi', epi))
    return blocks


def prologue(name, ws):
    o = []
    A = lambda t: o.append(I(t))
    A(f"{name}:")
    A("s_cmp_ge_u32 s2, 256")
    A(f"s_cbranch_scc1 L_{name}_done")
    XCD, IDX, BLK, B, QUAD = 88, 89, 90, 91, 92
    if CODE_WARM:
        A("s_getpc_b64 s[4:5]")
        A(f"L_{name}_pc:")
        A("s_lshr_b32 s88, s2, 3")
        A("s_lshl_b32 s88, s88, 12")
        A("v_lshlrev_b32 v4, 4, v0")
        A("v_add_u32 v4, s88, v4")
        A(f"v_min_u32 v4, L_{name}_end-L_{name}_pc-16, v4")
        o.append(I("global_load_dwordx4 a[236:239], v4, s[4:5]", tag='touch'))
    A(f"s_and_b32 s{XCD}, s2, 7")
    if XPERM:
        A(f"s_add_u32 s{XCD}, s{XCD}, {XPERM}")
        A(f"s_and_b32 s{XCD}, s{XCD}, 7")
    if STAMPS:
        A("s_getreg_b32 s99, hwreg(HW_REG_XCC_ID)")
    A(f"s_lshr_b32 s{IDX}, s2, 3")
    A(f"s_lshr_b32 s{BLK}, s{XCD}, 2")
    A(f"s_and_b32 s{B}, s{XCD}, 3")
    A(f"s_lshl_b32 s{B}, s{B}, 2")
    A(f"s_lshr_b32 s{QUAD}, s{IDX}, 3")
    A(f"s_add_u32 s{B}, s{B}, s{QUAD}")
    A(f"s_and_b32 s{QUAD}, s{IDX}, 7")
    if ONLY:
        A(f"s_and_b32 s4, s{B}, {ONLY}")
        A("s_cmp_lg_u32 s4, 0")
        A(f"s_cbranch_scc1 L_{name}_done")
    if DELAY:
        A(f"s_and_b32 s4, s{B}, {DELAY_MASK}")
        A(f"s_mul_i32 s4, s4, {DELAY}")
        A(f"L_{name}_dl:")
        A("s_cmp_eq_u32 s4, 0")
        A(f"s_cbranch_scc1 L_{name}_dld")
        A("s_sleep 32")
        A("s_sub_u32 s4, s4, 1")
        A(f"s_branch L_{name}_dl")
        A(f"L_{name}_dld:")
    A(f"s_mul_i32 s4, s{BLK}, 40")
    A("s_add_u32 s4, s0, s4")
    A("s_addc_u32 s5, s1, 0")
    A(f"s_load_dwordx2 s[{sX}:{sX+1}], s[4:5], 0")
    A(f"s_load_dwordx2 s[{sK}:{sK+1}], s[4:5], 8")
    A(f"s_load_dwordx2 s[{sV}:{sV+1}], s[4:5], 16")
    A(f"s_load_dwordx2 s[{sW}:{sW+1}], s[4:5], 24")
    A(f"s_load_dwordx2 s[{sWo}:{sWo+1}], s[4:5], 32")
    A(f"s_load_dwordx2 s[{sC}:{sC+1}], s[0:1], 80")
    A(f"s_load_dwordx2 s[{sD}:{sD+1}], s[0:1], 88")
    A("s_load_dwordx2 s[6:7], s[0:1], 96")
    A("v_lshrrev_b32 v1, 6, v0")
    A("v_and_b32 v0, 63, v0")
    A(f"v_readfirstlane_b32 s{S_WAVE}, v1")
    A("s_nop 3")
    A(f"s_lshr_b32 s{S_J}, s{S_WAVE}, 1")
    A(f"s_and_b32 s{S_R}, s{S_WAVE}, 1")
    T, T2, H, BH = 93, 94, 95, 96
    for n in range(3):
        A(f"v_add_u32 v3, {64*n}, v0")
        A("v_mul_u32_u24 v1, 171, v3")
        A("v_lshrrev_b32 v1, 12, v1")
        A("v_mul_u32_u24 v2, 24, v1")
        A("v_sub_u32 v2, v3, v2")
        A("v_bfe_u32 v4, v1, 1, 1")
        A("v_mul_u32_u24 v5, 3, v4")
        A("v_and_b32 v6, 4, v1")
        A("v_or_b32 v5, v5, v6")
        A("v_xor_b32 v5, v5, v2")
        A("v_lshlrev_b32 v5, 4, v5")
        A("v_mul_u32_u24 v6, 384, v1")
        A("v_add_u32 v5, v5, v6")
        A(f"v_subrev_u32 v{PAT_KV+n}, {1024*n}, v5")
        A("v_and_b32 v5, 2, v1")
        A(f"s_lshl_b32 s{T}, s{S_R}, 2")
        A(f"v_or_b32 v5, s{T}, v5")
        A("v_xor_b32 v5, v5, v2")
        A("v_lshlrev_b32 v5, 4, v5")
        A("v_mul_u32_u24 v6, 12288, v1")
        A("v_add_u32 v5, v5, v6")
        A(f"v_subrev_u32 v{PAT_W+n}, {1024*n}, v5")
    A("v_lshrrev_b32 v1, 3, v0")
    A("v_and_b32 v2, 7, v0")
    A("v_and_b32 v4, 6, v1")
    A("v_xor_b32 v2, v2, v4")
    A("v_lshlrev_b32 v2, 4, v2")
    A("v_mul_u32_u24 v1, 1280, v1")
    A(f"v_add_u32 v{PAT_X}, v1, v2")
    A(f"s_mul_i32 s{T}, s{S_J}, 12288")
    A(f"s_mul_i32 s{T2}, s{S_R}, {16*384}")
    A(f"s_add_u32 s{S_CKV}, s{T}, s{T2}")
    A(f"s_mul_i32 s{T2}, s{S_R}, {8*384}")
    A(f"s_add_u32 s{S_CW}, s{T}, s{T2}")
    A(f"s_mul_i32 s{S_C5}, s{S_WAVE}, 5120")
    A(f"s_lshl_b32 s{H}, s{QUAD}, 2")
    A(f"s_add_u32 s{H}, s{H}, s{S_J}")
    A(f"s_mul_i32 s{S_WBASE}, s{H}, 384")
    A(f"s_mul_i32 s{T2}, s{S_R}, {8*12288}")
    A(f"s_add_u32 s{S_WBASE}, s{S_WBASE}, s{T2}")
    A(f"s_sub_u32 s{S_WBASE}, s{S_WBASE}, 768")
    A(f"s_mul_i32 s{S_XBASE}, s{B}, 204800")
    A(f"s_mul_i32 s{T2}, s{S_WAVE}, {40*1280}")
    A(f"s_add_u32 s{S_XBASE}, s{S_XBASE}, s{T2}")
    A(f"s_mul_i32 s{S_CX}, s{S_WAVE}, 5120")
    A(f"s_and_b32 s{T}, s{XCD}, 3")
    A(f"s_mul_i32 s{T}, s{T}, 5")
    A(f"s_add_u32 s{T}, s{T}, 1")
    A(f"s_lshr_b32 s{T}, s{T}, 1")
    if not ROT:
        A(f"s_mov_b32 s{T}, 0")
    A(f"s_mul_i32 s{S_WREL0}, s{T}, {64*12288}")
    A(f"s_lshl_b32 s{S_XREL0}, s{T}, 7")
    A(f"s_mov_b32 s{S_WR}, 0")
    A(f"s_mov_b32 s{S_RD}, 0")
    A(f"s_lshl_b32 s{S_SPARE}, s{S_WAVE}, 12")
    A(f"s_add_u32 s{S_SPARE}, s{S_SPARE}, {SPARE}")
    A("s_waitcnt lgkmcnt(0)")
    for b, nbytes in ((sX, 16*160*640*2), (sK, 16*32*512*192*2), (sV, 16*32*512*192*2), (sW, 640*6144*2),
                      (sWo, 6144*640*2), (sC, 16*160*1280*2), (sD, 256)):
        A(f"s_and_b32 s{b+1}, s{b+1}, 0xffff")
        A(f"s_mov_b32 s{b+2}, {nbytes}")
        A(f"s_mov_b32 s{b+3}, 0x20000")
    for g in range(2 if FAST0 else 5):
        o += straight(dma_item(g))
    A(f"s_and_b32 s{T}, s{XCD}, 3")
    A(f"s_lshl_b32 s{T}, s{T}, 5")
    A(f"s_add_u32 s{T}, s{T}, s{IDX}")
    A(f"s_lshl_b32 s{T}, s{T}, 2")
    A(f"s_add_u32 s{T}, s{T}, s{S_WAVE}")
    A(f"s_mul_i32 s{S_TWO}, s{T}, 15360")
    if WARM:
        A(f"s_lshl_b32 s{T2}, s{QUAD}, 2")
        A(f"s_add_u32 s{T2}, s{T2}, s{S_WAVE}")
        A(f"s_mul_i32 s{T2}, s{T2}, 6400")
        A(f"s_mul_i32 s{T}, s{B}, 204800")
        A(f"s_add_u32 s{T}, s{T}, s{T2}")
        A(f"s_mov_b32 m0, s{S_SPARE}")
        A("v_lshlrev_b32 v4, 7, v0")
        o.append(I(f"buffer_load_dword v4, {srd(sX)}, s{T} offen{X_POL} lds", tag='touch'))
    A("v_and_b32 v1, 15, v0")
    A("v_lshrrev_b32 v2, 4, v0")
    A(f"s_mul_i32 s{T}, s{S_J}, 12288")
    A("v_and_b32 v3, 1, v2")
    A("v_lshlrev_b32 v3, 1, v3")
    A("v_lshrrev_b32 v4, 1, v2")
    A("v_or_b32 v3, v3, v4")
    A("v_bfe_u32 v4, v1, 1, 1")
    A("v_mul_u32_u24 v4, 3, v4")
    A("v_and_b32 v5, 4, v1")
    A("v_or_b32 v4, v4, v5")
    A("v_xor_b32 v3, v3, v4")
    A("v_lshlrev_b32 v3, 4, v3")
    A("v_mul_u32_u24 v4, 384, v1")
    A(f"v_add3_u32 v{LP_K}, v3, v4, s{T}")
    A("v_lshrrev_b32 v3, 2, v1")
    A("v_and_b32 v4, 3, v0")
    A("v_lshl_add_u32 v5, v2, 2, v3")
    A("v_bfe_u32 v6, v5, 1, 1")
    A("v_mul_u32_u24 v6, 3, v6")
    A("v_and_b32 v7, 4, v5")
    A("v_or_b32 v6, v6, v7")
    A("v_lshrrev_b32 v7, 1, v4")
    A("v_xor_b32 v6, v6, v7")
    A("v_lshlrev_b32 v6, 4, v6")
    A("v_and_b32 v8, 1, v4")
    A("v_lshl_add_u32 v6, v8, 3, v6")
    A("v_mul_u32_u24 v5, 384, v5")
    A(f"v_add3_u32 v{LP_V}, v5, v6, s{T}")
    A("v_lshl_add_u32 v5, v2, 3, v3")
    A("v_and_b32 v6, 2, v3")
    A("v_and_b32 v9, 1, v2")
    A("v_lshl_or_b32 v6, v9, 2, v6")
    A("v_xor_b32 v6, v6, v7")
    A("v_lshlrev_b32 v6, 4, v6")
    A("v_lshl_add_u32 v6, v8, 3, v6")
    A("v_mul_u32_u24 v5, 384, v5")
    A(f"v_add3_u32 v{LP_W}, v5, v6, s{T}")
    A(f"s_mul_i32 s{T}, s{S_R}, 10240")
    A("v_lshrrev_b32 v3, 3, v1")
    A("v_lshlrev_b32 v3, 10, v3")
    A("v_and_b32 v4, 7, v1")
    A("v_lshl_add_u32 v3, v4, 7, v3")
    A("v_and_b32 v4, 6, v1")
    A("v_xor_b32 v4, v4, v2")
    A("v_lshlrev_b32 v4, 4, v4")
    A(f"v_add3_u32 v{LP_X}, v3, v4, s{T}")
    A(f"s_lshl_b32 s{BH}, s{B}, 5")
    A(f"s_add_u32 s{BH}, s{BH}, s{H}")
    A(f"s_mul_i32 s{S_KOFF}, s{BH}, 196608")
    A(f"s_mul_i32 s{T2}, s{S_R}, {16*384}")
    A(f"s_add_u32 s{S_KOFF}, s{S_KOFF}, s{T2}")
    A(f"s_mov_b32 s{S_VOFF}, s{S_KOFF}")
    GB = 97
    A(f"s_lshl_b32 s{GB}, s{BLK}, 4")
    A(f"s_add_u32 s{GB}, s{GB}, s{B}")
    A(f"s_mul_i32 s{T}, s{GB}, {192*10240}")
    A(f"s_add_u32 s{T}, s{T}, {ws['o_off']}")
    A(f"s_add_u32 s{sO}, s6, s{T}")
    A(f"s_addc_u32 s{sO+1}, s7, 0")
    A(f"s_and_b32 s{sO+1}, s{sO+1}, 0xffff")
    A(f"s_mov_b32 s{sO+2}, 0")
    A(f"s_mov_b32 s{S_OADV}, 0")
    A(f"s_mov_b32 s{sO+3}, 0x20000")
    A(f"s_mul_i32 s{T}, s{QUAD}, 24")
    A(f"s_mul_i32 s{T2}, s{S_J}, 6")
    A(f"s_add_u32 s{T}, s{T}, s{T2}")
    A(f"s_mul_i32 s{S_OOFF}, s{T}, 10240")
    A(f"s_mul_i32 s{T2}, s{S_R}, 5120")
    A(f"s_add_u32 s{S_OOFF}, s{S_OOFF}, s{T2}")
    A(f"s_lshr_b32 s{T}, s{QUAD}, 2")
    A(f"s_and_b32 s{T2}, s{QUAD}, 3")
    A(f"s_mul_i32 s{S_PADV}, s{S_J}, 30720")
    A(f"s_add_u32 s{S_PADV}, s{S_PADV}, 10240")
    A(f"s_mul_i32 s{S_PSRC}, s{T}, 96")
    A(f"s_mul_i32 s{S_PSRC}, s{S_PSRC}, s{S_PADV}")
    A(f"s_mul_i32 s{H}, s{T2}, 320")
    A(f"s_mul_i32 s{H}, s{H}, s{S_J}")
    A(f"s_add_u32 s{S_PSRC}, s{S_PSRC}, s{H}")
    A(f"s_lshr_b32 s{H}, s{S_PADV}, 1")
    A(f"s_mul_i32 s{H}, s{H}, s{S_R}")
    A(f"s_add_u32 s{S_PSRC}, s{S_PSRC}, s{H}")
    A(f"s_mul_i32 s100, s{T}, 96")
    A(f"s_mul_i32 s100, s100, s{S_PADV}")
    A(f"s_mul_i32 s{H}, s{T2}, 3")
    A(f"s_and_b32 s{BH}, s{B}, 3")
    A(f"s_add_u32 s{H}, s{H}, s{BH}")
    A(f"s_mul_i32 s{H}, s{H}, s{S_J}")
    A(f"s_add_u32 s{H}, s{H}, s{T2}")
    A(f"s_mul_i32 s{H}, s{H}, 5120")
    A(f"s_add_u32 s100, s100, s{H}")
    A(f"s_mul_i32 s{H}, s{S_R}, 2560")
    A(f"s_add_u32 s100, s100, s{H}")
    A(f"s_mov_b32 s{S_PBASE}, s{S_PSRC}")
    A(f"s_and_b32 s{S_PQ}, s{XCD}, {3 if ROT_OP else 0}")
    A(f"s_mul_i32 s{H}, s{S_PQ}, 24")
    A(f"s_mul_i32 s{H}, s{H}, s{S_PADV}")
    A(f"s_add_u32 s{S_PSRC}, s{S_PSRC}, s{H}")
    if FAKE_OP:
        A(f"s_mov_b32 s{S_PADV}, 0")
    A(f"s_mul_i32 s{S_COFF}, s{B}, {160*2560}")
    A(f"s_mul_i32 s{H}, s{S_R}, {80*2560}")
    A(f"s_add_u32 s{S_COFF}, s{S_COFF}, s{H}")
    A(f"s_mul_i32 s{H}, s{BLK}, 1280")
    A(f"s_add_u32 s{S_COFF}, s{S_COFF}, s{H}")
    A(f"s_mul_i32 s{H}, s{T2}, 320")
    A(f"s_add_u32 s{S_COFF}, s{S_COFF}, s{H}")
    A(f"s_mul_i32 s{H}, s{S_J}, 160")
    A(f"s_add_u32 s{S_COFF}, s{S_COFF}, s{H}")
    A(f"s_mov_b32 s{S_QUAD}, s{QUAD}")
    A(f"s_lshl_b32 s{H}, s{GB}, 3")
    A(f"s_add_u32 s{T}, s{H}, s{QUAD}")
    A(f"s_lshl_b32 s{T}, s{T}, 2")
    A(f"s_add_u32 s{T}, s{T}, s{S_WAVE}")
    A(f"s_mul_i32 s{S_ESND}, s{T}, 13312")
    A(f"s_lshl_b32 s{S_FOWN}, s{T}, 7")
    A(f"s_add_u32 s{S_FOWN}, s{S_FOWN}, {1024*13312}")
    A(f"s_xor_b32 s{T}, s{T}, 16")
    A(f"s_mul_i32 s{S_ERCV}, s{T}, 13312")
    A(f"s_lshl_b32 s{S_FPART}, s{T}, 7")
    A(f"s_add_u32 s{S_FPART}, s{S_FPART}, {1024*13312}")
    A(f"s_lshl_b32 s{S_GRP}, s{GB}, 3")
    c = math.log2(math.e) / math.sqrt(192.0)
    cb = struct.unpack('<I', struct.pack('<f', c))[0]
    A(f"s_mov_b32 s{S_SCALE}, 0x{cb:08x}")
    A(f"s_mov_b32 s{S_UNIT}, 0")
    A(f"s_mov_b32 s{S_DMIN}, 0")
    A(f"s_mov_b32 s{S_FORCED}, 0")
    if FAST0:
        for g in (2, 3):
            o += straight(dma_item(g))
    return o


def build(name, ws):
    pro = prologue(name, ws)
    units = []
    for u in range(NUNITS):
        bl = q_phase(u) + a_phase(u)
        if u == 0:
            bl = [b for b in bl if b[0] != 'qdrain']
        else:
            k = [b[0] for b in bl].index('a12')
            bl[k:k] = [('t1issue', tail1_issue(name, ws))]
            k = [b[0] for b in bl].index('a13')
            bl[k:k] = [('t1check', tail1_check(name))]
        units.append(bl)
    opb = op_phase(name)
    stream = list(pro)
    for ub in units:
        for _, b in ub:
            stream += b
    for _, b in opb:
        stream += b
    resolve_waits(stream)
    errs = check_hazards(stream, name)
    for sp in slow_paths():
        errs += check_hazards(sp, 'slow')
    if errs:
        raise RuntimeError("\n".join(errs[:30]))
    ub, ub1 = dict(units[0]), dict(units[1])
    shared = ['qpre0', 'qfin', 'asig', 'a1h'] + [f'q{it}' for it in range(1, 10)] + ([] if FAST0 else ['qpre', 'q0']) + [f'a{t}' for t in range(12)]
    for k in shared:
        merge_min([ub[k], ub1[k]])
    ub.update(dict(opb))
    out = [x.text() for x in pro]
    tramp = []
    cnt = [0]
    nst = [0]

    def stamp(real=False, fine=False):
        if STAMPS and (fine == FINE or real):
            out.extend(["s_memrealtime s[4:5]" if (real or ALLREAL) else "s_memtime s[4:5]", "s_waitcnt lgkmcnt(0)", f"s_mov_b32 s{S_ST+nst[0]}, s4"])
            nst[0] += 1

    def flush_stamps(slot_expr):
        if STAMPS:
            out.extend([f"s_lshl_b32 s4, s2, 2", f"s_add_u32 s4, s4, s{S_WAVE}", "s_lshl_b32 s4, s4, 2",
                        f"s_add_u32 s4, s4, {slot_expr}", "s_lshl_b32 s4, s4, 6",
                        f"s_add_u32 s4, s4, s6", "s_addc_u32 s5, s7, 0",
                        f"s_add_u32 s4, s4, {ws['dbg_off']}", "s_addc_u32 s5, s5, 0",
                        "v_mov_b32 v1, 0"])
            for k in range(nst[0]):
                out.extend([f"v_mov_b32 v2, s{S_ST+k}", f"global_store_dword v1, v2, s[4:5] offset:{4*k}"])
            out.extend(["v_mov_b32 v2, s99", f"global_store_dword v1, v2, s[4:5] offset:{4*14}"])
            out.extend(["v_mov_b32 v2, s101", f"global_store_dword v1, v2, s[4:5] offset:{4*15}"])
            nst[0] = 0

    if STAMPS:
        out[3:3] = ["s_memrealtime s[4:5]" if ALLREAL else "s_memtime s[4:5]", "s_waitcnt lgkmcnt(0)", "s_mov_b32 s101, s4"]

    def emit(block, adv=None):
        k = cnt[0]
        cnt[0] += 1
        for x in block:
            t = x.text()
            if '@TRAMP' in t:
                par = t.split('@TRAMP')[1][:2]
                kk = cnt[0]
                cnt[0] += 1
                out.append(t.replace(f'@TRAMP{par}@', f'L_tr{kk}'))
                out.append(f'L_back{kk}:')
                tramp.extend([f'L_tr{kk}:', f's_call_b64 s[{S_RET}:{S_RET+1}], L_slow{par}', f's_branch L_back{kk}'])
            elif '@L1@' in t:
                out.append(t.replace('@L1@', f'L_sig{k}'))
            elif '@OADV' in t or '@WADV' in t:
                key = t[t.index('@'):]
                if adv and key in adv:
                    out.append(t.replace(key, adv[key]))
                else:
                    out.append(t.replace(key, str(x.extra)))
            else:
                out.append(t)

    def loop(label, names_list, top=None, adv=None):
        body = [sum((ub[n] for n in names), []) for names in names_list]
        merged = merge_min(body)
        out.append(f"s_mov_b32 s{S_LOOP}, {len(names_list)}")
        out.append(".p2align 3")
        out.append(f"{label}:")
        if top:
            out.extend(top)
        emit(merged, adv)
        out.append(f"s_sub_u32 s{S_LOOP}, s{S_LOOP}, 1")
        out.append(f"s_cmp_lg_u32 s{S_LOOP}, 0")
        out.append(f"s_cbranch_scc1 {label}")

    out.append(f"L_{name}_unit:")
    stamp()
    emit(ub['qpre0'])
    out.append(f"s_cmp_eq_u32 s{S_UNIT}, 0")
    out.append(f"s_cbranch_scc1 L_{name}_nodrain")
    emit(ub1['qdrain'])
    if FAST0:
        ns = nst[0]
        emit(ub1['qpre'])
        stamp()
        stamp(fine=True)
        emit(ub1['q0'])
        out.append(f"s_branch L_{name}_q1")
        nst[0] = ns
    out.append(f"L_{name}_nodrain:")
    emit(ub['qpre'])
    stamp()
    for it in range(10):
        if it == 1:
            out.append(f"L_{name}_q1:")
        stamp(fine=True)
        emit(ub[f'q{it}'])
    stamp(fine=True)
    stamp()
    emit(ub['qfin'])
    stamp()
    emit(ub['a0'])
    stamp()
    emit(ub['a1h'])
    emit(ub['a1'])
    emit(ub['asig'])
    stamp()
    emit(ub['a2'])
    emit(ub['a3'])
    loop(f"L_{name}_a", [[f'a{t}', f'a{t+1}'] for t in range(4, 12, 2)])
    stamp()
    nsave = nst[0]
    out.append(f"s_cmp_eq_u32 s{S_UNIT}, {NUNITS-1}")
    out.append(f"s_cbranch_scc1 L_{name}_tail1")
    for t in (12, 13, 14, 15):
        emit(ub[f'a{t}'])
    emit(ub['apost'])
    stamp()
    emit(ub['lred'])
    stamp()
    stamp(True)
    flush_stamps("0")
    out.append(f"s_add_u32 s{S_UNIT}, s{S_UNIT}, 1")
    out.append(f"s_branch L_{name}_unit")
    out.append(f"L_{name}_tail1:")
    nst[0] = nsave
    for k in ('t1issue', 'a12', 't1check', 'a13', 'a14', 'a15', 'apost'):
        emit(ub1[k])
    stamp()
    emit(ub1['lred'])
    stamp()
    stamp(True)
    flush_stamps("1")
    stamp()
    stamp(True)
    emit(ub['oppro'])
    stamp()
    for nme, _ in opb:
        if nme in ('oppro', 'opepi'):
            continue
        if nme in ('op16', 'op24'):
            stamp()
        if nme in [f'op{x}' for x in range(0, 22, 2)]:
            stamp(fine=True)
        emit(ub[nme])
    stamp()
    emit(ub['opepi'])
    if STAMPS:
        out.append("s_waitcnt vmcnt(0)")
    stamp()
    stamp(True)
    flush_stamps("2")
    out.append(f"L_{name}_done:")
    out.append("s_endpgm")
    out += tramp
    for sp in slow_paths():
        out += [x.text() for x in sp]
    out.append(f"L_{name}_end:")
    return out
```

```python
import sys, importlib
import kf, gen
def make(out, mod='kf', **kw):
    m = importlib.import_module(mod)
    importlib.reload(m)
    for k, v in kw.items():
        setattr(m, k, v)
    gen.kf = m
    gen.main(out, False)
    print(out)
if __name__ == "__main__":
    make('oa.s')
    make('ob.s', A_WIN=6)
    make('oc.s', A_WIN=None)
    make('od.s', A_WIN=5, FAST0=False)
```

```python
import math
import struct
from asmlib import *

SLOT = 24576
NSLOT = 6
RING = SLOT * NSLOT
SPARE = RING
LDS_BYTES = 163840
NUNITS = 2

sX, sK, sV, sW, sO = 8, 12, 16, 20, 24
S_WAVE, S_J, S_R = 28, 29, 30
S_WR, S_RD = 31, 32
S_KOFF, S_VOFF, S_WOFF, S_OADV = 33, 34, 35, 36
S_CKV, S_CW, S_OT = 37, 38, 39
S_T0, S_T1, S_T2, S_T3 = 40, 41, 42, 43
S_LOOP, S_UNIT = 44, 45
S_SCALE = 46
S_OOFF = 47
S_WBASE = 48
S_RET = 50
S_DMIN = 52
S_FORCED = 53
S_XBASE, S_XOFF, S_CX, S_WREL0, S_XREL0 = 49, 54, 55, 87, 3
S_QUAD, S_ESND, S_ERCV, S_TWO = 56, 57, 58, 59
sWo, sC, sD = 60, 68, 72
S_FOWN, S_FPART, S_PQ, S_PBASE = 64, 65, 66, 67
S_SPARE = 76
S_GRP = 77
S_U0, S_U1, S_U2, S_U3 = 78, 79, 80, 81
S_PSRC, S_PADV, S_COFF = 82, 83, 84
S_C5 = 85
sP, sE = 8, 20
S_BLKC = 86
S_WPF, S_WPB = 86, 59
S_PFS, S_PFQ, S_PFB = 35, 54, 48
S_ST = 88


def srd(b): return f"s[{b}:{b+3}]"
def vq(b): return f"v[{b}:{b+3}]"
def aq(b): return f"a[{b}:{b+3}]"


def Qf(ks, i): return 4 * (5 * ks + i)
def Sr(st, i): return 120 + 20 * st + 4 * i
def Pr(par, i): return 160 + 20 * par + 4 * i
def NM(i): return 200 + 4 * i


L0, TS0, E0 = 220, 225, 230
KA, VA, CHK = 238, 240, 244
PAT_KV, PAT_W, PAT_X = 245, 248, 251
LP_K, LP_V, LP_W, LP_X = 252, 253, 254, 255
WA, XA = 240, 244
RL = L0
Q_OA2, Q_T, Q_D, TCH, SA = 225, 226, 234, 238, 239
OPV = [248, 249, 250, 251, 254]
def ACC(n, i): return 4 * (5 * n + i)
def acc_reg(n, i): return vq(ACC(n, i)) if n < 11 else aq(60 + 4 * i)
def Oa(n, i): return 4 * (5 * n + i)
def FR(b): return 240 + 4 * b
def XF(s, i): return 20 * (s & 1) + 4 * i
WOF = 40
UNIT_ITEMS = 62
NQI = 30
OP0 = UNIT_ITEMS * NUNITS


MF = "v_mfma_f32_16x16x32_bf16"
KV_POL = " nt"
W_POL = ""
X_POL = ""
WO_UNIT = 0
WARM1 = True
ROT = True
NSTG, STG0, STG_PACE = 0, 150, 20
A_WIN = 5
A_BURST = False
XPERM = 0
FAST0 = True
WO_EV = (4, 6, 8, 10, 12)
TLN = 24
KV_EV = {}
KVT_POL = ''
WO_WARM = True
CODE_WARM = True
FAKE_W = FAKE_X = False
QPF, QPF0, QPFD = True, 3, 4
OPF, OPFD = False, 5
ONLY = 0
DELAY = 0
DELAY_MASK = 1
NOPOLL = False
WO_KS = 19
KV_TOUCH = 0
ROT_OP = True
FAKE_OP = False
ALLREAL = False
VM_Q, VM_A, VM_OP = 3, 8, 1
A_DMA_PRIO = False
FINE = False
ASIG_BEFORE = 'a2'
STP = " sc1"
HAND = " sc1"
STAMPS = False
WARM = True
BAR_LEAD = 12


def ring_adv(s, tmp):
    return [I(f"s_add_u32 s{s}, s{s}, {SLOT}"),
            I(f"s_sub_u32 s{tmp}, s{s}, {RING}"),
            I(f"s_min_u32 s{s}, s{s}, s{tmp}")]


def item_kind(idx):
    if idx < NQI:
        it, k = divmod(idx, 3)
        return [('W', 2 * it), ('X', it), ('W', 2 * it + 1)][k]
    a = idx - NQI
    if a == 0:
        return ('K', 0)
    if a == 31:
        return ('V', 15)
    return ('K', (a + 1) // 2) if a % 2 == 1 else ('V', a // 2 - 1)


NK = 96
PITEM = 20480


def op_addrs():
    addr, when = {}, {}
    live = []
    for it in range(6):
        a = ((OP0 + it) % NSLOT) * SLOT
        addr[it] = a
        when[it] = None if it < 5 else 0
        live.append((a, a + PITEM, it // 2 + 1))
    for it in range(6, NK):
        best = None
        for j in range(8):
            a = j * PITEM
            t = max([f for (s0, e0, f) in live if s0 < a + PITEM and a < e0] + [0])
            if best is None or t < best[0]:
                best = (t, a)
        t, a = best
        t = max(t, when[it - 1] or 0)
        addr[it], when[it] = a, t
        live = [x for x in live if not (x[0] < a + PITEM and a < x[1])]
        live.append((a, a + PITEM, it // 2 + 1))
        assert t <= it // 2 - 1, (it, t)
    return addr, when


def dma_op_item(it, pv):
    gid = OP0 + it
    a = op_addrs()[0][it]
    out = [I(f"s_add_u32 m0, s{S_C5}, {a}")]
    for k in range(4):
        out.append(I(f"buffer_load_dwordx4 v{pv[k]}, {srd(sP)}, s{S_PSRC} offen offset:{1024*k}{HAND} lds", tag=gid))
    out.append(I(f"s_add_u32 m0, s{S_C5}, {a + 4096}"))
    out.append(I(f"buffer_load_dwordx4 v{pv[4]}, {srd(sP)}, s{S_PSRC} offen{HAND} lds", tag=gid))
    if it % 12 != 11:
        out.append(I(f"s_add_u32 s{S_PSRC}, s{S_PSRC}, s{S_PADV}"))
    else:
        rnd = (it + 1) // 48
        out += [I(f"s_add_u32 s{S_PQ}, s{S_PQ}, 1"), I(f"s_and_b32 s{S_PQ}, s{S_PQ}, 3"),
                I(f"s_mul_i32 s{S_T0}, s{S_PQ}, 24"), I(f"s_add_u32 s{S_T0}, s{S_T0}, {12*rnd}"),
                I(f"s_mul_i32 s{S_T0}, s{S_T0}, s{S_PADV}"), I(f"s_add_u32 s{S_PSRC}, s{S_PBASE}, s{S_T0}")]
    return out


def dma_item(gid):
    if gid >= OP0:
        return dma_op_item(gid - OP0, OPV)
    u, idx = divmod(gid, UNIT_ITEMS)
    kind, num = item_kind(idx)
    out = []
    if idx == 0:
        out += [I(f"s_add_u32 s{S_WBASE}, s{S_WBASE}, 768"),
                I(f"s_mov_b32 s{S_WOFF}, s{S_WREL0}"),
                I(f"s_mov_b32 s{S_XOFF}, s{S_XREL0}")]
    if kind in 'KV':
        off = S_KOFF if kind == 'K' else S_VOFF
        d = srd(sK if kind == 'K' else sV)
        out.append(I(f"s_add_u32 m0, s{S_WR}, s{S_CKV}"))
        for n in range(3):
            out.append(I(f"buffer_load_dwordx4 v{PAT_KV+n}, {d}, s{off} offen offset:{1024*n}{KV_POL} lds", tag=gid))
        out.append(I(f"s_add_u32 m0, m0, 3072"))
        out.append(I(f"s_add_u32 s{S_T0}, s{off}, 3072"))
        for n in range(3):
            out.append(I(f"buffer_load_dwordx4 v{PAT_KV+n}, {d}, s{S_T0} offen offset:{1024*n}{KV_POL} lds", tag=gid))
        adv = 12288 + (196608 if num == 15 else 0)
        out.append(I(f"s_add_u32 s{off}, s{off}, {adv}"))
    elif kind == 'W':
        out.append(I(f"s_add_u32 m0, s{S_WR}, s{S_CW}"))
        out.append(I(f"s_add_u32 s{S_T0}, s{S_WOFF}, s{S_WBASE}"))
        for n in range(3):
            out.append(I(f"buffer_load_dwordx4 v{PAT_W+n}, {srd(sW)}, s{S_T0} offen offset:{1024*n}{W_POL} lds", tag=gid))
        out.append(I(f"s_add_u32 m0, m0, {16*384}"))
        out.append(I(f"s_add_u32 s{S_T0}, s{S_T0}, {16*12288}"))
        for n in range(3):
            out.append(I(f"buffer_load_dwordx4 v{PAT_W+n}, {srd(sW)}, s{S_T0} offen offset:{1024*n}{W_POL} lds", tag=gid))
        out.append(I(f"s_add_u32 s{S_WOFF}, s{S_WOFF}, {0 if FAKE_W else 32*12288}"))
        out.append(I(f"s_sub_u32 s{S_T0}, s{S_WOFF}, {640*12288}"))
        out.append(I(f"s_min_u32 s{S_WOFF}, s{S_WOFF}, s{S_T0}"))
    else:
        out.append(I(f"s_add_u32 m0, s{S_WR}, s{S_CX}"))
        out.append(I(f"s_add_u32 s{S_T0}, s{S_XOFF}, s{S_XBASE}"))
        for p in range(5):
            if p == 4:
                out.append(I(f"s_add_u32 m0, m0, 4096"))
                out.append(I(f"s_add_u32 s{S_T0}, s{S_T0}, {10240+3072}"))
                out.append(I(f"buffer_load_dwordx4 v{PAT_X}, {srd(sX)}, s{S_T0} offen{X_POL} lds", tag=gid))
            else:
                if p:
                    out.append(I(f"s_add_u32 s{S_T0}, s{S_T0}, {10240-1024}"))
                out.append(I(f"buffer_load_dwordx4 v{PAT_X}, {srd(sX)}, s{S_T0} offen offset:{1024*p}{X_POL} lds", tag=gid))
        out.append(I(f"s_add_u32 s{S_XOFF}, s{S_XOFF}, {0 if FAKE_X else 128}"))
        out.append(I(f"s_sub_u32 s{S_T0}, s{S_XOFF}, 1280"))
        out.append(I(f"s_min_u32 s{S_XOFF}, s{S_XOFF}, s{S_T0}"))
    out += ring_adv(S_WR, S_T1)
    return out


def drain_group(u, m, i, T, D, oa, oa2, packed, ntemp=8):
    o = []
    rl = RL + i
    for half in range(2):
        t = T + (4 * half if ntemp == 8 else 0)
        for k in range(4):
            o.append(I(f"v_accvgpr_read_b32 v{t+k}, a{Oa(2*m+half,i)+k}"))
        if packed:
            sel = "op_sel:[0,1] op_sel_hi:[1,1]" if rl & 1 else "op_sel_hi:[1,0]"
            rp = rl & ~1
            for k in (0, 2):
                o.append(I(f"v_pk_mul_f32 v[{t+k}:{t+k+1}], v[{t+k}:{t+k+1}], v[{rp}:{rp+1}] {sel}"))
        else:
            for k in range(4):
                o.append(I(f"v_mul_f32 v{t+k}, v{rl}, v{t+k}"))
        for k in range(2):
            o.append(I(f"v_cvt_pk_bf16_f32 v{D+2*half+k}, v{t+2*k}, v{t+2*k+1}"))
    if i == 0:
        o.append(I(f"s_add_u32 s{S_OT}, s{S_OOFF}, {m*10240}"))
    if i < 4:
        o.append(I(f"buffer_store_dwordx4 {vq(D)}, v{oa}, {srd(sO)}, s{S_OT} offen offset:{1024*i}{STP}", tag=('st', u)))
    else:
        o.append(I(f"buffer_store_dwordx4 {vq(D)}, v{oa2}, {srd(sO)}, s{S_OT} offen{STP}", tag=('st', u)))
    return o


def l_reduce():
    fin = []
    for i in range(5):
        fin.append(I(f"v_mov_b32 v{E0+i}, v{L0+i}"))
    for i in range(5):
        fin.append(I(f"v_permlane32_swap_b32 v{L0+i}, v{E0+i}"))
    for i in range(5):
        fin.append(I(f"v_add_f32 v{L0+i}, v{L0+i}, v{E0+i}"))
    for i in range(5):
        fin.append(I(f"v_mov_b32 v{E0+i}, v{L0+i}"))
    for i in range(5):
        fin.append(I(f"v_permlane16_swap_b32 v{L0+i}, v{E0+i}"))
    for i in range(5):
        fin.append(I(f"v_add_f32 v{L0+i}, v{L0+i}, v{E0+i}"))
    for i in range(5):
        fin.append(I(f"v_rcp_f32 v{RL+i}, v{L0+i}"))
    return fin


def straight(instrs):
    out = []
    for ins in instrs:
        if ins.kind == 'dma' and out and 'm0' in out[-1].txt.split(',')[0]:
            out.append(I("s_nop 0"))
        out.append(ins)
    return out


def open_item(kind):
    if kind == 'K':
        o = [I(f"v_add_u32 v{KA}, s{S_RD}, v{LP_K}"), I(f"v_xor_b32 v{KA+1}, 64, v{KA}")]
    elif kind in 'VW':
        lp = LP_V if kind == 'V' else LP_W
        o = [I(f"v_add_u32 v{VA}, s{S_RD}, v{lp}"), I(f"v_xor_b32 v{VA+1}, 32, v{VA}"),
             I(f"v_xor_b32 v{VA+2}, 64, v{VA}"), I(f"v_xor_b32 v{VA+3}, 64, v{VA+1}")]
    else:
        o = [I(f"v_add_u32 v{XA}, s{S_RD}, v{LP_X}")]
    return o + ring_adv(S_RD, S_T2)


def k_read(f, buf, tag):
    st, ks = divmod(f, 6)
    return [I(f"ds_read_b128 {aq(buf)}, v{KA + (ks & 1)} offset:{st*6144 + (ks >> 1)*128}", tag=tag)]


def v_read(n, buf, tag, half_off=6144):
    return [I(f"ds_read_b64_tr_b16 a[{buf+2*h}:{buf+2*h+1}], v{VA + (n & 3)} offset:{(n >> 2)*128 + h*half_off}", tag=tag)
            for h in range(2)]


def sm_ops(par, st, i, tbase):
    e = [E0 + (tbase + r) % 8 for r in range(4)]
    s = Sr(st, i)
    p = Pr(par, i) + 2 * st
    ts = TS0 + i
    o = [I(f"v_exp_f32 v{e[r]}, v{s+r}") for r in range(4)]
    o.append(I(f"v_cvt_pk_bf16_f32 v{p}, v{e[0]}, v{e[1]}"))
    o.append(I(f"v_add_f32 v{ts}, v{e[0]}, v{e[1]}"))
    o.append(I(f"v_cvt_pk_bf16_f32 v{p+1}, v{e[2]}, v{e[3]}"))
    o.append(I(f"v_add_f32 v{ts}, v{ts}, v{e[2]}"))
    o.append(I(f"v_add_f32 v{ts}, v{ts}, v{e[3]}"))
    return o


def qk_mfmas(first_zero=False):
    out = []
    for st in range(2):
        for ks in range(6):
            for i in range(5):
                f = st * 6 + ks
                c = (("0" if first_zero else vq(NM(i))) if ks == 0 else vq(Sr(st, i)))
                out.append((f, f"{MF} {vq(Sr(st,i))}, @FR@, {vq(Qf(ks,i))}, {c}"))
    return out


def pv_mfmas(par, zero=False):
    out = []
    for n in range(12):
        for i in range(5):
            c = "0" if zero else aq(Oa(n, i))
            out.append((n, f"{MF} {aq(Oa(n,i))}, @FR@, {vq(Pr(par,i))}, {c}"))
    return out


def flatten(mf, gaps, lo, hi):
    out = []
    for g in range(lo, hi):
        out.append(mf[g])
        out.extend(gaps[g])
    return out


def lane_id(v):
    return [I(f"v_mbcnt_lo_u32_b32 v{v}, -1, 0"), I(f"v_mbcnt_hi_u32_b32 v{v}, -1, v{v}")]


PIECES = list(range(40, 60, 4)) + list(range(80, 240, 4))


def stage_load(gid, x):
    kind, num = item_kind(NQI + x)
    off, d = (S_KOFF, srd(sK)) if kind == 'K' else (S_VOFF, srd(sV))
    out = []
    for p in range(6):
        if p == 3:
            out.append(I(f"s_add_u32 s{S_U0}, s{off}, 3072"))
        so = off if p < 3 else S_U0
        out.append(I(f"buffer_load_dwordx4 {aq(PIECES[6*x+p])}, v{PAT_KV + p % 3}, {d}, s{so} offen offset:{1024*(p % 3)}{KV_POL}", tag=gid,
                     extra=PIECES[6 * x + p]))
    out.append(I(f"s_add_u32 s{off}, s{off}, 12288"))
    return out


def stage_flush(gid, x, fa, sa):
    out = [vmwait(gid), I(f"s_add_u32 s{S_T0}, s{S_WR}, s{S_CKV}"), I(f"v_add_u32 v{fa}, s{S_T0}, v{sa}")]
    for p in range(6):
        out.append(I(f"ds_write_b128 v{fa}, {aq(PIECES[6*x+p])} offset:{1024*p}", tag=('fl', gid)))
    return out + ring_adv(S_WR, S_T1)


def q_phase(u):
    g0 = UNIT_ITEMS * u
    pu = u - 1
    blocks = []
    pre = []
    pre += lane_id(0)
    pre += [I(x) for x in (
        "v_lshlrev_b32 v1, 7, v0",
        f"v_cmp_gt_u32 vcc, {TLN}, v0",
        "v_mov_b32 v2, 0x7ffffff0",
        "s_nop 0",
        f"v_cndmask_b32 v{TCH}, v2, v1, vcc",
        f"v_lshlrev_b32 v{SA}, 4, v0",
        f"v_add_u32 v{Q_OA2}, 4096, v{SA}")]
    blocks.append(('qpre0', pre))
    pre = []
    k = 0
    for m in range(2):
        for i in range(5):
            pre += drain_group(pu, m, i, 8 + 8 * (k % 4), 48 + 4 * (k % 4), SA, Q_OA2, True)
            k += 1
    blocks.append(('qdrain', pre))
    pre = []
    pre += [bothwait([g0, g0 + 1]), I("s_barrier")]
    pre += open_item('W') + open_item('X')
    mf = []
    for s_ in range(20):
        for n in range(12):
            for i in range(5):
                F = s_ * 12 + n
                c = "0" if s_ == 0 else acc_reg(n, i)
                mf.append(I(f"{MF} {acc_reg(n,i)}, {aq(FR(F % 4))}, {aq(XF(s_, i))}, {c}"))
    fixed = {}
    qds, qaddr, qdma, qwo, qx, qdr = [], [], [], [], [], []
    bar_gap = {s_: 60 * s_ - BAR_LEAD - 1 for s_ in range(1, 20)}

    def wreads(F):
        return v_read(F % 12, FR(F % 4), ('w', u, F), half_off=1536)

    def xreads(s_):
        return [I(f"ds_read_b128 {aq(XF(s_, i))}, v{XA} offset:{2048*i}", tag=('x', u, s_)) for i in range(5)]

    pre += wreads(0) + xreads(0) + wreads(1) + wreads(2)
    if u > 0 or not FAST0:
        pre += straight(dma_item(g0 + 5))
    pre.append(dswait([('w', u, 0), ('x', u, 0)]))
    last_rd = {}
    for m in range(2, 6):
        for i in range(5):
            for o in drain_group(pu, m, i, Q_T, Q_D, SA, Q_OA2, False):
                t = Task(o, earliest=0)
                qdr.append(t)
                if o.txt.startswith('v_accvgpr_read'):
                    last_rd[m] = t
    qdr.append(Task(I(f"s_add_u32 s{S_OOFF}, s{S_OOFF}, s{S_OADV}"), earliest=0))
    last_read = None
    must_before = []
    wo_done = []
    for s_ in range(20):
        first = True
        addr_task = None
        if s_ >= 1:
            need = [g0 + 3 * (s_ // 2), g0 + 3 * (s_ // 2) + 1] if s_ % 2 == 0 else [g0 + 3 * (s_ // 2) + 2]
            fixed.setdefault(bar_gap[s_], []).extend([bothwait(need), I("s_barrier")])
            must_before.append((last_read, bar_gap[s_]))
            ops = open_item('W')
            if s_ % 2 == 0:
                ops += open_item('X')
            for k, o in enumerate(ops):
                t = Task(o, earliest=0, after=last_read if k == 0 else None, gapdist=1)
                qaddr.append(t)
                if o.kind == 'valu':
                    addr_task = t
        for n in range(12):
            F = s_ * 12 + n
            if s_ == 0 and n < 3:
                continue
            e = 5 * (F - 4) + 4
            if s_ >= 1:
                e = max(e, bar_gap[s_])
            rs = wreads(F)
            if n == 0 and s_ % 2 == 0:
                rs = rs + xreads(s_)
            if n == 6 and s_ % 2 == 0:
                rs = rs + [I(f"v_xor_b32 v{XA}, 64, v{XA}")] + xreads(s_ + 1)
            for r in rs:
                t = Task(r, earliest=e, after=addr_task if first else None, gapdist=1)
                first = False
                qds.append(t)
                last_read = t
        for n in range(12):
            F = s_ * 12 + n
            if F == 0:
                continue
            tags = [('w', u, F)] + ([('x', u, s_)] if n == 0 else [])
            fixed.setdefault(5 * F - 1, []).append(dswait(tags))
        if s_ >= 1:
            it = s_ // 2
            items = [3 * it + 5] if s_ % 2 == 0 else [3 * it + 6, 3 * it + 7]
            for x in items:
                if x >= NQI and x - NQI < NSTG:
                    for o in stage_flush(g0 + x, x - NQI, Q_T, SA):
                        wr = o.txt.startswith('ds_write')
                        qdma.append(Task(o, earliest=bar_gap[s_] + 1, after=(qdma[-1] if wr else qdr[-1]), gapdist=1))
                else:
                    for o in dma_item(g0 + x):
                        qdma.append(Task(o, earliest=bar_gap[s_] + 1))
        if s_ in WO_EV and WO_WARM:
            for o in (I(f"s_mov_b32 m0, s{S_SPARE}"),
                      I(f"buffer_load_dword v{TCH}, {srd(sWo)}, s{S_TWO} offen lds", tag=('two', u)),
                      I(f"s_add_u32 s{S_TWO}, s{S_TWO}, {TLN * 128}")):
                qdma.append(Task(o, earliest=60 * s_))
        if s_ in KV_EV:
            for x, part in KV_EV[s_]:
                kind, num = item_kind(NQI + x)
                off, d = (S_KOFF, sK) if kind == 'K' else (S_VOFF, sV)
                for o in (I(f"s_mov_b32 m0, s{S_SPARE}"),
                          I(f"s_add_u32 s{S_T0}, s{off}, {num*12288 + part*TLN*128}"),
                          I(f"buffer_load_dword v{TCH}, {srd(d)}, s{S_T0} offen{KVT_POL} lds", tag=('tkv', u))):
                    qdma.append(Task(o, earliest=60 * s_ + 30 * part))
    k = 0
    for x in range(NSTG):
        for o in stage_load(g0 + NQI + x, x):
            dep = None
            if o.kind == 'vmem':
                dep = last_rd.get(o.extra // 40)
                o.extra = None
                k += 1
            qwo.append(Task(o, earliest=STG0 + int(k * STG_PACE), after=dep, gapdist=1))
    gaps, left = schedule(mf, [qds, qaddr, qdma, qwo, qdr], fixed, tail_ok=False, greedy_scalar=lambda g: True, vm_space=VM_Q)
    for tk, g in must_before:
        assert tk.gap < g, (tk.gap, g)
    q_phase.info = dict(drain_end=qdr[-1].gap, stage_end=(qwo[-1].gap if qwo else None))
    if u == 0 and FAST0:
        drop = set(id(t.ins) for t in qdr)
        pend = sum((dma_item(g0 + x) for x in (4, 5)), [])
        lastvm = -9
        for g in range(bar_gap[1]):
            gaps[g] = [x for x in gaps[g] if id(x) not in drop]
            while pend and pend[0].kind == 'salu' and len(gaps[g]) < 3 and not any(x.kind == 'dma' for x in gaps[g]):
                k = sum(1 for x in gaps[g] if x.kind in ('salu', 'dswait', 'vmwait', 'bothwait'))
                gaps[g].insert(k, pend.pop(0))
            if pend and pend[0].kind == 'dma' and not gaps[g] and g - lastvm >= 2:
                gaps[g].append(pend.pop(0))
                lastvm = g
        assert not pend, len(pend)
    blocks.append(('qpre', pre))
    for it in range(10):
        blocks.append((f'q{it}', flatten(mf, gaps, 120 * it, 120 * it + 120)))
    fin = [I("s_nop 7")]
    for m in range(6):
        for i in range(5):
            a0, a1, d = ACC(2 * m, i), ACC(2 * m + 1, i), Qf(m, i)
            if m == 5:
                a1 = Q_T + 4 * (i & 1)
                for k in range(4):
                    fin.append(I(f"v_accvgpr_read_b32 v{a1+k}, a{60+4*i+k}"))
            for a in (a0, a0 + 2, a1, a1 + 2):
                fin.append(I(f"v_pk_mul_f32 v[{a}:{a+1}], v[{a}:{a+1}], s[{S_SCALE}:{S_SCALE+1}] op_sel_hi:[1,0]"))
            fin.append(I(f"v_cvt_pk_bf16_f32 v{d}, v{a0}, v{a0+1}"))
            fin.append(I(f"v_cvt_pk_bf16_f32 v{d+1}, v{a0+2}, v{a0+3}"))
            fin.append(I(f"v_cvt_pk_bf16_f32 v{d+2}, v{a1}, v{a1+1}"))
            fin.append(I(f"v_cvt_pk_bf16_f32 v{d+3}, v{a1+2}, v{a1+3}"))
            prev = (m, i - 1) if i > 0 else ((m - 1, 4) if m > 0 else None)
            if prev:
                pd = Qf(*prev)
                fin.append(I(f"v_permlane16_swap_b32 v{pd}, v{pd+2}"))
                fin.append(I(f"v_permlane16_swap_b32 v{pd+1}, v{pd+3}"))
    pd = Qf(5, 4)
    fin.append(I("s_nop 1"))
    fin.append(I(f"v_permlane16_swap_b32 v{pd}, v{pd+2}"))
    fin.append(I(f"v_permlane16_swap_b32 v{pd+1}, v{pd+3}"))
    blocks.append(('qfin', fin))
    return blocks


def wb_code(label, tag):
    if STP:
        return []
    return [I(f"s_cmp_lg_u32 s{S_WAVE}, 0"), I(f"s_cbranch_scc1 {label}"),
            I("buffer_wbl2 sc1", kind='xsalu'),
            I(f"{label}:"), I("; marker", kind='mark', tag=tag)]


def sig_code(tv, amount_sgpr_or_imm, off, label, wtag=None):
    return [I(f"s_cmp_lg_u32 s{S_WAVE}, 0"), I(f"s_cbranch_scc1 {label}"),
            I(f"v_mov_b32 v{tv}, {amount_sgpr_or_imm}"), I(f"v_mov_b32 v{tv+1}, 0"),
            I("afterwait", kind='afterwait', tag=wtag),
            I("s_mov_b64 exec, 1"),
            I(f"buffer_atomic_add v{tv}, v{tv+1}, {srd(sD)}, s{off} offen sc1", kind='xvmem'),
            I("s_mov_b64 exec, -1"),
            I(f"{label}:")]


def a_phase(u):
    g0 = UNIT_ITEMS * u + NQI
    nxt = UNIT_ITEMS * (u + 1)
    blocks = []
    pre = [bothwait([g0, ('st', u - 1)]), I("s_barrier")]
    if NSTG > 5:
        pre += stage_flush(g0 + 5, 5, E0, SA)
    pre += open_item('K')
    for f in range(3):
        pre += k_read(f, FR(f), ('k', u, 0, f))
    for i in range(5):
        pre.append(I(f"v_mov_b32 v{L0+i}, 0"))
        for r in range(4):
            pre.append(I(f"v_mov_b32 v{NM(i)+r}, 0"))
    pre.append(dswait([('k', u, 0, 0)]))
    mf0 = [I(t.replace('@FR@', aq(FR(f % 4)))) for f, t in qk_mfmas(first_zero=True)]
    qds, qdma, fixed = [], [], {}
    for f in range(3, 12):
        for r in k_read(f, FR(f % 4), ('k', u, 0, f)):
            qds.append(Task(r, earliest=5 * (f - 4) + 4))
    for f in range(1, 12):
        fixed.setdefault(5 * f - 1, []).append(dswait([('k', u, 0, f)]))
    for x in ((5,) if NSTG <= 5 else ()):
        for o in dma_item(g0 + x):
            qdma.append(Task(o, earliest=0))
    gaps, left = schedule(mf0, [qds, qdma], fixed, tail_ok=False, vm_space=6)
    blk = pre + flatten(mf0, gaps, 0, 60)
    blk += [I(f"s_mov_b32 s{sO+2}, {192*10240}"), I(f"s_mov_b32 s{S_OADV}, {12*10240}"),
            I(f"s_or_b32 s{S_TWO}, s{S_TWO}, 0x40000000")]
    blk += [I(f"s_mov_b32 s{S_DMIN}, 0xf149f2ca"), I(f"s_mov_b32 s{S_FORCED}, 1"),
            I(f"s_call_b64 s[{S_RET}:{S_RET+1}], L_slowF"),
            I(f"s_mov_b32 s{S_DMIN}, 0"), I(f"s_mov_b32 s{S_FORCED}, 0")]
    if NSTG > 6:
        blk += lane_id(E0 + 1) + [I(f"v_lshlrev_b32 v{E0+1}, 4, v{E0+1}")]
    blk += [bothwait([g0 + 1]), I("s_barrier")]
    blk += open_item('K')
    for f in range(3):
        blk += k_read(f, FR(f), ('k', u, 1, f))
    if NSTG > 6:
        blk += stage_flush(g0 + 6, 6, E0, E0 + 1)
    blk.append(dswait([('k', u, 1, 0)]))
    blocks.append(('a0', blk))

    halves = []
    for t in range(1, 16):
        halves.append(('K', t))
        halves.append(('V', t - 1))
    halves.append(('V', 15))
    mf, fixed = [], {}
    qds, qaddr, qdma, qsm, qexp = [], [], [], [], []
    grp_last = []
    last_read = {'K': None, 'V': None}
    must_before, deadlines = [], []
    prev_branch = None
    for h, (kind, t) in enumerate(halves):
        base = 60 * h
        seq = qk_mfmas() if kind == 'K' else pv_mfmas(t & 1, zero=(t == 0))
        for f, txt in seq:
            F = 12 * h + f
            mf.append(I(txt.replace('@FR@', aq(FR(F % 4)))))
        bar = base - BAR_LEAD
        addr_task = None
        if h >= 1:
            fixed.setdefault(bar, []).extend([bothwait([g0 + h + 1]), I("s_barrier")])
            must_before.append((qds[-1], bar))
            for k, o in enumerate(open_item(kind)):
                tk = Task(o, earliest=0, after=last_read[kind] if k == 0 else None, gapdist=1)
                qaddr.append(tk)
                if o.kind == 'valu':
                    addr_task = tk
        first = True
        for f in range(12):
            F = 12 * h + f
            if h == 0 and f < 3:
                continue
            tag = (kind.lower(), u, t, f)
            rs = k_read(f, FR(F % 4), tag) if kind == 'K' else v_read(f, FR(F % 4), tag)
            e = 5 * (F - 4) + 4
            if h >= 1:
                e = max(e, bar)
            for r in rs:
                tk = Task(r, earliest=e, after=addr_task if first else None, gapdist=1)
                first = False
                qds.append(tk)
                last_read[kind] = tk
        for f in range(12):
            F = 12 * h + f
            if F == 0:
                continue
            fixed.setdefault(5 * F - 1, []).append(dswait([(kind.lower(), u, t, f)]))
        x = h + 6
        gid = g0 + x if x < 32 else nxt + (x - 32)
        ops = []
        for o in (dma_item(gid) if x >= NSTG else []):
            if A_WIN is not None and o.kind == 'dma' and x < 32:
                ops.append(I(f"s_waitcnt vmcnt({A_WIN})"))
            ops.append(o)
        for o in ops:
            if A_BURST and h < 26:
                qdma.append(Task(o, earliest=max(0, (bar + 1) if h % 2 == 0 else (bar + 61))))
            else:
                qdma.append(Task(o, earliest=max(0, bar + 1)))
        if kind == 'K':
            tb = 0
            for st in range(2):
                for i in range(5):
                    ops = sm_ops(t & 1, st, i, tb)
                    tb += 4
                    ex = []
                    for k, o in enumerate(ops[:4]):
                        aft = None
                        if k == 0:
                            aft = prev_branch if i == 0 else (grp_last[-2] if i >= 2 else None)
                        tk = Task(o, earliest=base + 30, mf_after=base + 30 * st + 25 + i, after=aft, gapdist=(0 if i == 0 else 1))
                        qexp.append(tk)
                        ex.append(tk)
                    for o in ops[4:]:
                        dep = max(k for k in range(4) if f"v{E0 + (tb - 4 + k) % 8}" in [x.strip() for x in o.txt.split(None, 1)[1].split(',')[1:]])
                        tk = Task(o, earliest=base, after=ex[dep], gapdist=1)
                        qsm.append(tk)
                    grp_last.append(tk)
                qsm.append(Task(I(f"v_max3_f32 v{CHK}, v{TS0}, v{TS0+1}, v{TS0+2}"), earliest=base))
                qsm.append(Task(I(f"v_max3_f32 v{CHK}, v{CHK}, v{TS0+3}, v{TS0+4}"), earliest=base))
                chk = Task(I(f"v_cmp_ngt_f32 vcc, 2.0, v{CHK}"), earliest=base)
                qsm.append(chk)
                br = I(f"s_cbranch_vccnz @TRAMP{'AB'[st]}{t & 1}@")
                if st == 0:
                    prev_branch = Task(br, earliest=base + 68, after=chk, gapdist=1)
                    qsm.append(prev_branch)
                    deadlines.append((prev_branch, base + 119))
                    e_add = base
                else:
                    bg = base + 149 if t < 15 else base + 119
                    fixed.setdefault(bg, []).append(br)
                    deadlines.append((chk, bg - 1))
                    prev_branch = None
                    e_add = bg + 1
                for i in range(5):
                    qsm.append(Task(I(f"v_add_f32 v{L0+i}, v{L0+i}, v{TS0+i}"), earliest=e_add))
    gaps, left = schedule(mf, [qds, qaddr, qdma, qexp, qsm], fixed, tail_ok=False,
                          greedy_scalar=lambda g: g >= 1800 or (A_BURST and ((g + 12) % 120) < 40), vm_space=lambda g: (VM_A if g < 1790 else 3),
                          capf=lambda g: (3 if 1710 <= g < 1800 else 2))
    for tk, g in must_before:
        assert tk.gap < g, (tk.gap, g)
    for tk, g in deadlines:
        assert tk.gap <= g, f"softmax check too late: {tk.gap} vs {g}"
    blocks.append(('a1h', flatten(mf, gaps, 0, 30)))
    for t in range(1, 15):
        blocks.append((f'a{t}', flatten(mf, gaps, 120 * (t - 1) + 30, 120 * t + 30)))
    blocks.append(('a15', flatten(mf, gaps, 1710, 1800)))
    blocks.append(('apost', flatten(mf, gaps, 1800, 1860)))

    blocks.append(('lred', l_reduce()))
    sg = sig_code(E0, f"s{S_UNIT}", S_GRP, "@L1@", ('wb', u))
    k = [b[0] for b in blocks].index(ASIG_BEFORE)
    blocks[k:k] = [('asig', sg)]
    return blocks


S_RET2 = 80


def slow_paths():
    o = [I("L_slowC:"), I("s_nop 7")]
    for i in range(5):
        a, b = Sr(0, i), Sr(1, i)
        e0, e1 = E0, E0 + 1
        o += [I(f"v_max3_f32 v{e0}, v{a}, v{a+1}, v{a+2}"),
              I(f"v_max3_f32 v{e0}, v{e0}, v{a+3}, v{b}"),
              I(f"v_max3_f32 v{e0}, v{e0}, v{b+1}, v{b+2}"),
              I(f"v_max_f32 v{e0}, v{e0}, v{b+3}"),
              I(f"v_mov_b32 v{e1}, v{e0}"),
              I("s_nop 1"),
              I(f"v_permlane32_swap_b32 v{e0}, v{e1}"),
              I(f"v_max_f32 v{e0}, v{e0}, v{e1}"),
              I(f"v_mov_b32 v{e1}, v{e0}"),
              I("s_nop 1"),
              I(f"v_permlane16_swap_b32 v{e0}, v{e1}"),
              I(f"v_max_f32 v{e0}, v{e0}, v{e1}"),
              I(f"v_ceil_f32 v{e0}, v{e0}"),
              I(f"v_add_f32 v{e0}, 0x40e00000, v{e0}"),
              I(f"v_max_f32 v{e0}, s{S_DMIN}, v{e0}")]
        for r in range(4):
            o.append(I(f"v_sub_f32 v{NM(i)+r}, v{NM(i)+r}, v{e0}"))
            o.append(I(f"v_sub_f32 v{a+r}, v{a+r}, v{e0}"))
            o.append(I(f"v_sub_f32 v{b+r}, v{b+r}, v{e0}"))
        o += [I(f"v_cvt_i32_f32 v{e1}, v{e0}"),
              I(f"v_sub_u32 v{TS0+i}, 0, v{e1}"),
              I(f"v_ldexp_f32 v{L0+i}, v{L0+i}, v{TS0+i}")]
    o += [I(f"s_cmp_eq_u32 s{S_FORCED}, 1"), I(f"s_cbranch_scc1 L_slowC_ret")]
    k = 0
    for n in range(12):
        for i in range(5):
            for r in range(4):
                e = E0 + k % 8
                k += 1
                o += [I(f"v_accvgpr_read_b32 v{e}, a{Oa(n,i)+r}"),
                      I(f"v_ldexp_f32 v{e}, v{e}, v{TS0+i}"),
                      I(f"v_accvgpr_write_b32 a{Oa(n,i)+r}, v{e}")]
    o += [I("L_slowC_ret:"), I(f"s_setpc_b64 s[{S_RET2}:{S_RET2+1}]")]
    res = [o]

    def sm(par, st):
        out, tb = [], 0
        for i in range(5):
            out += sm_ops(par, st, i, tb)
            tb += 4
        return out

    def presc(regs_by_i):
        out = []
        for i, regs in enumerate(regs_by_i):
            for p in regs:
                out += [I(f"v_lshlrev_b32 v{E0}, 16, v{p}"), I(f"v_and_b32 v{E0+1}, 0xffff0000, v{p}"),
                        I(f"v_ldexp_f32 v{E0}, v{E0}, v{TS0+i}"), I(f"v_ldexp_f32 v{E0+1}, v{E0+1}, v{TS0+i}"),
                        I(f"v_cvt_pk_bf16_f32 v{p}, v{E0}, v{E0+1}")]
        return out

    call = I(f"s_call_b64 s[{S_RET2}:{S_RET2+1}], L_slowC")
    ret = [I("s_nop 1"), I(f"s_setpc_b64 s[{S_RET}:{S_RET+1}]")]
    for par in range(2):
        res.append([I(f"L_slowA{par}:"), call] + presc([[Pr(par ^ 1, i) + k for k in range(4)] for i in range(5)]) + sm(par, 0) + ret)
        res.append([I(f"L_slowB{par}:"), call] + presc([[Pr(par, i) + k for k in range(2)] for i in range(5)]) + sm(par, 1) + ret)
    ladd = [I(f"v_add_f32 v{L0+i}, v{L0+i}, v{TS0+i}") for i in range(5)]
    res.append([I("L_slowF:"), call] + sm(0, 0) + ladd + sm(0, 1) + ladd + ret)
    return res


def PACC(nt, i): return 4 * (5 * i + nt)
def PWF(s, nt): return 100 + 20 * (s % 2) + 4 * nt
NOB = 6
def POF(k): return 140 + 4 * (k % NOB)
P_RAO, P_RAW, VO, P_T, P_D, P_F = 164, 167, 174, 178, 186, 194
WIN = 61440
OP_CAP3 = 700
VM_OP2 = 3
OP_DRAIN_GAP = 0
OP_LEAD = 17
SIG_P = 13
POLL_P = 17


def poll_check(P, lab, d, soff, want):
    o = [I(x) for x in (
        f"s_mov_b32 s{S_T3}, 0x80000",
        f"{lab}:",
        f"v_cmp_{'gt' if want == 8 else 'ne'}_u32 vcc, {want}, v{P+1}",
        f"s_sub_u32 s{S_T3}, s{S_T3}, 1",
        f"s_cmp_eq_u32 s{S_T3}, 0",
        f"s_cbranch_scc1 {lab}_out",
        f"s_cbranch_vccz {lab}_out",
        "s_sleep 1")]
    o.append(I(f"buffer_load_dword v{P+1}, v{P}, {srd(d)}, {soff} offen sc1", kind='xvmem'))
    o += [I("s_waitcnt vmcnt(0)", kind='xsalu'), I(f"s_branch {lab}"), I(f"{lab}_out:")]
    return o


def tail1_issue(name, ws):
    e = E0
    o = [I(f"s_mov_b32 s{S_U1}, m0"), I(f"v_mov_b32 v{e}, 0"), I(f"s_mov_b32 m0, s{S_SPARE}"), I("s_nop 0"),
         I(f"buffer_load_dword v{e}, {srd(sD)}, s{S_GRP} offen sc1 lds", tag='poll0'),
         I(f"s_mov_b32 m0, s{S_U1}")]
    o += lane_id(e)
    o += [I(x) for x in (
        f"v_lshlrev_b32 v{LP_X}, 4, v{e}",
        f"s_cmp_eq_u32 s{S_J}, 0",
        f"s_cselect_b32 s{sP}, s{sO}, s{sWo}",
        f"s_cselect_b32 s{sP+1}, s{sO+1}, s{sWo+1}",
        f"s_cselect_b32 s{sP+2}, s{sO+2}, s{sWo+2}",
        f"s_cbranch_scc0 L_{name}_wpat")]
    o += [I(f"v_mov_b32 v{OPV[k]}, v{LP_X}") for k in range(4)]
    o += [I(f"v_add_u32 v{OPV[4]}, 4096, v{LP_X}"), I(f"s_branch L_{name}_wpatd"), I(f"L_{name}_wpat:")]
    for n in range(5):
        o += [I(x) for x in (
            f"v_add_u32 v{e+1}, {64*n}, v{e}",
            f"v_mul_u32_u24 v{e+2}, 205, v{e+1}",
            f"v_lshrrev_b32 v{e+2}, 12, v{e+2}",
            f"v_mul_u32_u24 v{e+3}, 20, v{e+2}",
            f"v_sub_u32 v{e+1}, v{e+1}, v{e+3}",
            f"v_lshrrev_b32 v{e+3}, 1, v{e+2}",
            f"v_and_b32 v{e+3}, 2, v{e+3}",
            f"v_xor_b32 v{e+1}, v{e+1}, v{e+3}",
            f"v_lshlrev_b32 v{e+1}, 4, v{e+1}",
            f"v_mul_u32_u24 v{e+2}, 1280, v{e+2}",
            f"v_add_u32 v{e+1}, v{e+1}, v{e+2}",
            f"v_subrev_u32 v{OPV[n]}, {1024*n if n < 4 else 0}, v{e+1}")]
    o += [I(x) for x in (
        f"L_{name}_wpatd:",
        f"s_add_u32 s{sE}, s6, {ws['e_off']}",
        f"s_addc_u32 s{sE+1}, s7, 0",
        f"s_and_b32 s{sE+1}, s{sE+1}, 0xffff",
        f"s_mov_b32 s{sE+2}, {ws['e_bytes']}")]
    return o


def tail1_check(name):
    o = [vmwait('poll0'), I(f"v_mov_b32 v{E0+2}, s{S_SPARE}"),
         I(f"ds_read_b32 v{E0+1}, v{E0+2}", tag='poll0d'), I(f"v_mov_b32 v{E0}, 0"), dswait('poll0d')]
    o += poll_check(E0, f"L_{name}_poll0", sD, f"s{S_GRP}", 8)
    return o


def op_phase(name):
    blocks = []
    u = NUNITS - 1
    addr, when = op_addrs()
    t = P_T
    pro = [I(x) for x in (
        f"v_mov_b32 v{VO}, v{LP_X}", f"v_add_u32 v{VO+1}, 4096, v{LP_X}",
        f"v_mov_b32 v{P_F}, 0")]
    pro += [I(f"buffer_load_dword v{P_F+2}, v{P_F}, {srd(sE)}, s{S_FOWN} offen sc1", tag='flag0'),
            I(f"buffer_load_dword v{P_F+3}, v{P_F}, {srd(sE)}, s{S_FPART} offen sc1", tag='flag0')]
    pro += [I(x) for x in (
        f"s_mul_i32 s{S_T3}, s{S_R}, 5120", f"v_add_u32 v{P_RAO}, s{S_T3}, v{LP_X}",
        f"v_lshrrev_b32 v{t}, 6, v{LP_X}",
        f"v_mul_u32_u24 v{t+1}, 320, v{t}",
        f"v_bfe_u32 v{t+2}, v{LP_X}, 4, 2",
        f"v_lshl_add_u32 v{t+1}, v{t+2}, 3, v{t+1}",
        f"s_mul_i32 s{S_T3}, s{S_J}, 160", f"s_add_u32 s{S_T3}, s{S_T3}, 10240",
        f"v_add_u32 v{t+1}, s{S_T3}, v{t+1}",
        f"v_bfe_u32 v{t+2}, v{t}, 2, 1",
        f"v_lshlrev_b32 v{t+2}, 5, v{t+2}",
        f"s_lshl_b32 s{S_T3}, s{S_J}, 1", f"s_sub_u32 s{S_T3}, 1, s{S_T3}",
        f"v_mul_lo_u32 v{t+2}, v{t+2}, s{S_T3}",
        f"v_add_u32 v{P_RAW}, v{t+1}, v{t+2}",
        f"v_sub_u32 v{P_RAW+3}, v{t+1}, v{t+2}")]
    P_PF = 198
    pro += [I(x) for x in (
        f"v_lshlrev_b32 v{t}, 3, v{LP_X}",
        f"v_cmp_gt_u32 vcc, {20*16}, v{LP_X}",
        f"v_mov_b32 v{t+1}, 0x7ffffff0",
        f"s_and_b32 s{S_PFQ}, s2, {3 if ROT_OP else 0}",
        f"v_cndmask_b32 v{P_PF}, v{t+1}, v{t}, vcc")]

    def pf(p):
        run, off, rnd = (p % 24) // 6, p % 6, p // 24
        return [I(f"s_add_u32 s{S_PFS}, s{S_PFQ}, {run}"), I(f"s_and_b32 s{S_PFS}, s{S_PFS}, 3"),
                I(f"s_mul_i32 s{S_PFS}, s{S_PFS}, 24"), I(f"s_add_u32 s{S_PFS}, s{S_PFS}, {12*rnd + 2*off}"),
                I(f"s_mul_i32 s{S_PFS}, s{S_PFS}, s{S_PADV}"), I(f"s_add_u32 s{S_PFS}, s{S_PFS}, s100"),
                I(f"buffer_load_dword v{P_PF+1}, v{P_PF}, {srd(sP)}, s{S_PFS} offen{HAND}", tag='opf')]
    for j in (1, 2):
        pro += [I(f"v_add_u32 v{P_RAO+j}, {WIN*j}, v{P_RAO}"), I(f"v_add_u32 v{P_RAW+j}, {WIN*j}, v{P_RAW}"),
                I(f"v_add_u32 v{P_RAW+3+j}, {WIN*j}, v{P_RAW+3}")]
    pro += [bothwait([OP0, OP0 + 1]), I("s_barrier")]

    def rd(s_, kind, k):
        j, rem = divmod(addr[s_], WIN)
        if kind == 'w':
            b = PWF(s_, k)
            return [I(f"ds_read_b64_tr_b16 v[{b+2*h}:{b+2*h+1}], v{P_RAW+3*(k & 1)+j} offset:{rem + 32*k + 5120*h}", tag=('pf', s_, 'w'))
                    for h in range(2)]
        return [I(f"ds_read_b128 {vq(POF(5*s_+k))}, v{P_RAO+j} offset:{rem + 1024*k}", tag=('pf', s_, k))]

    for k in range(5):
        pro += rd(0, 'w', k)
    for k in range(3):
        pro += rd(0, 'o', k)
    pro.append(dswait([('pf', 0, 0)]))
    mf, fixed = [], {}
    qds, qdma, qdr = [], [], []
    bar = {p: 50 * p - OP_LEAD for p in range(1, NK // 2)}
    bar[0] = -1
    must_before = []
    for s_ in range(NK):
        base = 25 * s_
        p = s_ // 2
        if s_ % 2 == 0 and p >= 1:
            fixed.setdefault(bar[p], []).extend([bothwait([OP0 + s_, OP0 + s_ + 1]), I("s_barrier")])
            must_before.append((qds[-1], bar[p]))
        for i in range(5):
            for nt in range(5):
                c = "0" if s_ == 0 else vq(PACC(nt, i))
                mf.append(I(f"{MF} {vq(PACC(nt,i))}, {vq(PWF(s_,nt))}, {vq(POF(5*s_+i))}, {c}"))
            if base + 5 * i > 0:
                tags = [('pf', s_, i)] + ([('pf', s_, 'w')] if i == 0 else [])
                fixed.setdefault(base + 5 * i - 1, []).append(dswait(tags))
        if s_ > 0:
            e = max(25 * (s_ - 1), bar[p])
            for k in range(5):
                for r in rd(s_, 'w', k):
                    qds.append(Task(r, earliest=e))
        for k in range(5):
            if s_ == 0 and k < 3:
                continue
            e = max(5 * (5 * s_ + k - NOB) + 4, bar[p])
            qds.append(Task(rd(s_, 'o', k)[0], earliest=e))
    first_r1 = None
    for it in range(5, NK):
        for o in dma_op_item(it, OPV):
            tk = Task(o, earliest=bar[when[it]] + 1)
            qdma.append(tk)
            if it == 48 and first_r1 is None:
                first_r1 = tk
    qpf = []
    if OPF:
        for p in range(4, NK // 2):
            e = max(0, 50 * (p - OPFD))
            if p >= 24:
                e = max(e, 50 * (POLL_P + 2))
            for o in pf(p):
                qpf.append(Task(o, earliest=e + 10))
    k = 0
    for m in range(6):
        for i in range(5):
            for o in drain_group(u, m, i, P_T, P_D + 4 * (k % 2), VO, VO + 1, False):
                qdr.append(Task(o, earliest=int((5 * m + i) * OP_DRAIN_GAP)))
            k += 1
    gaps, left = schedule(mf, [qds, qpf, qdma, qdr], fixed, tail_ok=False, greedy_scalar=lambda g: True,
                          capf=lambda g: (3 if g < OP_CAP3 else 2), vm_space=lambda g: (VM_OP if g < 50 * SIG_P else VM_OP2))
    for tk, g in must_before:
        assert tk.gap < g, (tk.gap, g)
    op_phase.info = dict(drain_end=qdr[-1].gap, first_r1=first_r1.gap)
    assert qdr[-1].gap < 50 * (SIG_P - 1), qdr[-1].gap
    assert first_r1.gap >= 50 * (POLL_P + 2), first_r1.gap
    blocks.append(('oppro', pro))
    for p in range(NK // 2):
        pre = []
        if p == SIG_P:
            pre += [vmwait([('st', u), 'flag0']), I("s_barrier")]
            pre += [I(f"s_add_u32 s{S_T3}, s{S_GRP}, 4")]
            pre += sig_code(P_T, "1", S_T3, f"L_{name}_sig1")
        if p == POLL_P:
            pre += [I(f"s_add_u32 s{S_U0}, s{S_GRP}, 4"),
                    I(f"buffer_load_dword v{P_F+1}, v{P_F}, {srd(sD)}, s{S_U0} offen sc1", tag='poll1')]
        if p == POLL_P + 2 and not NOPOLL:
            pre.append(vmwait('poll1'))
            pre += poll_check(P_F, f"L_{name}_poll1", sD, f"s{S_U0}", 8)
        if pre:
            blocks.append((f'opx{p}', pre))
        blocks.append((f'op{p}', flatten(mf, gaps, 50 * p, 50 * p + 50)))
    epi = []
    E = lambda t, **kw: epi.append(I(t, **kw))
    CA, R0 = 200, 100
    E(f"v_add_u32 v{VO+2}, 8192, v{VO}")
    E(f"v_add_u32 v{VO+3}, 12288, v{VO}")
    E(f"v_add_u32 v{P_F+2}, 1, v{P_F+2}")
    E(f"v_add_u32 v{P_F+3}, 1, v{P_F+3}")
    E(f"v_lshrrev_b32 v{CA}, 4, v{VO}")
    E(f"v_and_b32 v{CA+1}, 15, v{CA}")
    E(f"v_lshrrev_b32 v{CA}, 4, v{CA}")
    E(f"v_lshlrev_b32 v{CA}, 3, v{CA}")
    E(f"v_mul_u32_u24 v{CA+1}, 2560, v{CA+1}")
    E(f"v_add_u32 v{CA}, v{CA}, v{CA+1}")
    E(f"s_cmp_ge_u32 s{S_QUAD}, 4")
    E(f"s_cbranch_scc1 L_{name}_ex1")
    for kh in range(2):
        if kh:
            E(f"L_{name}_ex1:")
        keep = list(range(0, 13)) if kh == 0 else list(range(13, 25))
        send = [t for t in range(25) if t not in keep]
        for k, tl in enumerate(send):
            E(f"buffer_store_dwordx4 {vq(4*tl)}, v{VO + k // 4}, {srd(sE)}, s{S_ESND} offen offset:{1024*(k % 4)} sc1", kind='xvmem')
        E("s_waitcnt vmcnt(0)")
        E("s_mov_b64 exec, 1")
        E(f"buffer_store_dword v{P_F+2}, v{P_F}, {srd(sE)}, s{S_FOWN} offen sc1", kind='xvmem')
        E("s_mov_b64 exec, -1")
        E(f"buffer_load_dword v{P_F+1}, v{P_F}, {srd(sE)}, s{S_FPART} offen sc1", kind='xvmem')
        E("s_waitcnt vmcnt(0)")
        epi += poll_check(P_F, f"L_{name}_pollx{kh}", sE, f"s{S_FPART}", f"v{P_F+3}")
        for k, tl in enumerate(keep):
            E(f"buffer_load_dwordx4 {vq(R0+4*k)}, v{VO + k // 4}, {srd(sE)}, s{S_ERCV} offen offset:{1024*(k % 4)} sc1", kind='xvmem')
        for k, tl in enumerate(keep):
            i, nt = divmod(tl, 5)
            a, r = 4 * tl, R0 + 4 * k
            if k == 0 or nt == 0:
                E(f"s_add_u32 s{S_T0}, s{S_COFF}, {i*16*2560}")
            E(f"s_waitcnt vmcnt({len(keep) - 1})")
            E(f"v_pk_add_f32 v[{a}:{a+1}], v[{a}:{a+1}], v[{r}:{r+1}]")
            E(f"v_pk_add_f32 v[{a+2}:{a+3}], v[{a+2}:{a+3}], v[{r+2}:{r+3}]")
            E(f"v_cvt_pk_bf16_f32 v{a}, v{a}, v{a+1}")
            E(f"v_cvt_pk_bf16_f32 v{a+1}, v{a+2}, v{a+3}")
            E(f"buffer_store_dwordx2 v[{a}:{a+1}], v{CA}, {srd(sC)}, s{S_T0} offen offset:{32*nt}", kind='xvmem')
        if kh == 0:
            E(f"s_branch L_{name}_exdone")
    E(f"L_{name}_exdone:")
    blocks.append(('opepi', epi))
    return blocks


def prologue(name, ws):
    o = []
    A = lambda t: o.append(I(t))
    A(f"{name}:")
    A("s_cmp_ge_u32 s2, 256")
    A(f"s_cbranch_scc1 L_{name}_done")
    XCD, IDX, BLK, B, QUAD = 88, 89, 90, 91, 92
    if CODE_WARM:
        A("s_getpc_b64 s[4:5]")
        A(f"L_{name}_pc:")
        A("s_lshr_b32 s88, s2, 3")
        A("s_lshl_b32 s88, s88, 12")
        A("v_lshlrev_b32 v4, 4, v0")
        A("v_add_u32 v4, s88, v4")
        A(f"v_min_u32 v4, L_{name}_end-L_{name}_pc-16, v4")
        o.append(I("global_load_dwordx4 a[236:239], v4, s[4:5]", tag='touch'))
    A(f"s_and_b32 s{XCD}, s2, 7")
    if XPERM:
        A(f"s_add_u32 s{XCD}, s{XCD}, {XPERM}")
        A(f"s_and_b32 s{XCD}, s{XCD}, 7")
    if STAMPS:
        A("s_getreg_b32 s99, hwreg(HW_REG_XCC_ID)")
    A(f"s_lshr_b32 s{IDX}, s2, 3")
    A(f"s_lshr_b32 s{BLK}, s{XCD}, 2")
    A(f"s_and_b32 s{B}, s{XCD}, 3")
    A(f"s_lshl_b32 s{B}, s{B}, 2")
    A(f"s_lshr_b32 s{QUAD}, s{IDX}, 3")
    A(f"s_add_u32 s{B}, s{B}, s{QUAD}")
    A(f"s_and_b32 s{QUAD}, s{IDX}, 7")
    if ONLY:
        A(f"s_and_b32 s4, s{B}, {ONLY}")
        A("s_cmp_lg_u32 s4, 0")
        A(f"s_cbranch_scc1 L_{name}_done")
    if DELAY:
        A(f"s_and_b32 s4, s{B}, {DELAY_MASK}")
        A(f"s_mul_i32 s4, s4, {DELAY}")
        A(f"L_{name}_dl:")
        A("s_cmp_eq_u32 s4, 0")
        A(f"s_cbranch_scc1 L_{name}_dld")
        A("s_sleep 32")
        A("s_sub_u32 s4, s4, 1")
        A(f"s_branch L_{name}_dl")
        A(f"L_{name}_dld:")
    A(f"s_mul_i32 s4, s{BLK}, 40")
    A("s_add_u32 s4, s0, s4")
    A("s_addc_u32 s5, s1, 0")
    A(f"s_load_dwordx2 s[{sX}:{sX+1}], s[4:5], 0")
    A(f"s_load_dwordx2 s[{sK}:{sK+1}], s[4:5], 8")
    A(f"s_load_dwordx2 s[{sV}:{sV+1}], s[4:5], 16")
    A(f"s_load_dwordx2 s[{sW}:{sW+1}], s[4:5], 24")
    A(f"s_load_dwordx2 s[{sWo}:{sWo+1}], s[4:5], 32")
    A(f"s_load_dwordx2 s[{sC}:{sC+1}], s[0:1], 80")
    A(f"s_load_dwordx2 s[{sD}:{sD+1}], s[0:1], 88")
    A("s_load_dwordx2 s[6:7], s[0:1], 96")
    A("v_lshrrev_b32 v1, 6, v0")
    A("v_and_b32 v0, 63, v0")
    A(f"v_readfirstlane_b32 s{S_WAVE}, v1")
    A("s_nop 3")
    A(f"s_lshr_b32 s{S_J}, s{S_WAVE}, 1")
    A(f"s_and_b32 s{S_R}, s{S_WAVE}, 1")
    T, T2, H, BH = 93, 94, 95, 96
    for n in range(3):
        A(f"v_add_u32 v3, {64*n}, v0")
        A("v_mul_u32_u24 v1, 171, v3")
        A("v_lshrrev_b32 v1, 12, v1")
        A("v_mul_u32_u24 v2, 24, v1")
        A("v_sub_u32 v2, v3, v2")
        A("v_bfe_u32 v4, v1, 1, 1")
        A("v_mul_u32_u24 v5, 3, v4")
        A("v_and_b32 v6, 4, v1")
        A("v_or_b32 v5, v5, v6")
        A("v_xor_b32 v5, v5, v2")
        A("v_lshlrev_b32 v5, 4, v5")
        A("v_mul_u32_u24 v6, 384, v1")
        A("v_add_u32 v5, v5, v6")
        A(f"v_subrev_u32 v{PAT_KV+n}, {1024*n}, v5")
        A("v_and_b32 v5, 2, v1")
        A(f"s_lshl_b32 s{T}, s{S_R}, 2")
        A(f"v_or_b32 v5, s{T}, v5")
        A("v_xor_b32 v5, v5, v2")
        A("v_lshlrev_b32 v5, 4, v5")
        A("v_mul_u32_u24 v6, 12288, v1")
        A("v_add_u32 v5, v5, v6")
        A(f"v_subrev_u32 v{PAT_W+n}, {1024*n}, v5")
    A("v_lshrrev_b32 v1, 3, v0")
    A("v_and_b32 v2, 7, v0")
    A("v_and_b32 v4, 6, v1")
    A("v_xor_b32 v2, v2, v4")
    A("v_lshlrev_b32 v2, 4, v2")
    A("v_mul_u32_u24 v1, 1280, v1")
    A(f"v_add_u32 v{PAT_X}, v1, v2")
    A(f"s_mul_i32 s{T}, s{S_J}, 12288")
    A(f"s_mul_i32 s{T2}, s{S_R}, {16*384}")
    A(f"s_add_u32 s{S_CKV}, s{T}, s{T2}")
    A(f"s_mul_i32 s{T2}, s{S_R}, {8*384}")
    A(f"s_add_u32 s{S_CW}, s{T}, s{T2}")
    A(f"s_mul_i32 s{S_C5}, s{S_WAVE}, 5120")
    A(f"s_lshl_b32 s{H}, s{QUAD}, 2")
    A(f"s_add_u32 s{H}, s{H}, s{S_J}")
    A(f"s_mul_i32 s{S_WBASE}, s{H}, 384")
    A(f"s_mul_i32 s{T2}, s{S_R}, {8*12288}")
    A(f"s_add_u32 s{S_WBASE}, s{S_WBASE}, s{T2}")
    A(f"s_sub_u32 s{S_WBASE}, s{S_WBASE}, 768")
    A(f"s_mul_i32 s{S_XBASE}, s{B}, 204800")
    A(f"s_mul_i32 s{T2}, s{S_WAVE}, {40*1280}")
    A(f"s_add_u32 s{S_XBASE}, s{S_XBASE}, s{T2}")
    A(f"s_mul_i32 s{S_CX}, s{S_WAVE}, 5120")
    A(f"s_and_b32 s{T}, s{XCD}, 3")
    A(f"s_mul_i32 s{T}, s{T}, 5")
    A(f"s_add_u32 s{T}, s{T}, 1")
    A(f"s_lshr_b32 s{T}, s{T}, 1")
    if not ROT:
        A(f"s_mov_b32 s{T}, 0")
    A(f"s_mul_i32 s{S_WREL0}, s{T}, {64*12288}")
    A(f"s_lshl_b32 s{S_XREL0}, s{T}, 7")
    A(f"s_mov_b32 s{S_WR}, 0")
    A(f"s_mov_b32 s{S_RD}, 0")
    A(f"s_lshl_b32 s{S_SPARE}, s{S_WAVE}, 12")
    A(f"s_add_u32 s{S_SPARE}, s{S_SPARE}, {SPARE}")
    A("s_waitcnt lgkmcnt(0)")
    for b, nbytes in ((sX, 16*160*640*2), (sK, 16*32*512*192*2), (sV, 16*32*512*192*2), (sW, 640*6144*2),
                      (sWo, 6144*640*2), (sC, 16*160*1280*2), (sD, 256)):
        A(f"s_and_b32 s{b+1}, s{b+1}, 0xffff")
        A(f"s_mov_b32 s{b+2}, {nbytes}")
        A(f"s_mov_b32 s{b+3}, 0x20000")
    for g in range(2 if FAST0 else 5):
        o += straight(dma_item(g))
    A(f"s_and_b32 s{T}, s{XCD}, 3")
    A(f"s_lshl_b32 s{T}, s{T}, 5")
    A(f"s_add_u32 s{T}, s{T}, s{IDX}")
    A(f"s_lshl_b32 s{T}, s{T}, 2")
    A(f"s_add_u32 s{T}, s{T}, s{S_WAVE}")
    A(f"s_mul_i32 s{S_TWO}, s{T}, 15360")
    if WARM:
        A(f"s_lshl_b32 s{T2}, s{QUAD}, 2")
        A(f"s_add_u32 s{T2}, s{T2}, s{S_WAVE}")
        A(f"s_mul_i32 s{T2}, s{T2}, 6400")
        A(f"s_mul_i32 s{T}, s{B}, 204800")
        A(f"s_add_u32 s{T}, s{T}, s{T2}")
        A(f"s_mov_b32 m0, s{S_SPARE}")
        A("v_lshlrev_b32 v4, 7, v0")
        o.append(I(f"buffer_load_dword v4, {srd(sX)}, s{T} offen{X_POL} lds", tag='touch'))
    A("v_and_b32 v1, 15, v0")
    A("v_lshrrev_b32 v2, 4, v0")
    A(f"s_mul_i32 s{T}, s{S_J}, 12288")
    A("v_and_b32 v3, 1, v2")
    A("v_lshlrev_b32 v3, 1, v3")
    A("v_lshrrev_b32 v4, 1, v2")
    A("v_or_b32 v3, v3, v4")
    A("v_bfe_u32 v4, v1, 1, 1")
    A("v_mul_u32_u24 v4, 3, v4")
    A("v_and_b32 v5, 4, v1")
    A("v_or_b32 v4, v4, v5")
    A("v_xor_b32 v3, v3, v4")
    A("v_lshlrev_b32 v3, 4, v3")
    A("v_mul_u32_u24 v4, 384, v1")
    A(f"v_add3_u32 v{LP_K}, v3, v4, s{T}")
    A("v_lshrrev_b32 v3, 2, v1")
    A("v_and_b32 v4, 3, v0")
    A("v_lshl_add_u32 v5, v2, 2, v3")
    A("v_bfe_u32 v6, v5, 1, 1")
    A("v_mul_u32_u24 v6, 3, v6")
    A("v_and_b32 v7, 4, v5")
    A("v_or_b32 v6, v6, v7")
    A("v_lshrrev_b32 v7, 1, v4")
    A("v_xor_b32 v6, v6, v7")
    A("v_lshlrev_b32 v6, 4, v6")
    A("v_and_b32 v8, 1, v4")
    A("v_lshl_add_u32 v6, v8, 3, v6")
    A("v_mul_u32_u24 v5, 384, v5")
    A(f"v_add3_u32 v{LP_V}, v5, v6, s{T}")
    A("v_lshl_add_u32 v5, v2, 3, v3")
    A("v_and_b32 v6, 2, v3")
    A("v_and_b32 v9, 1, v2")
    A("v_lshl_or_b32 v6, v9, 2, v6")
    A("v_xor_b32 v6, v6, v7")
    A("v_lshlrev_b32 v6, 4, v6")
    A("v_lshl_add_u32 v6, v8, 3, v6")
    A("v_mul_u32_u24 v5, 384, v5")
    A(f"v_add3_u32 v{LP_W}, v5, v6, s{T}")
    A(f"s_mul_i32 s{T}, s{S_R}, 10240")
    A("v_lshrrev_b32 v3, 3, v1")
    A("v_lshlrev_b32 v3, 10, v3")
    A("v_and_b32 v4, 7, v1")
    A("v_lshl_add_u32 v3, v4, 7, v3")
    A("v_and_b32 v4, 6, v1")
    A("v_xor_b32 v4, v4, v2")
    A("v_lshlrev_b32 v4, 4, v4")
    A(f"v_add3_u32 v{LP_X}, v3, v4, s{T}")
    A(f"s_lshl_b32 s{BH}, s{B}, 5")
    A(f"s_add_u32 s{BH}, s{BH}, s{H}")
    A(f"s_mul_i32 s{S_KOFF}, s{BH}, 196608")
    A(f"s_mul_i32 s{T2}, s{S_R}, {16*384}")
    A(f"s_add_u32 s{S_KOFF}, s{S_KOFF}, s{T2}")
    A(f"s_mov_b32 s{S_VOFF}, s{S_KOFF}")
    GB = 97
    A(f"s_lshl_b32 s{GB}, s{BLK}, 4")
    A(f"s_add_u32 s{GB}, s{GB}, s{B}")
    A(f"s_mul_i32 s{T}, s{GB}, {192*10240}")
    A(f"s_add_u32 s{T}, s{T}, {ws['o_off']}")
    A(f"s_add_u32 s{sO}, s6, s{T}")
    A(f"s_addc_u32 s{sO+1}, s7, 0")
    A(f"s_and_b32 s{sO+1}, s{sO+1}, 0xffff")
    A(f"s_mov_b32 s{sO+2}, 0")
    A(f"s_mov_b32 s{S_OADV}, 0")
    A(f"s_mov_b32 s{sO+3}, 0x20000")
    A(f"s_mul_i32 s{T}, s{QUAD}, 24")
    A(f"s_mul_i32 s{T2}, s{S_J}, 6")
    A(f"s_add_u32 s{T}, s{T}, s{T2}")
    A(f"s_mul_i32 s{S_OOFF}, s{T}, 10240")
    A(f"s_mul_i32 s{T2}, s{S_R}, 5120")
    A(f"s_add_u32 s{S_OOFF}, s{S_OOFF}, s{T2}")
    A(f"s_lshr_b32 s{T}, s{QUAD}, 2")
    A(f"s_and_b32 s{T2}, s{QUAD}, 3")
    A(f"s_mul_i32 s{S_PADV}, s{S_J}, 30720")
    A(f"s_add_u32 s{S_PADV}, s{S_PADV}, 10240")
    A(f"s_mul_i32 s{S_PSRC}, s{T}, 96")
    A(f"s_mul_i32 s{S_PSRC}, s{S_PSRC}, s{S_PADV}")
    A(f"s_mul_i32 s{H}, s{T2}, 320")
    A(f"s_mul_i32 s{H}, s{H}, s{S_J}")
    A(f"s_add_u32 s{S_PSRC}, s{S_PSRC}, s{H}")
    A(f"s_lshr_b32 s{H}, s{S_PADV}, 1")
    A(f"s_mul_i32 s{H}, s{H}, s{S_R}")
    A(f"s_add_u32 s{S_PSRC}, s{S_PSRC}, s{H}")
    A(f"s_mul_i32 s100, s{T}, 96")
    A(f"s_mul_i32 s100, s100, s{S_PADV}")
    A(f"s_mul_i32 s{H}, s{T2}, 3")
    A(f"s_and_b32 s{BH}, s{B}, 3")
    A(f"s_add_u32 s{H}, s{H}, s{BH}")
    A(f"s_mul_i32 s{H}, s{H}, s{S_J}")
    A(f"s_add_u32 s{H}, s{H}, s{T2}")
    A(f"s_mul_i32 s{H}, s{H}, 5120")
    A(f"s_add_u32 s100, s100, s{H}")
    A(f"s_mul_i32 s{H}, s{S_R}, 2560")
    A(f"s_add_u32 s100, s100, s{H}")
    A(f"s_mov_b32 s{S_PBASE}, s{S_PSRC}")
    A(f"s_and_b32 s{S_PQ}, s{XCD}, {3 if ROT_OP else 0}")
    A(f"s_mul_i32 s{H}, s{S_PQ}, 24")
    A(f"s_mul_i32 s{H}, s{H}, s{S_PADV}")
    A(f"s_add_u32 s{S_PSRC}, s{S_PSRC}, s{H}")
    if FAKE_OP:
        A(f"s_mov_b32 s{S_PADV}, 0")
    A(f"s_mul_i32 s{S_COFF}, s{B}, {160*2560}")
    A(f"s_mul_i32 s{H}, s{S_R}, {80*2560}")
    A(f"s_add_u32 s{S_COFF}, s{S_COFF}, s{H}")
    A(f"s_mul_i32 s{H}, s{BLK}, 1280")
    A(f"s_add_u32 s{S_COFF}, s{S_COFF}, s{H}")
    A(f"s_mul_i32 s{H}, s{T2}, 320")
    A(f"s_add_u32 s{S_COFF}, s{S_COFF}, s{H}")
    A(f"s_mul_i32 s{H}, s{S_J}, 160")
    A(f"s_add_u32 s{S_COFF}, s{S_COFF}, s{H}")
    A(f"s_mov_b32 s{S_QUAD}, s{QUAD}")
    A(f"s_lshl_b32 s{H}, s{GB}, 3")
    A(f"s_add_u32 s{T}, s{H}, s{QUAD}")
    A(f"s_lshl_b32 s{T}, s{T}, 2")
    A(f"s_add_u32 s{T}, s{T}, s{S_WAVE}")
    A(f"s_mul_i32 s{S_ESND}, s{T}, 13312")
    A(f"s_lshl_b32 s{S_FOWN}, s{T}, 7")
    A(f"s_add_u32 s{S_FOWN}, s{S_FOWN}, {1024*13312}")
    A(f"s_xor_b32 s{T}, s{T}, 16")
    A(f"s_mul_i32 s{S_ERCV}, s{T}, 13312")
    A(f"s_lshl_b32 s{S_FPART}, s{T}, 7")
    A(f"s_add_u32 s{S_FPART}, s{S_FPART}, {1024*13312}")
    A(f"s_lshl_b32 s{S_GRP}, s{GB}, 3")
    c = math.log2(math.e) / math.sqrt(192.0)
    cb = struct.unpack('<I', struct.pack('<f', c))[0]
    A(f"s_mov_b32 s{S_SCALE}, 0x{cb:08x}")
    A(f"s_mov_b32 s{S_UNIT}, 0")
    A(f"s_mov_b32 s{S_DMIN}, 0")
    A(f"s_mov_b32 s{S_FORCED}, 0")
    if FAST0:
        for g in (2, 3):
            o += straight(dma_item(g))
    return o


def build(name, ws):
    pro = prologue(name, ws)
    units = []
    for u in range(NUNITS):
        bl = q_phase(u) + a_phase(u)
        if u == 0:
            bl = [b for b in bl if b[0] != 'qdrain']
        else:
            k = [b[0] for b in bl].index('a12')
            bl[k:k] = [('t1issue', tail1_issue(name, ws))]
            k = [b[0] for b in bl].index('a13')
            bl[k:k] = [('t1check', tail1_check(name))]
        units.append(bl)
    opb = op_phase(name)
    stream = list(pro)
    for ub in units:
        for _, b in ub:
            stream += b
    for _, b in opb:
        stream += b
    resolve_waits(stream)
    errs = check_hazards(stream, name)
    for sp in slow_paths():
        errs += check_hazards(sp, 'slow')
    if errs:
        raise RuntimeError("\n".join(errs[:30]))
    ub, ub1 = dict(units[0]), dict(units[1])
    shared = ['qpre0', 'qfin', 'asig', 'a1h'] + [f'q{it}' for it in range(1, 10)] + ([] if FAST0 else ['qpre', 'q0']) + [f'a{t}' for t in range(12)]
    for k in shared:
        merge_min([ub[k], ub1[k]])
    ub.update(dict(opb))
    out = [x.text() for x in pro]
    tramp = []
    cnt = [0]
    nst = [0]

    def stamp(real=False, fine=False):
        if STAMPS and (fine == FINE or real):
            out.extend(["s_memrealtime s[4:5]" if (real or ALLREAL) else "s_memtime s[4:5]", "s_waitcnt lgkmcnt(0)", f"s_mov_b32 s{S_ST+nst[0]}, s4"])
            nst[0] += 1

    def flush_stamps(slot_expr):
        if STAMPS:
            out.extend([f"s_lshl_b32 s4, s2, 2", f"s_add_u32 s4, s4, s{S_WAVE}", "s_lshl_b32 s4, s4, 2",
                        f"s_add_u32 s4, s4, {slot_expr}", "s_lshl_b32 s4, s4, 6",
                        f"s_add_u32 s4, s4, s6", "s_addc_u32 s5, s7, 0",
                        f"s_add_u32 s4, s4, {ws['dbg_off']}", "s_addc_u32 s5, s5, 0",
                        "v_mov_b32 v1, 0"])
            for k in range(nst[0]):
                out.extend([f"v_mov_b32 v2, s{S_ST+k}", f"global_store_dword v1, v2, s[4:5] offset:{4*k}"])
            out.extend(["v_mov_b32 v2, s99", f"global_store_dword v1, v2, s[4:5] offset:{4*14}"])
            out.extend(["v_mov_b32 v2, s101", f"global_store_dword v1, v2, s[4:5] offset:{4*15}"])
            nst[0] = 0

    if STAMPS:
        out[3:3] = ["s_memrealtime s[4:5]" if ALLREAL else "s_memtime s[4:5]", "s_waitcnt lgkmcnt(0)", "s_mov_b32 s101, s4"]

    def emit(block, adv=None):
        k = cnt[0]
        cnt[0] += 1
        for x in block:
            t = x.text()
            if '@TRAMP' in t:
                par = t.split('@TRAMP')[1][:2]
                kk = cnt[0]
                cnt[0] += 1
                out.append(t.replace(f'@TRAMP{par}@', f'L_tr{kk}'))
                out.append(f'L_back{kk}:')
                tramp.extend([f'L_tr{kk}:', f's_call_b64 s[{S_RET}:{S_RET+1}], L_slow{par}', f's_branch L_back{kk}'])
            elif '@L1@' in t:
                out.append(t.replace('@L1@', f'L_sig{k}'))
            elif '@OADV' in t or '@WADV' in t:
                key = t[t.index('@'):]
                if adv and key in adv:
                    out.append(t.replace(key, adv[key]))
                else:
                    out.append(t.replace(key, str(x.extra)))
            else:
                out.append(t)

    def loop(label, names_list, top=None, adv=None):
        body = [sum((ub[n] for n in names), []) for names in names_list]
        merged = merge_min(body)
        out.append(f"s_mov_b32 s{S_LOOP}, {len(names_list)}")
        out.append(".p2align 3")
        out.append(f"{label}:")
        if top:
            out.extend(top)
        emit(merged, adv)
        out.append(f"s_sub_u32 s{S_LOOP}, s{S_LOOP}, 1")
        out.append(f"s_cmp_lg_u32 s{S_LOOP}, 0")
        out.append(f"s_cbranch_scc1 {label}")

    out.append(f"L_{name}_unit:")
    stamp()
    emit(ub['qpre0'])
    out.append(f"s_cmp_eq_u32 s{S_UNIT}, 0")
    out.append(f"s_cbranch_scc1 L_{name}_nodrain")
    emit(ub1['qdrain'])
    if FAST0:
        ns = nst[0]
        emit(ub1['qpre'])
        stamp()
        stamp(fine=True)
        emit(ub1['q0'])
        out.append(f"s_branch L_{name}_q1")
        nst[0] = ns
    out.append(f"L_{name}_nodrain:")
    emit(ub['qpre'])
    stamp()
    for it in range(10):
        if it == 1:
            out.append(f"L_{name}_q1:")
        stamp(fine=True)
        emit(ub[f'q{it}'])
    stamp(fine=True)
    stamp()
    emit(ub['qfin'])
    stamp()
    emit(ub['a0'])
    stamp()
    emit(ub['a1h'])
    emit(ub['a1'])
    emit(ub['asig'])
    stamp()
    emit(ub['a2'])
    emit(ub['a3'])
    loop(f"L_{name}_a", [[f'a{t}', f'a{t+1}'] for t in range(4, 12, 2)])
    stamp()
    nsave = nst[0]
    out.append(f"s_cmp_eq_u32 s{S_UNIT}, {NUNITS-1}")
    out.append(f"s_cbranch_scc1 L_{name}_tail1")
    for t in (12, 13, 14, 15):
        emit(ub[f'a{t}'])
    emit(ub['apost'])
    stamp()
    emit(ub['lred'])
    stamp()
    stamp(True)
    flush_stamps("0")
    out.append(f"s_add_u32 s{S_UNIT}, s{S_UNIT}, 1")
    out.append(f"s_branch L_{name}_unit")
    out.append(f"L_{name}_tail1:")
    nst[0] = nsave
    for k in ('t1issue', 'a12', 't1check', 'a13', 'a14', 'a15', 'apost'):
        emit(ub1[k])
    stamp()
    emit(ub1['lred'])
    stamp()
    stamp(True)
    flush_stamps("1")
    stamp()
    stamp(True)
    emit(ub['oppro'])
    stamp()
    for nme, _ in opb:
        if nme in ('oppro', 'opepi'):
            continue
        if nme in ('op16', 'op24'):
            stamp()
        if nme in [f'op{x}' for x in range(0, 22, 2)]:
            stamp(fine=True)
        emit(ub[nme])
    stamp()
    emit(ub['opepi'])
    if STAMPS:
        out.append("s_waitcnt vmcnt(0)")
    stamp()
    stamp(True)
    flush_stamps("2")
    out.append(f"L_{name}_done:")
    out.append("s_endpgm")
    out += tramp
    for sp in slow_paths():
        out += [x.text() for x in sp]
    out.append(f"L_{name}_end:")
    return out
```

```python
import sys, importlib
import gen
def make(out, mod='kf', **kw):
    m = importlib.import_module(mod)
    importlib.reload(m)
    m.STAMPS = True
    m.ALLREAL = True
    for k, v in kw.items():
        setattr(m, k, v)
    gen.kf = m
    gen.main(out, True)
    print(out, m.q_phase.info, m.op_phase.info)
if __name__ == "__main__":
    for args, kw in [
        (('fa.s',), {}),
        (('fb.s',), dict(A_WIN=None)),
    ]:
        make(*args, **kw)
```

```python
import math
import struct
from asmlib import *

SLOT = 24576
NSLOT = 6
RING = SLOT * NSLOT
SPARE = RING
LDS_BYTES = 163840
NUNITS = 2

sX, sK, sV, sW, sO = 8, 12, 16, 20, 24
S_WAVE, S_J, S_R = 28, 29, 30
S_WR, S_RD = 31, 32
S_KOFF, S_VOFF, S_WOFF, S_OADV = 33, 34, 35, 36
S_CKV, S_CW, S_OT = 37, 38, 39
S_T0, S_T1, S_T2, S_T3 = 40, 41, 42, 43
S_LOOP, S_UNIT = 44, 45
S_SCALE = 46
S_OOFF = 47
S_WBASE = 48
S_RET = 50
S_DMIN = 52
S_FORCED = 53
S_XBASE, S_XOFF, S_CX, S_WREL0, S_XREL0 = 49, 54, 55, 87, 3
S_QUAD, S_ESND, S_ERCV, S_TWO = 56, 57, 58, 59
sWo, sC, sD = 60, 68, 72
S_FOWN, S_FPART, S_PQ, S_PBASE = 64, 65, 66, 67
S_SPARE = 76
S_GRP = 77
S_U0, S_U1, S_U2, S_U3 = 78, 79, 80, 81
S_PSRC, S_PADV, S_COFF = 82, 83, 84
S_C5 = 85
sP, sE = 8, 20
S_BLKC = 86
S_WPF, S_WPB = 86, 59
S_PFS, S_PFQ, S_PFB = 35, 54, 48
S_ST = 88


def srd(b): return f"s[{b}:{b+3}]"
def vq(b): return f"v[{b}:{b+3}]"
def aq(b): return f"a[{b}:{b+3}]"


def Qf(ks, i): return 4 * (5 * ks + i)
def Sr(st, i): return 120 + 20 * st + 4 * i
def Pr(par, i): return 160 + 20 * par + 4 * i
def NM(i): return 200 + 4 * i


L0, TS0, E0 = 220, 225, 230
KA, VA, CHK = 238, 240, 244
PAT_KV, PAT_W, PAT_X = 245, 248, 251
LP_K, LP_V, LP_W, LP_X = 252, 253, 254, 255
WA, XA = 240, 244
RL = L0
Q_OA2, Q_T, Q_D, TCH, SA = 225, 226, 234, 238, 239
OPV = [248, 249, 250, 251, 254]
def ACC(n, i): return 4 * (5 * n + i)
def acc_reg(n, i): return vq(ACC(n, i)) if n < 11 else aq(60 + 4 * i)
def Oa(n, i): return 4 * (5 * n + i)
def FR(b): return 240 + 4 * b
def XF(s, i): return 20 * (s & 1) + 4 * i
WOF = 40
UNIT_ITEMS = 62
NQI = 30
OP0 = UNIT_ITEMS * NUNITS


MF = "v_mfma_f32_16x16x32_bf16"
KV_POL = " nt"
W_POL = ""
X_POL = ""
WO_UNIT = 0
WARM1 = True
ROT = True
ONLYSEL = 91
OP_DRAIN0 = 0
Q_DRAIN0 = 0
NSTG, STG0, STG_PACE = 0, 150, 20
A_WIN = 5
A_BURST = False
XPERM = 0
FAST0 = True
WO_EV = (4, 6, 8, 10, 12)
TLN = 24
KV_EV = {}
KVT_POL = ''
WO_WARM = True
CODE_WARM = True
FAKE_W = FAKE_X = False
QPF, QPF0, QPFD = True, 3, 4
OPF, OPFD = False, 5
ONLY = 0
DELAY = 0
DELAY_MASK = 1
NOPOLL = False
WO_KS = 19
KV_TOUCH = 0
ROT_OP = True
FAKE_OP = False
ALLREAL = False
VM_Q, VM_A, VM_OP = 3, 8, 1
A_DMA_PRIO = False
FINE = False
ASIG_BEFORE = 'a2'
STP = " sc1"
HAND = " sc1"
STAMPS = False
WARM = True
BAR_LEAD = 12


def ring_adv(s, tmp):
    return [I(f"s_add_u32 s{s}, s{s}, {SLOT}"),
            I(f"s_sub_u32 s{tmp}, s{s}, {RING}"),
            I(f"s_min_u32 s{s}, s{s}, s{tmp}")]


def item_kind(idx):
    if idx < NQI:
        it, k = divmod(idx, 3)
        return [('W', 2 * it), ('X', it), ('W', 2 * it + 1)][k]
    a = idx - NQI
    if a == 0:
        return ('K', 0)
    if a == 31:
        return ('V', 15)
    return ('K', (a + 1) // 2) if a % 2 == 1 else ('V', a // 2 - 1)


NK = 96
PITEM = 20480


def op_addrs():
    addr, when = {}, {}
    live = []
    for it in range(6):
        a = ((OP0 + it) % NSLOT) * SLOT
        addr[it] = a
        when[it] = None if it < 5 else 0
        live.append((a, a + PITEM, it // 2 + 1))
    for it in range(6, NK):
        best = None
        for j in range(8):
            a = j * PITEM
            t = max([f for (s0, e0, f) in live if s0 < a + PITEM and a < e0] + [0])
            if best is None or t < best[0]:
                best = (t, a)
        t, a = best
        t = max(t, when[it - 1] or 0)
        addr[it], when[it] = a, t
        live = [x for x in live if not (x[0] < a + PITEM and a < x[1])]
        live.append((a, a + PITEM, it // 2 + 1))
        assert t <= it // 2 - 1, (it, t)
    return addr, when


def dma_op_item(it, pv):
    gid = OP0 + it
    a = op_addrs()[0][it]
    out = [I(f"s_add_u32 m0, s{S_C5}, {a}")]
    for k in range(4):
        out.append(I(f"buffer_load_dwordx4 v{pv[k]}, {srd(sP)}, s{S_PSRC} offen offset:{1024*k}{HAND} lds", tag=gid))
    out.append(I(f"s_add_u32 m0, s{S_C5}, {a + 4096}"))
    out.append(I(f"buffer_load_dwordx4 v{pv[4]}, {srd(sP)}, s{S_PSRC} offen{HAND} lds", tag=gid))
    if it % 12 != 11:
        out.append(I(f"s_add_u32 s{S_PSRC}, s{S_PSRC}, s{S_PADV}"))
    else:
        rnd = (it + 1) // 48
        out += [I(f"s_add_u32 s{S_PQ}, s{S_PQ}, 1"), I(f"s_and_b32 s{S_PQ}, s{S_PQ}, 3"),
                I(f"s_mul_i32 s{S_T0}, s{S_PQ}, 24"), I(f"s_add_u32 s{S_T0}, s{S_T0}, {12*rnd}"),
                I(f"s_mul_i32 s{S_T0}, s{S_T0}, s{S_PADV}"), I(f"s_add_u32 s{S_PSRC}, s{S_PBASE}, s{S_T0}")]
    return out


def dma_item(gid):
    if gid >= OP0:
        return dma_op_item(gid - OP0, OPV)
    u, idx = divmod(gid, UNIT_ITEMS)
    kind, num = item_kind(idx)
    out = []
    if idx == 0:
        out += [I(f"s_add_u32 s{S_WBASE}, s{S_WBASE}, 768"),
                I(f"s_mov_b32 s{S_WOFF}, s{S_WREL0}"),
                I(f"s_mov_b32 s{S_XOFF}, s{S_XREL0}")]
    if kind in 'KV':
        off = S_KOFF if kind == 'K' else S_VOFF
        d = srd(sK if kind == 'K' else sV)
        out.append(I(f"s_add_u32 m0, s{S_WR}, s{S_CKV}"))
        for n in range(3):
            out.append(I(f"buffer_load_dwordx4 v{PAT_KV+n}, {d}, s{off} offen offset:{1024*n}{KV_POL} lds", tag=gid))
        out.append(I(f"s_add_u32 m0, m0, 3072"))
        out.append(I(f"s_add_u32 s{S_T0}, s{off}, 3072"))
        for n in range(3):
            out.append(I(f"buffer_load_dwordx4 v{PAT_KV+n}, {d}, s{S_T0} offen offset:{1024*n}{KV_POL} lds", tag=gid))
        adv = 12288 + (196608 if num == 15 else 0)
        out.append(I(f"s_add_u32 s{off}, s{off}, {adv}"))
    elif kind == 'W':
        out.append(I(f"s_add_u32 m0, s{S_WR}, s{S_CW}"))
        out.append(I(f"s_add_u32 s{S_T0}, s{S_WOFF}, s{S_WBASE}"))
        for n in range(3):
            out.append(I(f"buffer_load_dwordx4 v{PAT_W+n}, {srd(sW)}, s{S_T0} offen offset:{1024*n}{W_POL} lds", tag=gid))
        out.append(I(f"s_add_u32 m0, m0, {16*384}"))
        out.append(I(f"s_add_u32 s{S_T0}, s{S_T0}, {16*12288}"))
        for n in range(3):
            out.append(I(f"buffer_load_dwordx4 v{PAT_W+n}, {srd(sW)}, s{S_T0} offen offset:{1024*n}{W_POL} lds", tag=gid))
        out.append(I(f"s_add_u32 s{S_WOFF}, s{S_WOFF}, {0 if FAKE_W else 32*12288}"))
        out.append(I(f"s_sub_u32 s{S_T0}, s{S_WOFF}, {640*12288}"))
        out.append(I(f"s_min_u32 s{S_WOFF}, s{S_WOFF}, s{S_T0}"))
    else:
        out.append(I(f"s_add_u32 m0, s{S_WR}, s{S_CX}"))
        out.append(I(f"s_add_u32 s{S_T0}, s{S_XOFF}, s{S_XBASE}"))
        for p in range(5):
            if p == 4:
                out.append(I(f"s_add_u32 m0, m0, 4096"))
                out.append(I(f"s_add_u32 s{S_T0}, s{S_T0}, {10240+3072}"))
                out.append(I(f"buffer_load_dwordx4 v{PAT_X}, {srd(sX)}, s{S_T0} offen{X_POL} lds", tag=gid))
            else:
                if p:
                    out.append(I(f"s_add_u32 s{S_T0}, s{S_T0}, {10240-1024}"))
                out.append(I(f"buffer_load_dwordx4 v{PAT_X}, {srd(sX)}, s{S_T0} offen offset:{1024*p}{X_POL} lds", tag=gid))
        out.append(I(f"s_add_u32 s{S_XOFF}, s{S_XOFF}, {0 if FAKE_X else 128}"))
        out.append(I(f"s_sub_u32 s{S_T0}, s{S_XOFF}, 1280"))
        out.append(I(f"s_min_u32 s{S_XOFF}, s{S_XOFF}, s{S_T0}"))
    out += ring_adv(S_WR, S_T1)
    return out


def drain_group(u, m, i, T, D, oa, oa2, packed, ntemp=8):
    o = []
    rl = RL + i
    for half in range(2):
        t = T + (4 * half if ntemp == 8 else 0)
        for k in range(4):
            o.append(I(f"v_accvgpr_read_b32 v{t+k}, a{Oa(2*m+half,i)+k}"))
        if packed:
            sel = "op_sel:[0,1] op_sel_hi:[1,1]" if rl & 1 else "op_sel_hi:[1,0]"
            rp = rl & ~1
            for k in (0, 2):
                o.append(I(f"v_pk_mul_f32 v[{t+k}:{t+k+1}], v[{t+k}:{t+k+1}], v[{rp}:{rp+1}] {sel}"))
        else:
            for k in range(4):
                o.append(I(f"v_mul_f32 v{t+k}, v{rl}, v{t+k}"))
        for k in range(2):
            o.append(I(f"v_cvt_pk_bf16_f32 v{D+2*half+k}, v{t+2*k}, v{t+2*k+1}"))
    if i == 0:
        o.append(I(f"s_add_u32 s{S_OT}, s{S_OOFF}, {m*10240}"))
    if i < 4:
        o.append(I(f"buffer_store_dwordx4 {vq(D)}, v{oa}, {srd(sO)}, s{S_OT} offen offset:{1024*i}{STP}", tag=('st', u)))
    else:
        o.append(I(f"buffer_store_dwordx4 {vq(D)}, v{oa2}, {srd(sO)}, s{S_OT} offen{STP}", tag=('st', u)))
    return o


def l_reduce():
    fin = []
    for i in range(5):
        fin.append(I(f"v_mov_b32 v{E0+i}, v{L0+i}"))
    for i in range(5):
        fin.append(I(f"v_permlane32_swap_b32 v{L0+i}, v{E0+i}"))
    for i in range(5):
        fin.append(I(f"v_add_f32 v{L0+i}, v{L0+i}, v{E0+i}"))
    for i in range(5):
        fin.append(I(f"v_mov_b32 v{E0+i}, v{L0+i}"))
    for i in range(5):
        fin.append(I(f"v_permlane16_swap_b32 v{L0+i}, v{E0+i}"))
    for i in range(5):
        fin.append(I(f"v_add_f32 v{L0+i}, v{L0+i}, v{E0+i}"))
    for i in range(5):
        fin.append(I(f"v_rcp_f32 v{RL+i}, v{L0+i}"))
    return fin


def straight(instrs):
    out = []
    for ins in instrs:
        if ins.kind == 'dma' and out and 'm0' in out[-1].txt.split(',')[0]:
            out.append(I("s_nop 0"))
        out.append(ins)
    return out


def open_item(kind):
    if kind == 'K':
        o = [I(f"v_add_u32 v{KA}, s{S_RD}, v{LP_K}"), I(f"v_xor_b32 v{KA+1}, 64, v{KA}")]
    elif kind in 'VW':
        lp = LP_V if kind == 'V' else LP_W
        o = [I(f"v_add_u32 v{VA}, s{S_RD}, v{lp}"), I(f"v_xor_b32 v{VA+1}, 32, v{VA}"),
             I(f"v_xor_b32 v{VA+2}, 64, v{VA}"), I(f"v_xor_b32 v{VA+3}, 64, v{VA+1}")]
    else:
        o = [I(f"v_add_u32 v{XA}, s{S_RD}, v{LP_X}")]
    return o + ring_adv(S_RD, S_T2)


def k_read(f, buf, tag):
    st, ks = divmod(f, 6)
    return [I(f"ds_read_b128 {aq(buf)}, v{KA + (ks & 1)} offset:{st*6144 + (ks >> 1)*128}", tag=tag)]


def v_read(n, buf, tag, half_off=6144):
    return [I(f"ds_read_b64_tr_b16 a[{buf+2*h}:{buf+2*h+1}], v{VA + (n & 3)} offset:{(n >> 2)*128 + h*half_off}", tag=tag)
            for h in range(2)]


def sm_ops(par, st, i, tbase):
    e = [E0 + (tbase + r) % 8 for r in range(4)]
    s = Sr(st, i)
    p = Pr(par, i) + 2 * st
    ts = TS0 + i
    o = [I(f"v_exp_f32 v{e[r]}, v{s+r}") for r in range(4)]
    o.append(I(f"v_cvt_pk_bf16_f32 v{p}, v{e[0]}, v{e[1]}"))
    o.append(I(f"v_add_f32 v{ts}, v{e[0]}, v{e[1]}"))
    o.append(I(f"v_cvt_pk_bf16_f32 v{p+1}, v{e[2]}, v{e[3]}"))
    o.append(I(f"v_add_f32 v{ts}, v{ts}, v{e[2]}"))
    o.append(I(f"v_add_f32 v{ts}, v{ts}, v{e[3]}"))
    return o


def qk_mfmas(first_zero=False):
    out = []
    for st in range(2):
        for ks in range(6):
            for i in range(5):
                f = st * 6 + ks
                c = (("0" if first_zero else vq(NM(i))) if ks == 0 else vq(Sr(st, i)))
                out.append((f, f"{MF} {vq(Sr(st,i))}, @FR@, {vq(Qf(ks,i))}, {c}"))
    return out


def pv_mfmas(par, zero=False):
    out = []
    for n in range(12):
        for i in range(5):
            c = "0" if zero else aq(Oa(n, i))
            out.append((n, f"{MF} {aq(Oa(n,i))}, @FR@, {vq(Pr(par,i))}, {c}"))
    return out


def flatten(mf, gaps, lo, hi):
    out = []
    for g in range(lo, hi):
        out.append(mf[g])
        out.extend(gaps[g])
    return out


def lane_id(v):
    return [I(f"v_mbcnt_lo_u32_b32 v{v}, -1, 0"), I(f"v_mbcnt_hi_u32_b32 v{v}, -1, v{v}")]


PIECES = list(range(40, 60, 4)) + list(range(80, 240, 4))


def stage_load(gid, x):
    kind, num = item_kind(NQI + x)
    off, d = (S_KOFF, srd(sK)) if kind == 'K' else (S_VOFF, srd(sV))
    out = []
    for p in range(6):
        if p == 3:
            out.append(I(f"s_add_u32 s{S_U0}, s{off}, 3072"))
        so = off if p < 3 else S_U0
        out.append(I(f"buffer_load_dwordx4 {aq(PIECES[6*x+p])}, v{PAT_KV + p % 3}, {d}, s{so} offen offset:{1024*(p % 3)}{KV_POL}", tag=gid,
                     extra=PIECES[6 * x + p]))
    out.append(I(f"s_add_u32 s{off}, s{off}, 12288"))
    return out


def stage_flush(gid, x, fa, sa):
    out = [vmwait(gid), I(f"s_add_u32 s{S_T0}, s{S_WR}, s{S_CKV}"), I(f"v_add_u32 v{fa}, s{S_T0}, v{sa}")]
    for p in range(6):
        out.append(I(f"ds_write_b128 v{fa}, {aq(PIECES[6*x+p])} offset:{1024*p}", tag=('fl', gid)))
    return out + ring_adv(S_WR, S_T1)


def q_phase(u):
    g0 = UNIT_ITEMS * u
    pu = u - 1
    blocks = []
    pre = []
    pre += lane_id(0)
    pre += [I(x) for x in (
        "v_lshlrev_b32 v1, 7, v0",
        f"v_cmp_gt_u32 vcc, {TLN}, v0",
        "v_mov_b32 v2, 0x7ffffff0",
        "s_nop 0",
        f"v_cndmask_b32 v{TCH}, v2, v1, vcc",
        f"v_lshlrev_b32 v{SA}, 4, v0",
        f"v_add_u32 v{Q_OA2}, 4096, v{SA}")]
    blocks.append(('qpre0', pre))
    pre = []
    k = 0
    for m in range(2):
        for i in range(5):
            pre += drain_group(pu, m, i, 8 + 8 * (k % 4), 48 + 4 * (k % 4), SA, Q_OA2, True)
            k += 1
    blocks.append(('qdrain', pre))
    pre = []
    pre += [bothwait([g0, g0 + 1]), I("s_barrier")]
    pre += open_item('W') + open_item('X')
    mf = []
    for s_ in range(20):
        for n in range(12):
            for i in range(5):
                F = s_ * 12 + n
                c = "0" if s_ == 0 else acc_reg(n, i)
                mf.append(I(f"{MF} {acc_reg(n,i)}, {aq(FR(F % 4))}, {aq(XF(s_, i))}, {c}"))
    fixed = {}
    qds, qaddr, qdma, qwo, qx, qdr = [], [], [], [], [], []
    bar_gap = {s_: 60 * s_ - BAR_LEAD - 1 for s_ in range(1, 20)}

    def wreads(F):
        return v_read(F % 12, FR(F % 4), ('w', u, F), half_off=1536)

    def xreads(s_):
        return [I(f"ds_read_b128 {aq(XF(s_, i))}, v{XA} offset:{2048*i}", tag=('x', u, s_)) for i in range(5)]

    pre += wreads(0) + xreads(0) + wreads(1) + wreads(2)
    if u > 0 or not FAST0:
        pre += straight(dma_item(g0 + 5))
    pre.append(dswait([('w', u, 0), ('x', u, 0)]))
    last_rd = {}
    for m in range(2, 6):
        for i in range(5):
            for o in drain_group(pu, m, i, Q_T, Q_D, SA, Q_OA2, False):
                t = Task(o, earliest=Q_DRAIN0)
                qdr.append(t)
                if o.txt.startswith('v_accvgpr_read'):
                    last_rd[m] = t
    qdr.append(Task(I(f"s_add_u32 s{S_OOFF}, s{S_OOFF}, s{S_OADV}"), earliest=0))
    last_read = None
    must_before = []
    wo_done = []
    for s_ in range(20):
        first = True
        addr_task = None
        if s_ >= 1:
            need = [g0 + 3 * (s_ // 2), g0 + 3 * (s_ // 2) + 1] if s_ % 2 == 0 else [g0 + 3 * (s_ // 2) + 2]
            fixed.setdefault(bar_gap[s_], []).extend([bothwait(need), I("s_barrier")])
            must_before.append((last_read, bar_gap[s_]))
            ops = open_item('W')
            if s_ % 2 == 0:
                ops += open_item('X')
            for k, o in enumerate(ops):
                t = Task(o, earliest=0, after=last_read if k == 0 else None, gapdist=1)
                qaddr.append(t)
                if o.kind == 'valu':
                    addr_task = t
        for n in range(12):
            F = s_ * 12 + n
            if s_ == 0 and n < 3:
                continue
            e = 5 * (F - 4) + 4
            if s_ >= 1:
                e = max(e, bar_gap[s_])
            rs = wreads(F)
            if n == 0 and s_ % 2 == 0:
                rs = rs + xreads(s_)
            if n == 6 and s_ % 2 == 0:
                rs = rs + [I(f"v_xor_b32 v{XA}, 64, v{XA}")] + xreads(s_ + 1)
            for r in rs:
                t = Task(r, earliest=e, after=addr_task if first else None, gapdist=1)
                first = False
                qds.append(t)
                last_read = t
        for n in range(12):
            F = s_ * 12 + n
            if F == 0:
                continue
            tags = [('w', u, F)] + ([('x', u, s_)] if n == 0 else [])
            fixed.setdefault(5 * F - 1, []).append(dswait(tags))
        if s_ >= 1:
            it = s_ // 2
            items = [3 * it + 5] if s_ % 2 == 0 else [3 * it + 6, 3 * it + 7]
            for x in items:
                if x >= NQI and x - NQI < NSTG:
                    for o in stage_flush(g0 + x, x - NQI, Q_T, SA):
                        wr = o.txt.startswith('ds_write')
                        qdma.append(Task(o, earliest=bar_gap[s_] + 1, after=(qdma[-1] if wr else qdr[-1]), gapdist=1))
                else:
                    for o in dma_item(g0 + x):
                        qdma.append(Task(o, earliest=bar_gap[s_] + 1))
        if s_ in WO_EV and WO_WARM:
            for o in (I(f"s_mov_b32 m0, s{S_SPARE}"),
                      I(f"buffer_load_dword v{TCH}, {srd(sWo)}, s{S_TWO} offen lds", tag=('two', u)),
                      I(f"s_add_u32 s{S_TWO}, s{S_TWO}, {TLN * 128}")):
                qdma.append(Task(o, earliest=60 * s_))
        if s_ in KV_EV:
            for x, part in KV_EV[s_]:
                kind, num = item_kind(NQI + x)
                off, d = (S_KOFF, sK) if kind == 'K' else (S_VOFF, sV)
                for o in (I(f"s_mov_b32 m0, s{S_SPARE}"),
                          I(f"s_add_u32 s{S_T0}, s{off}, {num*12288 + part*TLN*128}"),
                          I(f"buffer_load_dword v{TCH}, {srd(d)}, s{S_T0} offen{KVT_POL} lds", tag=('tkv', u))):
                    qdma.append(Task(o, earliest=60 * s_ + 30 * part))
    k = 0
    for x in range(NSTG):
        for o in stage_load(g0 + NQI + x, x):
            dep = None
            if o.kind == 'vmem':
                dep = last_rd.get(o.extra // 40)
                o.extra = None
                k += 1
            qwo.append(Task(o, earliest=STG0 + int(k * STG_PACE), after=dep, gapdist=1))
    gaps, left = schedule(mf, [qds, qaddr, qdma, qwo, qdr], fixed, tail_ok=False, greedy_scalar=lambda g: True, vm_space=VM_Q)
    for tk, g in must_before:
        assert tk.gap < g, (tk.gap, g)
    q_phase.info = dict(drain_end=qdr[-1].gap, stage_end=(qwo[-1].gap if qwo else None))
    if u == 0 and FAST0:
        drop = set(id(t.ins) for t in qdr)
        pend = sum((dma_item(g0 + x) for x in (4, 5)), [])
        lastvm = -9
        for g in range(bar_gap[1]):
            gaps[g] = [x for x in gaps[g] if id(x) not in drop]
            while pend and pend[0].kind == 'salu' and len(gaps[g]) < 3 and not any(x.kind == 'dma' for x in gaps[g]):
                k = sum(1 for x in gaps[g] if x.kind in ('salu', 'dswait', 'vmwait', 'bothwait'))
                gaps[g].insert(k, pend.pop(0))
            if pend and pend[0].kind == 'dma' and not gaps[g] and g - lastvm >= 2:
                gaps[g].append(pend.pop(0))
                lastvm = g
        assert not pend, len(pend)
    blocks.append(('qpre', pre))
    for it in range(10):
        blocks.append((f'q{it}', flatten(mf, gaps, 120 * it, 120 * it + 120)))
    fin = [I("s_nop 7")]
    for m in range(6):
        for i in range(5):
            a0, a1, d = ACC(2 * m, i), ACC(2 * m + 1, i), Qf(m, i)
            if m == 5:
                a1 = Q_T + 4 * (i & 1)
                for k in range(4):
                    fin.append(I(f"v_accvgpr_read_b32 v{a1+k}, a{60+4*i+k}"))
            for a in (a0, a0 + 2, a1, a1 + 2):
                fin.append(I(f"v_pk_mul_f32 v[{a}:{a+1}], v[{a}:{a+1}], s[{S_SCALE}:{S_SCALE+1}] op_sel_hi:[1,0]"))
            fin.append(I(f"v_cvt_pk_bf16_f32 v{d}, v{a0}, v{a0+1}"))
            fin.append(I(f"v_cvt_pk_bf16_f32 v{d+1}, v{a0+2}, v{a0+3}"))
            fin.append(I(f"v_cvt_pk_bf16_f32 v{d+2}, v{a1}, v{a1+1}"))
            fin.append(I(f"v_cvt_pk_bf16_f32 v{d+3}, v{a1+2}, v{a1+3}"))
            prev = (m, i - 1) if i > 0 else ((m - 1, 4) if m > 0 else None)
            if prev:
                pd = Qf(*prev)
                fin.append(I(f"v_permlane16_swap_b32 v{pd}, v{pd+2}"))
                fin.append(I(f"v_permlane16_swap_b32 v{pd+1}, v{pd+3}"))
    pd = Qf(5, 4)
    fin.append(I("s_nop 1"))
    fin.append(I(f"v_permlane16_swap_b32 v{pd}, v{pd+2}"))
    fin.append(I(f"v_permlane16_swap_b32 v{pd+1}, v{pd+3}"))
    blocks.append(('qfin', fin))
    return blocks


def wb_code(label, tag):
    if STP:
        return []
    return [I(f"s_cmp_lg_u32 s{S_WAVE}, 0"), I(f"s_cbranch_scc1 {label}"),
            I("buffer_wbl2 sc1", kind='xsalu'),
            I(f"{label}:"), I("; marker", kind='mark', tag=tag)]


def sig_code(tv, amount_sgpr_or_imm, off, label, wtag=None):
    return [I(f"s_cmp_lg_u32 s{S_WAVE}, 0"), I(f"s_cbranch_scc1 {label}"),
            I(f"v_mov_b32 v{tv}, {amount_sgpr_or_imm}"), I(f"v_mov_b32 v{tv+1}, 0"),
            I("afterwait", kind='afterwait', tag=wtag),
            I("s_mov_b64 exec, 1"),
            I(f"buffer_atomic_add v{tv}, v{tv+1}, {srd(sD)}, s{off} offen sc1", kind='xvmem'),
            I("s_mov_b64 exec, -1"),
            I(f"{label}:")]


def a_phase(u):
    g0 = UNIT_ITEMS * u + NQI
    nxt = UNIT_ITEMS * (u + 1)
    blocks = []
    pre = [bothwait([g0, ('st', u - 1)]), I("s_barrier")]
    if NSTG > 5:
        pre += stage_flush(g0 + 5, 5, E0, SA)
    pre += open_item('K')
    for f in range(3):
        pre += k_read(f, FR(f), ('k', u, 0, f))
    for i in range(5):
        pre.append(I(f"v_mov_b32 v{L0+i}, 0"))
        for r in range(4):
            pre.append(I(f"v_mov_b32 v{NM(i)+r}, 0"))
    pre.append(dswait([('k', u, 0, 0)]))
    mf0 = [I(t.replace('@FR@', aq(FR(f % 4)))) for f, t in qk_mfmas(first_zero=True)]
    qds, qdma, fixed = [], [], {}
    for f in range(3, 12):
        for r in k_read(f, FR(f % 4), ('k', u, 0, f)):
            qds.append(Task(r, earliest=5 * (f - 4) + 4))
    for f in range(1, 12):
        fixed.setdefault(5 * f - 1, []).append(dswait([('k', u, 0, f)]))
    for x in ((5,) if NSTG <= 5 else ()):
        for o in dma_item(g0 + x):
            qdma.append(Task(o, earliest=0))
    gaps, left = schedule(mf0, [qds, qdma], fixed, tail_ok=False, vm_space=6)
    blk = pre + flatten(mf0, gaps, 0, 60)
    blk += [I(f"s_mov_b32 s{sO+2}, {192*10240}"), I(f"s_mov_b32 s{S_OADV}, {12*10240}"),
            I(f"s_or_b32 s{S_TWO}, s{S_TWO}, 0x40000000")]
    blk += [I(f"s_mov_b32 s{S_DMIN}, 0xf149f2ca"), I(f"s_mov_b32 s{S_FORCED}, 1"),
            I(f"s_call_b64 s[{S_RET}:{S_RET+1}], L_slowF"),
            I(f"s_mov_b32 s{S_DMIN}, 0"), I(f"s_mov_b32 s{S_FORCED}, 0")]
    if NSTG > 6:
        blk += lane_id(E0 + 1) + [I(f"v_lshlrev_b32 v{E0+1}, 4, v{E0+1}")]
    blk += [bothwait([g0 + 1]), I("s_barrier")]
    blk += open_item('K')
    for f in range(3):
        blk += k_read(f, FR(f), ('k', u, 1, f))
    if NSTG > 6:
        blk += stage_flush(g0 + 6, 6, E0, E0 + 1)
    blk.append(dswait([('k', u, 1, 0)]))
    blocks.append(('a0', blk))

    halves = []
    for t in range(1, 16):
        halves.append(('K', t))
        halves.append(('V', t - 1))
    halves.append(('V', 15))
    mf, fixed = [], {}
    qds, qaddr, qdma, qsm, qexp = [], [], [], [], []
    grp_last = []
    last_read = {'K': None, 'V': None}
    must_before, deadlines = [], []
    prev_branch = None
    for h, (kind, t) in enumerate(halves):
        base = 60 * h
        seq = qk_mfmas() if kind == 'K' else pv_mfmas(t & 1, zero=(t == 0))
        for f, txt in seq:
            F = 12 * h + f
            mf.append(I(txt.replace('@FR@', aq(FR(F % 4)))))
        bar = base - BAR_LEAD
        addr_task = None
        if h >= 1:
            fixed.setdefault(bar, []).extend([bothwait([g0 + h + 1]), I("s_barrier")])
            must_before.append((qds[-1], bar))
            for k, o in enumerate(open_item(kind)):
                tk = Task(o, earliest=0, after=last_read[kind] if k == 0 else None, gapdist=1)
                qaddr.append(tk)
                if o.kind == 'valu':
                    addr_task = tk
        first = True
        for f in range(12):
            F = 12 * h + f
            if h == 0 and f < 3:
                continue
            tag = (kind.lower(), u, t, f)
            rs = k_read(f, FR(F % 4), tag) if kind == 'K' else v_read(f, FR(F % 4), tag)
            e = 5 * (F - 4) + 4
            if h >= 1:
                e = max(e, bar)
            for r in rs:
                tk = Task(r, earliest=e, after=addr_task if first else None, gapdist=1)
                first = False
                qds.append(tk)
                last_read[kind] = tk
        for f in range(12):
            F = 12 * h + f
            if F == 0:
                continue
            fixed.setdefault(5 * F - 1, []).append(dswait([(kind.lower(), u, t, f)]))
        x = h + 6
        gid = g0 + x if x < 32 else nxt + (x - 32)
        ops = []
        for o in (dma_item(gid) if x >= NSTG else []):
            if A_WIN is not None and o.kind == 'dma' and x < 32:
                ops.append(I(f"s_waitcnt vmcnt({A_WIN})"))
            ops.append(o)
        for o in ops:
            if A_BURST and h < 26:
                qdma.append(Task(o, earliest=max(0, (bar + 1) if h % 2 == 0 else (bar + 61))))
            else:
                qdma.append(Task(o, earliest=max(0, bar + 1)))
        if kind == 'K':
            tb = 0
            for st in range(2):
                for i in range(5):
                    ops = sm_ops(t & 1, st, i, tb)
                    tb += 4
                    ex = []
                    for k, o in enumerate(ops[:4]):
                        aft = None
                        if k == 0:
                            aft = prev_branch if i == 0 else (grp_last[-2] if i >= 2 else None)
                        tk = Task(o, earliest=base + 30, mf_after=base + 30 * st + 25 + i, after=aft, gapdist=(0 if i == 0 else 1))
                        qexp.append(tk)
                        ex.append(tk)
                    for o in ops[4:]:
                        dep = max(k for k in range(4) if f"v{E0 + (tb - 4 + k) % 8}" in [x.strip() for x in o.txt.split(None, 1)[1].split(',')[1:]])
                        tk = Task(o, earliest=base, after=ex[dep], gapdist=1)
                        qsm.append(tk)
                    grp_last.append(tk)
                qsm.append(Task(I(f"v_max3_f32 v{CHK}, v{TS0}, v{TS0+1}, v{TS0+2}"), earliest=base))
                qsm.append(Task(I(f"v_max3_f32 v{CHK}, v{CHK}, v{TS0+3}, v{TS0+4}"), earliest=base))
                chk = Task(I(f"v_cmp_ngt_f32 vcc, 2.0, v{CHK}"), earliest=base)
                qsm.append(chk)
                br = I(f"s_cbranch_vccnz @TRAMP{'AB'[st]}{t & 1}@")
                if st == 0:
                    prev_branch = Task(br, earliest=base + 68, after=chk, gapdist=1)
                    qsm.append(prev_branch)
                    deadlines.append((prev_branch, base + 119))
                    e_add = base
                else:
                    bg = base + 149 if t < 15 else base + 119
                    fixed.setdefault(bg, []).append(br)
                    deadlines.append((chk, bg - 1))
                    prev_branch = None
                    e_add = bg + 1
                for i in range(5):
                    qsm.append(Task(I(f"v_add_f32 v{L0+i}, v{L0+i}, v{TS0+i}"), earliest=e_add))
    gaps, left = schedule(mf, [qds, qaddr, qdma, qexp, qsm], fixed, tail_ok=False,
                          greedy_scalar=lambda g: g >= 1800 or (A_BURST and ((g + 12) % 120) < 40), vm_space=lambda g: (VM_A if g < 1790 else 3),
                          capf=lambda g: (3 if 1710 <= g < 1800 else 2))
    for tk, g in must_before:
        assert tk.gap < g, (tk.gap, g)
    for tk, g in deadlines:
        assert tk.gap <= g, f"softmax check too late: {tk.gap} vs {g}"
    blocks.append(('a1h', flatten(mf, gaps, 0, 30)))
    for t in range(1, 15):
        blocks.append((f'a{t}', flatten(mf, gaps, 120 * (t - 1) + 30, 120 * t + 30)))
    blocks.append(('a15', flatten(mf, gaps, 1710, 1800)))
    blocks.append(('apost', flatten(mf, gaps, 1800, 1860)))

    blocks.append(('lred', l_reduce()))
    sg = sig_code(E0, f"s{S_UNIT}", S_GRP, "@L1@", ('wb', u))
    k = [b[0] for b in blocks].index(ASIG_BEFORE)
    blocks[k:k] = [('asig', sg)]
    return blocks


S_RET2 = 80


def slow_paths():
    o = [I("L_slowC:"), I("s_nop 7")]
    for i in range(5):
        a, b = Sr(0, i), Sr(1, i)
        e0, e1 = E0, E0 + 1
        o += [I(f"v_max3_f32 v{e0}, v{a}, v{a+1}, v{a+2}"),
              I(f"v_max3_f32 v{e0}, v{e0}, v{a+3}, v{b}"),
              I(f"v_max3_f32 v{e0}, v{e0}, v{b+1}, v{b+2}"),
              I(f"v_max_f32 v{e0}, v{e0}, v{b+3}"),
              I(f"v_mov_b32 v{e1}, v{e0}"),
              I("s_nop 1"),
              I(f"v_permlane32_swap_b32 v{e0}, v{e1}"),
              I(f"v_max_f32 v{e0}, v{e0}, v{e1}"),
              I(f"v_mov_b32 v{e1}, v{e0}"),
              I("s_nop 1"),
              I(f"v_permlane16_swap_b32 v{e0}, v{e1}"),
              I(f"v_max_f32 v{e0}, v{e0}, v{e1}"),
              I(f"v_ceil_f32 v{e0}, v{e0}"),
              I(f"v_add_f32 v{e0}, 0x40e00000, v{e0}"),
              I(f"v_max_f32 v{e0}, s{S_DMIN}, v{e0}")]
        for r in range(4):
            o.append(I(f"v_sub_f32 v{NM(i)+r}, v{NM(i)+r}, v{e0}"))
            o.append(I(f"v_sub_f32 v{a+r}, v{a+r}, v{e0}"))
            o.append(I(f"v_sub_f32 v{b+r}, v{b+r}, v{e0}"))
        o += [I(f"v_cvt_i32_f32 v{e1}, v{e0}"),
              I(f"v_sub_u32 v{TS0+i}, 0, v{e1}"),
              I(f"v_ldexp_f32 v{L0+i}, v{L0+i}, v{TS0+i}")]
    o += [I(f"s_cmp_eq_u32 s{S_FORCED}, 1"), I(f"s_cbranch_scc1 L_slowC_ret")]
    k = 0
    for n in range(12):
        for i in range(5):
            for r in range(4):
                e = E0 + k % 8
                k += 1
                o += [I(f"v_accvgpr_read_b32 v{e}, a{Oa(n,i)+r}"),
                      I(f"v_ldexp_f32 v{e}, v{e}, v{TS0+i}"),
                      I(f"v_accvgpr_write_b32 a{Oa(n,i)+r}, v{e}")]
    o += [I("L_slowC_ret:"), I(f"s_setpc_b64 s[{S_RET2}:{S_RET2+1}]")]
    res = [o]

    def sm(par, st):
        out, tb = [], 0
        for i in range(5):
            out += sm_ops(par, st, i, tb)
            tb += 4
        return out

    def presc(regs_by_i):
        out = []
        for i, regs in enumerate(regs_by_i):
            for p in regs:
                out += [I(f"v_lshlrev_b32 v{E0}, 16, v{p}"), I(f"v_and_b32 v{E0+1}, 0xffff0000, v{p}"),
                        I(f"v_ldexp_f32 v{E0}, v{E0}, v{TS0+i}"), I(f"v_ldexp_f32 v{E0+1}, v{E0+1}, v{TS0+i}"),
                        I(f"v_cvt_pk_bf16_f32 v{p}, v{E0}, v{E0+1}")]
        return out

    call = I(f"s_call_b64 s[{S_RET2}:{S_RET2+1}], L_slowC")
    ret = [I("s_nop 1"), I(f"s_setpc_b64 s[{S_RET}:{S_RET+1}]")]
    for par in range(2):
        res.append([I(f"L_slowA{par}:"), call] + presc([[Pr(par ^ 1, i) + k for k in range(4)] for i in range(5)]) + sm(par, 0) + ret)
        res.append([I(f"L_slowB{par}:"), call] + presc([[Pr(par, i) + k for k in range(2)] for i in range(5)]) + sm(par, 1) + ret)
    ladd = [I(f"v_add_f32 v{L0+i}, v{L0+i}, v{TS0+i}") for i in range(5)]
    res.append([I("L_slowF:"), call] + sm(0, 0) + ladd + sm(0, 1) + ladd + ret)
    return res


def PACC(nt, i): return 4 * (5 * i + nt)
def PWF(s, nt): return 100 + 20 * (s % 2) + 4 * nt
NOB = 6
def POF(k): return 140 + 4 * (k % NOB)
P_RAO, P_RAW, VO, P_T, P_D, P_F = 164, 167, 174, 178, 186, 194
WIN = 61440
OP_CAP3 = 700
VM_OP2 = 3
OP_DRAIN_GAP = 0
OP_LEAD = 17
SIG_P = 13
POLL_P = 17


def poll_check(P, lab, d, soff, want):
    o = [I(x) for x in (
        f"s_mov_b32 s{S_T3}, 0x80000",
        f"{lab}:",
        f"v_cmp_{'gt' if want == 8 else 'ne'}_u32 vcc, {want}, v{P+1}",
        f"s_sub_u32 s{S_T3}, s{S_T3}, 1",
        f"s_cmp_eq_u32 s{S_T3}, 0",
        f"s_cbranch_scc1 {lab}_out",
        f"s_cbranch_vccz {lab}_out",
        "s_sleep 1")]
    o.append(I(f"buffer_load_dword v{P+1}, v{P}, {srd(d)}, {soff} offen sc1", kind='xvmem'))
    o += [I("s_waitcnt vmcnt(0)", kind='xsalu'), I(f"s_branch {lab}"), I(f"{lab}_out:")]
    return o


def tail1_issue(name, ws):
    e = E0
    o = [I(f"s_mov_b32 s{S_U1}, m0"), I(f"v_mov_b32 v{e}, 0"), I(f"s_mov_b32 m0, s{S_SPARE}"), I("s_nop 0"),
         I(f"buffer_load_dword v{e}, {srd(sD)}, s{S_GRP} offen sc1 lds", tag='poll0'),
         I(f"s_mov_b32 m0, s{S_U1}")]
    o += lane_id(e)
    o += [I(x) for x in (
        f"v_lshlrev_b32 v{LP_X}, 4, v{e}",
        f"s_cmp_eq_u32 s{S_J}, 0",
        f"s_cselect_b32 s{sP}, s{sO}, s{sWo}",
        f"s_cselect_b32 s{sP+1}, s{sO+1}, s{sWo+1}",
        f"s_cselect_b32 s{sP+2}, s{sO+2}, s{sWo+2}",
        f"s_cbranch_scc0 L_{name}_wpat")]
    o += [I(f"v_mov_b32 v{OPV[k]}, v{LP_X}") for k in range(4)]
    o += [I(f"v_add_u32 v{OPV[4]}, 4096, v{LP_X}"), I(f"s_branch L_{name}_wpatd"), I(f"L_{name}_wpat:")]
    for n in range(5):
        o += [I(x) for x in (
            f"v_add_u32 v{e+1}, {64*n}, v{e}",
            f"v_mul_u32_u24 v{e+2}, 205, v{e+1}",
            f"v_lshrrev_b32 v{e+2}, 12, v{e+2}",
            f"v_mul_u32_u24 v{e+3}, 20, v{e+2}",
            f"v_sub_u32 v{e+1}, v{e+1}, v{e+3}",
            f"v_lshrrev_b32 v{e+3}, 1, v{e+2}",
            f"v_and_b32 v{e+3}, 2, v{e+3}",
            f"v_xor_b32 v{e+1}, v{e+1}, v{e+3}",
            f"v_lshlrev_b32 v{e+1}, 4, v{e+1}",
            f"v_mul_u32_u24 v{e+2}, 1280, v{e+2}",
            f"v_add_u32 v{e+1}, v{e+1}, v{e+2}",
            f"v_subrev_u32 v{OPV[n]}, {1024*n if n < 4 else 0}, v{e+1}")]
    o += [I(x) for x in (
        f"L_{name}_wpatd:",
        f"s_add_u32 s{sE}, s6, {ws['e_off']}",
        f"s_addc_u32 s{sE+1}, s7, 0",
        f"s_and_b32 s{sE+1}, s{sE+1}, 0xffff",
        f"s_mov_b32 s{sE+2}, {ws['e_bytes']}")]
    return o


def tail1_check(name):
    o = [vmwait('poll0'), I(f"v_mov_b32 v{E0+2}, s{S_SPARE}"),
         I(f"ds_read_b32 v{E0+1}, v{E0+2}", tag='poll0d'), I(f"v_mov_b32 v{E0}, 0"), dswait('poll0d')]
    o += poll_check(E0, f"L_{name}_poll0", sD, f"s{S_GRP}", 8)
    return o


def op_phase(name):
    blocks = []
    u = NUNITS - 1
    addr, when = op_addrs()
    t = P_T
    pro = [I(x) for x in (
        f"v_mov_b32 v{VO}, v{LP_X}", f"v_add_u32 v{VO+1}, 4096, v{LP_X}",
        f"v_mov_b32 v{P_F}, 0")]
    pro += [I(f"buffer_load_dword v{P_F+2}, v{P_F}, {srd(sE)}, s{S_FOWN} offen sc1", tag='flag0'),
            I(f"buffer_load_dword v{P_F+3}, v{P_F}, {srd(sE)}, s{S_FPART} offen sc1", tag='flag0')]
    pro += [I(x) for x in (
        f"s_mul_i32 s{S_T3}, s{S_R}, 5120", f"v_add_u32 v{P_RAO}, s{S_T3}, v{LP_X}",
        f"v_lshrrev_b32 v{t}, 6, v{LP_X}",
        f"v_mul_u32_u24 v{t+1}, 320, v{t}",
        f"v_bfe_u32 v{t+2}, v{LP_X}, 4, 2",
        f"v_lshl_add_u32 v{t+1}, v{t+2}, 3, v{t+1}",
        f"s_mul_i32 s{S_T3}, s{S_J}, 160", f"s_add_u32 s{S_T3}, s{S_T3}, 10240",
        f"v_add_u32 v{t+1}, s{S_T3}, v{t+1}",
        f"v_bfe_u32 v{t+2}, v{t}, 2, 1",
        f"v_lshlrev_b32 v{t+2}, 5, v{t+2}",
        f"s_lshl_b32 s{S_T3}, s{S_J}, 1", f"s_sub_u32 s{S_T3}, 1, s{S_T3}",
        f"v_mul_lo_u32 v{t+2}, v{t+2}, s{S_T3}",
        f"v_add_u32 v{P_RAW}, v{t+1}, v{t+2}",
        f"v_sub_u32 v{P_RAW+3}, v{t+1}, v{t+2}")]
    P_PF = 198
    pro += [I(x) for x in (
        f"v_lshlrev_b32 v{t}, 3, v{LP_X}",
        f"v_cmp_gt_u32 vcc, {20*16}, v{LP_X}",
        f"v_mov_b32 v{t+1}, 0x7ffffff0",
        f"s_and_b32 s{S_PFQ}, s2, {3 if ROT_OP else 0}",
        f"v_cndmask_b32 v{P_PF}, v{t+1}, v{t}, vcc")]

    def pf(p):
        run, off, rnd = (p % 24) // 6, p % 6, p // 24
        return [I(f"s_add_u32 s{S_PFS}, s{S_PFQ}, {run}"), I(f"s_and_b32 s{S_PFS}, s{S_PFS}, 3"),
                I(f"s_mul_i32 s{S_PFS}, s{S_PFS}, 24"), I(f"s_add_u32 s{S_PFS}, s{S_PFS}, {12*rnd + 2*off}"),
                I(f"s_mul_i32 s{S_PFS}, s{S_PFS}, s{S_PADV}"), I(f"s_add_u32 s{S_PFS}, s{S_PFS}, s100"),
                I(f"buffer_load_dword v{P_PF+1}, v{P_PF}, {srd(sP)}, s{S_PFS} offen{HAND}", tag='opf')]
    for j in (1, 2):
        pro += [I(f"v_add_u32 v{P_RAO+j}, {WIN*j}, v{P_RAO}"), I(f"v_add_u32 v{P_RAW+j}, {WIN*j}, v{P_RAW}"),
                I(f"v_add_u32 v{P_RAW+3+j}, {WIN*j}, v{P_RAW+3}")]
    pro += [bothwait([OP0, OP0 + 1]), I("s_barrier")]

    def rd(s_, kind, k):
        j, rem = divmod(addr[s_], WIN)
        if kind == 'w':
            b = PWF(s_, k)
            return [I(f"ds_read_b64_tr_b16 v[{b+2*h}:{b+2*h+1}], v{P_RAW+3*(k & 1)+j} offset:{rem + 32*k + 5120*h}", tag=('pf', s_, 'w'))
                    for h in range(2)]
        return [I(f"ds_read_b128 {vq(POF(5*s_+k))}, v{P_RAO+j} offset:{rem + 1024*k}", tag=('pf', s_, k))]

    for k in range(5):
        pro += rd(0, 'w', k)
    for k in range(3):
        pro += rd(0, 'o', k)
    pro.append(dswait([('pf', 0, 0)]))
    mf, fixed = [], {}
    qds, qdma, qdr = [], [], []
    bar = {p: 50 * p - OP_LEAD for p in range(1, NK // 2)}
    bar[0] = -1
    must_before = []
    for s_ in range(NK):
        base = 25 * s_
        p = s_ // 2
        if s_ % 2 == 0 and p >= 1:
            fixed.setdefault(bar[p], []).extend([bothwait([OP0 + s_, OP0 + s_ + 1]), I("s_barrier")])
            must_before.append((qds[-1], bar[p]))
        for i in range(5):
            for nt in range(5):
                c = "0" if s_ == 0 else vq(PACC(nt, i))
                mf.append(I(f"{MF} {vq(PACC(nt,i))}, {vq(PWF(s_,nt))}, {vq(POF(5*s_+i))}, {c}"))
            if base + 5 * i > 0:
                tags = [('pf', s_, i)] + ([('pf', s_, 'w')] if i == 0 else [])
                fixed.setdefault(base + 5 * i - 1, []).append(dswait(tags))
        if s_ > 0:
            e = max(25 * (s_ - 1), bar[p])
            for k in range(5):
                for r in rd(s_, 'w', k):
                    qds.append(Task(r, earliest=e))
        for k in range(5):
            if s_ == 0 and k < 3:
                continue
            e = max(5 * (5 * s_ + k - NOB) + 4, bar[p])
            qds.append(Task(rd(s_, 'o', k)[0], earliest=e))
    first_r1 = None
    for it in range(5, NK):
        for o in dma_op_item(it, OPV):
            tk = Task(o, earliest=bar[when[it]] + 1)
            qdma.append(tk)
            if it == 48 and first_r1 is None:
                first_r1 = tk
    qpf = []
    if OPF:
        for p in range(4, NK // 2):
            e = max(0, 50 * (p - OPFD))
            if p >= 24:
                e = max(e, 50 * (POLL_P + 2))
            for o in pf(p):
                qpf.append(Task(o, earliest=e + 10))
    k = 0
    for m in range(6):
        for i in range(5):
            for o in drain_group(u, m, i, P_T, P_D + 4 * (k % 2), VO, VO + 1, False):
                qdr.append(Task(o, earliest=OP_DRAIN0 + int((5 * m + i) * OP_DRAIN_GAP)))
            k += 1
    gaps, left = schedule(mf, [qds, qpf, qdma, qdr], fixed, tail_ok=False, greedy_scalar=lambda g: True,
                          capf=lambda g: (3 if g < OP_CAP3 else 2), vm_space=lambda g: (VM_OP if g < 50 * SIG_P else VM_OP2))
    for tk, g in must_before:
        assert tk.gap < g, (tk.gap, g)
    op_phase.info = dict(drain_end=qdr[-1].gap, first_r1=first_r1.gap)
    assert qdr[-1].gap < 50 * (SIG_P - 1), qdr[-1].gap
    assert first_r1.gap >= 50 * (POLL_P + 2), first_r1.gap
    blocks.append(('oppro', pro))
    for p in range(NK // 2):
        pre = []
        if p == SIG_P:
            pre += [vmwait([('st', u), 'flag0']), I("s_barrier")]
            pre += [I(f"s_add_u32 s{S_T3}, s{S_GRP}, 4")]
            pre += sig_code(P_T, "1", S_T3, f"L_{name}_sig1")
        if p == POLL_P:
            pre += [I(f"s_add_u32 s{S_U0}, s{S_GRP}, 4"),
                    I(f"buffer_load_dword v{P_F+1}, v{P_F}, {srd(sD)}, s{S_U0} offen sc1", tag='poll1')]
        if p == POLL_P + 2 and not NOPOLL:
            pre.append(vmwait('poll1'))
            pre += poll_check(P_F, f"L_{name}_poll1", sD, f"s{S_U0}", 8)
        if pre:
            blocks.append((f'opx{p}', pre))
        blocks.append((f'op{p}', flatten(mf, gaps, 50 * p, 50 * p + 50)))
    epi = []
    E = lambda t, **kw: epi.append(I(t, **kw))
    CA, R0 = 200, 100
    E(f"v_add_u32 v{VO+2}, 8192, v{VO}")
    E(f"v_add_u32 v{VO+3}, 12288, v{VO}")
    E(f"v_add_u32 v{P_F+2}, 1, v{P_F+2}")
    E(f"v_add_u32 v{P_F+3}, 1, v{P_F+3}")
    E(f"v_lshrrev_b32 v{CA}, 4, v{VO}")
    E(f"v_and_b32 v{CA+1}, 15, v{CA}")
    E(f"v_lshrrev_b32 v{CA}, 4, v{CA}")
    E(f"v_lshlrev_b32 v{CA}, 3, v{CA}")
    E(f"v_mul_u32_u24 v{CA+1}, 2560, v{CA+1}")
    E(f"v_add_u32 v{CA}, v{CA}, v{CA+1}")
    E(f"s_cmp_ge_u32 s{S_QUAD}, 4")
    E(f"s_cbranch_scc1 L_{name}_ex1")
    for kh in range(2):
        if kh:
            E(f"L_{name}_ex1:")
        keep = list(range(0, 13)) if kh == 0 else list(range(13, 25))
        send = [t for t in range(25) if t not in keep]
        for k, tl in enumerate(send):
            E(f"buffer_store_dwordx4 {vq(4*tl)}, v{VO + k // 4}, {srd(sE)}, s{S_ESND} offen offset:{1024*(k % 4)} sc1", kind='xvmem')
        E("s_waitcnt vmcnt(0)")
        E("s_mov_b64 exec, 1")
        E(f"buffer_store_dword v{P_F+2}, v{P_F}, {srd(sE)}, s{S_FOWN} offen sc1", kind='xvmem')
        E("s_mov_b64 exec, -1")
        E(f"buffer_load_dword v{P_F+1}, v{P_F}, {srd(sE)}, s{S_FPART} offen sc1", kind='xvmem')
        E("s_waitcnt vmcnt(0)")
        epi += poll_check(P_F, f"L_{name}_pollx{kh}", sE, f"s{S_FPART}", f"v{P_F+3}")
        for k, tl in enumerate(keep):
            E(f"buffer_load_dwordx4 {vq(R0+4*k)}, v{VO + k // 4}, {srd(sE)}, s{S_ERCV} offen offset:{1024*(k % 4)} sc1", kind='xvmem')
        for k, tl in enumerate(keep):
            i, nt = divmod(tl, 5)
            a, r = 4 * tl, R0 + 4 * k
            if k == 0 or nt == 0:
                E(f"s_add_u32 s{S_T0}, s{S_COFF}, {i*16*2560}")
            E(f"s_waitcnt vmcnt({len(keep) - 1})")
            E(f"v_pk_add_f32 v[{a}:{a+1}], v[{a}:{a+1}], v[{r}:{r+1}]")
            E(f"v_pk_add_f32 v[{a+2}:{a+3}], v[{a+2}:{a+3}], v[{r+2}:{r+3}]")
            E(f"v_cvt_pk_bf16_f32 v{a}, v{a}, v{a+1}")
            E(f"v_cvt_pk_bf16_f32 v{a+1}, v{a+2}, v{a+3}")
            E(f"buffer_store_dwordx2 v[{a}:{a+1}], v{CA}, {srd(sC)}, s{S_T0} offen offset:{32*nt}", kind='xvmem')
        if kh == 0:
            E(f"s_branch L_{name}_exdone")
    E(f"L_{name}_exdone:")
    blocks.append(('opepi', epi))
    return blocks


def prologue(name, ws):
    o = []
    A = lambda t: o.append(I(t))
    A(f"{name}:")
    A("s_cmp_ge_u32 s2, 256")
    A(f"s_cbranch_scc1 L_{name}_done")
    XCD, IDX, BLK, B, QUAD = 88, 89, 90, 91, 92
    if CODE_WARM:
        A("s_getpc_b64 s[4:5]")
        A(f"L_{name}_pc:")
        A("s_lshr_b32 s88, s2, 3")
        A("s_lshl_b32 s88, s88, 12")
        A("v_lshlrev_b32 v4, 4, v0")
        A("v_add_u32 v4, s88, v4")
        A(f"v_min_u32 v4, L_{name}_end-L_{name}_pc-16, v4")
        o.append(I("global_load_dwordx4 a[236:239], v4, s[4:5]", tag='touch'))
    A(f"s_and_b32 s{XCD}, s2, 7")
    if XPERM:
        A(f"s_add_u32 s{XCD}, s{XCD}, {XPERM}")
        A(f"s_and_b32 s{XCD}, s{XCD}, 7")
    if STAMPS:
        A("s_getreg_b32 s99, hwreg(HW_REG_XCC_ID)")
    A(f"s_lshr_b32 s{IDX}, s2, 3")
    A(f"s_lshr_b32 s{BLK}, s{XCD}, 2")
    A(f"s_and_b32 s{B}, s{XCD}, 3")
    A(f"s_lshl_b32 s{B}, s{B}, 2")
    A(f"s_lshr_b32 s{QUAD}, s{IDX}, 3")
    A(f"s_add_u32 s{B}, s{B}, s{QUAD}")
    A(f"s_and_b32 s{QUAD}, s{IDX}, 7")
    if ONLY:
        A(f"s_and_b32 s4, s{ONLYSEL}, {ONLY}")
        A("s_cmp_lg_u32 s4, 0")
        A(f"s_cbranch_scc1 L_{name}_done")
    if DELAY:
        A(f"s_and_b32 s4, s{B}, {DELAY_MASK}")
        A(f"s_mul_i32 s4, s4, {DELAY}")
        A(f"L_{name}_dl:")
        A("s_cmp_eq_u32 s4, 0")
        A(f"s_cbranch_scc1 L_{name}_dld")
        A("s_sleep 32")
        A("s_sub_u32 s4, s4, 1")
        A(f"s_branch L_{name}_dl")
        A(f"L_{name}_dld:")
    A(f"s_mul_i32 s4, s{BLK}, 40")
    A("s_add_u32 s4, s0, s4")
    A("s_addc_u32 s5, s1, 0")
    A(f"s_load_dwordx2 s[{sX}:{sX+1}], s[4:5], 0")
    A(f"s_load_dwordx2 s[{sK}:{sK+1}], s[4:5], 8")
    A(f"s_load_dwordx2 s[{sV}:{sV+1}], s[4:5], 16")
    A(f"s_load_dwordx2 s[{sW}:{sW+1}], s[4:5], 24")
    A(f"s_load_dwordx2 s[{sWo}:{sWo+1}], s[4:5], 32")
    A(f"s_load_dwordx2 s[{sC}:{sC+1}], s[0:1], 80")
    A(f"s_load_dwordx2 s[{sD}:{sD+1}], s[0:1], 88")
    A("s_load_dwordx2 s[6:7], s[0:1], 96")
    A("v_lshrrev_b32 v1, 6, v0")
    A("v_and_b32 v0, 63, v0")
    A(f"v_readfirstlane_b32 s{S_WAVE}, v1")
    A("s_nop 3")
    A(f"s_lshr_b32 s{S_J}, s{S_WAVE}, 1")
    A(f"s_and_b32 s{S_R}, s{S_WAVE}, 1")
    T, T2, H, BH = 93, 94, 95, 96
    for n in range(3):
        A(f"v_add_u32 v3, {64*n}, v0")
        A("v_mul_u32_u24 v1, 171, v3")
        A("v_lshrrev_b32 v1, 12, v1")
        A("v_mul_u32_u24 v2, 24, v1")
        A("v_sub_u32 v2, v3, v2")
        A("v_bfe_u32 v4, v1, 1, 1")
        A("v_mul_u32_u24 v5, 3, v4")
        A("v_and_b32 v6, 4, v1")
        A("v_or_b32 v5, v5, v6")
        A("v_xor_b32 v5, v5, v2")
        A("v_lshlrev_b32 v5, 4, v5")
        A("v_mul_u32_u24 v6, 384, v1")
        A("v_add_u32 v5, v5, v6")
        A(f"v_subrev_u32 v{PAT_KV+n}, {1024*n}, v5")
        A("v_and_b32 v5, 2, v1")
        A(f"s_lshl_b32 s{T}, s{S_R}, 2")
        A(f"v_or_b32 v5, s{T}, v5")
        A("v_xor_b32 v5, v5, v2")
        A("v_lshlrev_b32 v5, 4, v5")
        A("v_mul_u32_u24 v6, 12288, v1")
        A("v_add_u32 v5, v5, v6")
        A(f"v_subrev_u32 v{PAT_W+n}, {1024*n}, v5")
    A("v_lshrrev_b32 v1, 3, v0")
    A("v_and_b32 v2, 7, v0")
    A("v_and_b32 v4, 6, v1")
    A("v_xor_b32 v2, v2, v4")
    A("v_lshlrev_b32 v2, 4, v2")
    A("v_mul_u32_u24 v1, 1280, v1")
    A(f"v_add_u32 v{PAT_X}, v1, v2")
    A(f"s_mul_i32 s{T}, s{S_J}, 12288")
    A(f"s_mul_i32 s{T2}, s{S_R}, {16*384}")
    A(f"s_add_u32 s{S_CKV}, s{T}, s{T2}")
    A(f"s_mul_i32 s{T2}, s{S_R}, {8*384}")
    A(f"s_add_u32 s{S_CW}, s{T}, s{T2}")
    A(f"s_mul_i32 s{S_C5}, s{S_WAVE}, 5120")
    A(f"s_lshl_b32 s{H}, s{QUAD}, 2")
    A(f"s_add_u32 s{H}, s{H}, s{S_J}")
    A(f"s_mul_i32 s{S_WBASE}, s{H}, 384")
    A(f"s_mul_i32 s{T2}, s{S_R}, {8*12288}")
    A(f"s_add_u32 s{S_WBASE}, s{S_WBASE}, s{T2}")
    A(f"s_sub_u32 s{S_WBASE}, s{S_WBASE}, 768")
    A(f"s_mul_i32 s{S_XBASE}, s{B}, 204800")
    A(f"s_mul_i32 s{T2}, s{S_WAVE}, {40*1280}")
    A(f"s_add_u32 s{S_XBASE}, s{S_XBASE}, s{T2}")
    A(f"s_mul_i32 s{S_CX}, s{S_WAVE}, 5120")
    A(f"s_and_b32 s{T}, s{XCD}, 3")
    A(f"s_mul_i32 s{T}, s{T}, 5")
    A(f"s_add_u32 s{T}, s{T}, 1")
    A(f"s_lshr_b32 s{T}, s{T}, 1")
    if not ROT:
        A(f"s_mov_b32 s{T}, 0")
    A(f"s_mul_i32 s{S_WREL0}, s{T}, {64*12288}")
    A(f"s_lshl_b32 s{S_XREL0}, s{T}, 7")
    A(f"s_mov_b32 s{S_WR}, 0")
    A(f"s_mov_b32 s{S_RD}, 0")
    A(f"s_lshl_b32 s{S_SPARE}, s{S_WAVE}, 12")
    A(f"s_add_u32 s{S_SPARE}, s{S_SPARE}, {SPARE}")
    A("s_waitcnt lgkmcnt(0)")
    for b, nbytes in ((sX, 16*160*640*2), (sK, 16*32*512*192*2), (sV, 16*32*512*192*2), (sW, 640*6144*2),
                      (sWo, 6144*640*2), (sC, 16*160*1280*2), (sD, 256)):
        A(f"s_and_b32 s{b+1}, s{b+1}, 0xffff")
        A(f"s_mov_b32 s{b+2}, {nbytes}")
        A(f"s_mov_b32 s{b+3}, 0x20000")
    for g in range(2 if FAST0 else 5):
        o += straight(dma_item(g))
    A(f"s_and_b32 s{T}, s{XCD}, 3")
    A(f"s_lshl_b32 s{T}, s{T}, 5")
    A(f"s_add_u32 s{T}, s{T}, s{IDX}")
    A(f"s_lshl_b32 s{T}, s{T}, 2")
    A(f"s_add_u32 s{T}, s{T}, s{S_WAVE}")
    A(f"s_mul_i32 s{S_TWO}, s{T}, 15360")
    if WARM:
        A(f"s_lshl_b32 s{T2}, s{QUAD}, 2")
        A(f"s_add_u32 s{T2}, s{T2}, s{S_WAVE}")
        A(f"s_mul_i32 s{T2}, s{T2}, 6400")
        A(f"s_mul_i32 s{T}, s{B}, 204800")
        A(f"s_add_u32 s{T}, s{T}, s{T2}")
        A(f"s_mov_b32 m0, s{S_SPARE}")
        A("v_lshlrev_b32 v4, 7, v0")
        o.append(I(f"buffer_load_dword v4, {srd(sX)}, s{T} offen{X_POL} lds", tag='touch'))
    A("v_and_b32 v1, 15, v0")
    A("v_lshrrev_b32 v2, 4, v0")
    A(f"s_mul_i32 s{T}, s{S_J}, 12288")
    A("v_and_b32 v3, 1, v2")
    A("v_lshlrev_b32 v3, 1, v3")
    A("v_lshrrev_b32 v4, 1, v2")
    A("v_or_b32 v3, v3, v4")
    A("v_bfe_u32 v4, v1, 1, 1")
    A("v_mul_u32_u24 v4, 3, v4")
    A("v_and_b32 v5, 4, v1")
    A("v_or_b32 v4, v4, v5")
    A("v_xor_b32 v3, v3, v4")
    A("v_lshlrev_b32 v3, 4, v3")
    A("v_mul_u32_u24 v4, 384, v1")
    A(f"v_add3_u32 v{LP_K}, v3, v4, s{T}")
    A("v_lshrrev_b32 v3, 2, v1")
    A("v_and_b32 v4, 3, v0")
    A("v_lshl_add_u32 v5, v2, 2, v3")
    A("v_bfe_u32 v6, v5, 1, 1")
    A("v_mul_u32_u24 v6, 3, v6")
    A("v_and_b32 v7, 4, v5")
    A("v_or_b32 v6, v6, v7")
    A("v_lshrrev_b32 v7, 1, v4")
    A("v_xor_b32 v6, v6, v7")
    A("v_lshlrev_b32 v6, 4, v6")
    A("v_and_b32 v8, 1, v4")
    A("v_lshl_add_u32 v6, v8, 3, v6")
    A("v_mul_u32_u24 v5, 384, v5")
    A(f"v_add3_u32 v{LP_V}, v5, v6, s{T}")
    A("v_lshl_add_u32 v5, v2, 3, v3")
    A("v_and_b32 v6, 2, v3")
    A("v_and_b32 v9, 1, v2")
    A("v_lshl_or_b32 v6, v9, 2, v6")
    A("v_xor_b32 v6, v6, v7")
    A("v_lshlrev_b32 v6, 4, v6")
    A("v_lshl_add_u32 v6, v8, 3, v6")
    A("v_mul_u32_u24 v5, 384, v5")
    A(f"v_add3_u32 v{LP_W}, v5, v6, s{T}")
    A(f"s_mul_i32 s{T}, s{S_R}, 10240")
    A("v_lshrrev_b32 v3, 3, v1")
    A("v_lshlrev_b32 v3, 10, v3")
    A("v_and_b32 v4, 7, v1")
    A("v_lshl_add_u32 v3, v4, 7, v3")
    A("v_and_b32 v4, 6, v1")
    A("v_xor_b32 v4, v4, v2")
    A("v_lshlrev_b32 v4, 4, v4")
    A(f"v_add3_u32 v{LP_X}, v3, v4, s{T}")
    A(f"s_lshl_b32 s{BH}, s{B}, 5")
    A(f"s_add_u32 s{BH}, s{BH}, s{H}")
    A(f"s_mul_i32 s{S_KOFF}, s{BH}, 196608")
    A(f"s_mul_i32 s{T2}, s{S_R}, {16*384}")
    A(f"s_add_u32 s{S_KOFF}, s{S_KOFF}, s{T2}")
    A(f"s_mov_b32 s{S_VOFF}, s{S_KOFF}")
    GB = 97
    A(f"s_lshl_b32 s{GB}, s{BLK}, 4")
    A(f"s_add_u32 s{GB}, s{GB}, s{B}")
    A(f"s_mul_i32 s{T}, s{GB}, {192*10240}")
    A(f"s_add_u32 s{T}, s{T}, {ws['o_off']}")
    A(f"s_add_u32 s{sO}, s6, s{T}")
    A(f"s_addc_u32 s{sO+1}, s7, 0")
    A(f"s_and_b32 s{sO+1}, s{sO+1}, 0xffff")
    A(f"s_mov_b32 s{sO+2}, 0")
    A(f"s_mov_b32 s{S_OADV}, 0")
    A(f"s_mov_b32 s{sO+3}, 0x20000")
    A(f"s_mul_i32 s{T}, s{QUAD}, 24")
    A(f"s_mul_i32 s{T2}, s{S_J}, 6")
    A(f"s_add_u32 s{T}, s{T}, s{T2}")
    A(f"s_mul_i32 s{S_OOFF}, s{T}, 10240")
    A(f"s_mul_i32 s{T2}, s{S_R}, 5120")
    A(f"s_add_u32 s{S_OOFF}, s{S_OOFF}, s{T2}")
    A(f"s_lshr_b32 s{T}, s{QUAD}, 2")
    A(f"s_and_b32 s{T2}, s{QUAD}, 3")
    A(f"s_mul_i32 s{S_PADV}, s{S_J}, 30720")
    A(f"s_add_u32 s{S_PADV}, s{S_PADV}, 10240")
    A(f"s_mul_i32 s{S_PSRC}, s{T}, 96")
    A(f"s_mul_i32 s{S_PSRC}, s{S_PSRC}, s{S_PADV}")
    A(f"s_mul_i32 s{H}, s{T2}, 320")
    A(f"s_mul_i32 s{H}, s{H}, s{S_J}")
    A(f"s_add_u32 s{S_PSRC}, s{S_PSRC}, s{H}")
    A(f"s_lshr_b32 s{H}, s{S_PADV}, 1")
    A(f"s_mul_i32 s{H}, s{H}, s{S_R}")
    A(f"s_add_u32 s{S_PSRC}, s{S_PSRC}, s{H}")
    A(f"s_mul_i32 s100, s{T}, 96")
    A(f"s_mul_i32 s100, s100, s{S_PADV}")
    A(f"s_mul_i32 s{H}, s{T2}, 3")
    A(f"s_and_b32 s{BH}, s{B}, 3")
    A(f"s_add_u32 s{H}, s{H}, s{BH}")
    A(f"s_mul_i32 s{H}, s{H}, s{S_J}")
    A(f"s_add_u32 s{H}, s{H}, s{T2}")
    A(f"s_mul_i32 s{H}, s{H}, 5120")
    A(f"s_add_u32 s100, s100, s{H}")
    A(f"s_mul_i32 s{H}, s{S_R}, 2560")
    A(f"s_add_u32 s100, s100, s{H}")
    A(f"s_mov_b32 s{S_PBASE}, s{S_PSRC}")
    A(f"s_and_b32 s{S_PQ}, s{XCD}, {3 if ROT_OP else 0}")
    A(f"s_mul_i32 s{H}, s{S_PQ}, 24")
    A(f"s_mul_i32 s{H}, s{H}, s{S_PADV}")
    A(f"s_add_u32 s{S_PSRC}, s{S_PSRC}, s{H}")
    if FAKE_OP:
        A(f"s_mov_b32 s{S_PADV}, 0")
    A(f"s_mul_i32 s{S_COFF}, s{B}, {160*2560}")
    A(f"s_mul_i32 s{H}, s{S_R}, {80*2560}")
    A(f"s_add_u32 s{S_COFF}, s{S_COFF}, s{H}")
    A(f"s_mul_i32 s{H}, s{BLK}, 1280")
    A(f"s_add_u32 s{S_COFF}, s{S_COFF}, s{H}")
    A(f"s_mul_i32 s{H}, s{T2}, 320")
    A(f"s_add_u32 s{S_COFF}, s{S_COFF}, s{H}")
    A(f"s_mul_i32 s{H}, s{S_J}, 160")
    A(f"s_add_u32 s{S_COFF}, s{S_COFF}, s{H}")
    A(f"s_mov_b32 s{S_QUAD}, s{QUAD}")
    A(f"s_lshl_b32 s{H}, s{GB}, 3")
    A(f"s_add_u32 s{T}, s{H}, s{QUAD}")
    A(f"s_lshl_b32 s{T}, s{T}, 2")
    A(f"s_add_u32 s{T}, s{T}, s{S_WAVE}")
    A(f"s_mul_i32 s{S_ESND}, s{T}, 13312")
    A(f"s_lshl_b32 s{S_FOWN}, s{T}, 7")
    A(f"s_add_u32 s{S_FOWN}, s{S_FOWN}, {1024*13312}")
    A(f"s_xor_b32 s{T}, s{T}, 16")
    A(f"s_mul_i32 s{S_ERCV}, s{T}, 13312")
    A(f"s_lshl_b32 s{S_FPART}, s{T}, 7")
    A(f"s_add_u32 s{S_FPART}, s{S_FPART}, {1024*13312}")
    A(f"s_lshl_b32 s{S_GRP}, s{GB}, 3")
    c = math.log2(math.e) / math.sqrt(192.0)
    cb = struct.unpack('<I', struct.pack('<f', c))[0]
    A(f"s_mov_b32 s{S_SCALE}, 0x{cb:08x}")
    A(f"s_mov_b32 s{S_UNIT}, 0")
    A(f"s_mov_b32 s{S_DMIN}, 0")
    A(f"s_mov_b32 s{S_FORCED}, 0")
    if FAST0:
        for g in (2, 3):
            o += straight(dma_item(g))
    return o


def build(name, ws):
    pro = prologue(name, ws)
    units = []
    for u in range(NUNITS):
        bl = q_phase(u) + a_phase(u)
        if u == 0:
            bl = [b for b in bl if b[0] != 'qdrain']
        else:
            k = [b[0] for b in bl].index('a12')
            bl[k:k] = [('t1issue', tail1_issue(name, ws))]
            k = [b[0] for b in bl].index('a13')
            bl[k:k] = [('t1check', tail1_check(name))]
        units.append(bl)
    opb = op_phase(name)
    stream = list(pro)
    for ub in units:
        for _, b in ub:
            stream += b
    for _, b in opb:
        stream += b
    resolve_waits(stream)
    errs = check_hazards(stream, name)
    for sp in slow_paths():
        errs += check_hazards(sp, 'slow')
    if errs:
        raise RuntimeError("\n".join(errs[:30]))
    ub, ub1 = dict(units[0]), dict(units[1])
    shared = ['qpre0', 'qfin', 'asig', 'a1h'] + [f'q{it}' for it in range(1, 10)] + ([] if FAST0 else ['qpre', 'q0']) + [f'a{t}' for t in range(12)]
    for k in shared:
        merge_min([ub[k], ub1[k]])
    ub.update(dict(opb))
    out = [x.text() for x in pro]
    tramp = []
    cnt = [0]
    nst = [0]

    def stamp(real=False, fine=False):
        if STAMPS and (fine == FINE or real):
            out.extend(["s_memrealtime s[4:5]" if (real or ALLREAL) else "s_memtime s[4:5]", "s_waitcnt lgkmcnt(0)", f"s_mov_b32 s{S_ST+nst[0]}, s4"])
            nst[0] += 1

    def flush_stamps(slot_expr):
        if STAMPS:
            out.extend([f"s_lshl_b32 s4, s2, 2", f"s_add_u32 s4, s4, s{S_WAVE}", "s_lshl_b32 s4, s4, 2",
                        f"s_add_u32 s4, s4, {slot_expr}", "s_lshl_b32 s4, s4, 6",
                        f"s_add_u32 s4, s4, s6", "s_addc_u32 s5, s7, 0",
                        f"s_add_u32 s4, s4, {ws['dbg_off']}", "s_addc_u32 s5, s5, 0",
                        "v_mov_b32 v1, 0"])
            for k in range(nst[0]):
                out.extend([f"v_mov_b32 v2, s{S_ST+k}", f"global_store_dword v1, v2, s[4:5] offset:{4*k}"])
            out.extend(["v_mov_b32 v2, s99", f"global_store_dword v1, v2, s[4:5] offset:{4*14}"])
            out.extend(["v_mov_b32 v2, s101", f"global_store_dword v1, v2, s[4:5] offset:{4*15}"])
            nst[0] = 0

    if STAMPS:
        out[3:3] = ["s_memrealtime s[4:5]" if ALLREAL else "s_memtime s[4:5]", "s_waitcnt lgkmcnt(0)", "s_mov_b32 s101, s4"]

    def emit(block, adv=None):
        k = cnt[0]
        cnt[0] += 1
        for x in block:
            t = x.text()
            if '@TRAMP' in t:
                par = t.split('@TRAMP')[1][:2]
                kk = cnt[0]
                cnt[0] += 1
                out.append(t.replace(f'@TRAMP{par}@', f'L_tr{kk}'))
                out.append(f'L_back{kk}:')
                tramp.extend([f'L_tr{kk}:', f's_call_b64 s[{S_RET}:{S_RET+1}], L_slow{par}', f's_branch L_back{kk}'])
            elif '@L1@' in t:
                out.append(t.replace('@L1@', f'L_sig{k}'))
            elif '@OADV' in t or '@WADV' in t:
                key = t[t.index('@'):]
                if adv and key in adv:
                    out.append(t.replace(key, adv[key]))
                else:
                    out.append(t.replace(key, str(x.extra)))
            else:
                out.append(t)

    def loop(label, names_list, top=None, adv=None):
        body = [sum((ub[n] for n in names), []) for names in names_list]
        merged = merge_min(body)
        out.append(f"s_mov_b32 s{S_LOOP}, {len(names_list)}")
        out.append(".p2align 3")
        out.append(f"{label}:")
        if top:
            out.extend(top)
        emit(merged, adv)
        out.append(f"s_sub_u32 s{S_LOOP}, s{S_LOOP}, 1")
        out.append(f"s_cmp_lg_u32 s{S_LOOP}, 0")
        out.append(f"s_cbranch_scc1 {label}")

    out.append(f"L_{name}_unit:")
    stamp()
    emit(ub['qpre0'])
    out.append(f"s_cmp_eq_u32 s{S_UNIT}, 0")
    out.append(f"s_cbranch_scc1 L_{name}_nodrain")
    emit(ub1['qdrain'])
    if FAST0:
        ns = nst[0]
        emit(ub1['qpre'])
        stamp()
        stamp(fine=True)
        emit(ub1['q0'])
        out.append(f"s_branch L_{name}_q1")
        nst[0] = ns
    out.append(f"L_{name}_nodrain:")
    emit(ub['qpre'])
    stamp()
    for it in range(10):
        if it == 1:
            out.append(f"L_{name}_q1:")
        stamp(fine=True)
        emit(ub[f'q{it}'])
    stamp(fine=True)
    stamp()
    emit(ub['qfin'])
    stamp()
    emit(ub['a0'])
    stamp()
    emit(ub['a1h'])
    emit(ub['a1'])
    emit(ub['asig'])
    stamp()
    emit(ub['a2'])
    emit(ub['a3'])
    loop(f"L_{name}_a", [[f'a{t}', f'a{t+1}'] for t in range(4, 12, 2)])
    stamp()
    nsave = nst[0]
    out.append(f"s_cmp_eq_u32 s{S_UNIT}, {NUNITS-1}")
    out.append(f"s_cbranch_scc1 L_{name}_tail1")
    for t in (12, 13, 14, 15):
        emit(ub[f'a{t}'])
    emit(ub['apost'])
    stamp()
    emit(ub['lred'])
    stamp()
    stamp(True)
    flush_stamps("0")
    out.append(f"s_add_u32 s{S_UNIT}, s{S_UNIT}, 1")
    out.append(f"s_branch L_{name}_unit")
    out.append(f"L_{name}_tail1:")
    nst[0] = nsave
    for k in ('t1issue', 'a12', 't1check', 'a13', 'a14', 'a15', 'apost'):
        emit(ub1[k])
    stamp()
    emit(ub1['lred'])
    stamp()
    stamp(True)
    flush_stamps("1")
    stamp()
    stamp(True)
    emit(ub['oppro'])
    stamp()
    for nme, _ in opb:
        if nme in ('oppro', 'opepi'):
            continue
        if nme in ('op16', 'op24'):
            stamp()
        if nme in [f'op{x}' for x in range(0, 22, 2)]:
            stamp(fine=True)
        emit(ub[nme])
    stamp()
    emit(ub['opepi'])
    if STAMPS:
        out.append("s_waitcnt vmcnt(0)")
    stamp()
    stamp(True)
    flush_stamps("2")
    out.append(f"L_{name}_done:")
    out.append("s_endpgm")
    out += tramp
    for sp in slow_paths():
        out += [x.text() for x in sp]
    out.append(f"L_{name}_end:")
    return out
```

```python
import sys, importlib
import gen
def make(out, mod='kf', **kw):
    m = importlib.import_module(mod)
    importlib.reload(m)
    m.STAMPS = True
    m.ALLREAL = True
    for k, v in kw.items():
        setattr(m, k, v)
    gen.kf = m
    gen.main(out, True)
    print(out, m.q_phase.info, m.op_phase.info)
if __name__ == "__main__":
    for args, kw in [
        (('fa.s',), dict(mod='kf_v11_s1')),
        (('fb.s',), dict(mod='kf_v11_s1', NOSTASH=True)),
        (('fc.s',), dict(mod='kf_v11_s1', FAKE_W=True, FAKE_X=True)),
        (('fd.s',), dict(mod='kf_v11_s1', NOSTASH=True, FAKE_W=True, FAKE_X=True)),
        (('fe.s',), dict(mod='kf_v11_s1', QST_POL=' nt')),
        (('ff.s',), dict(mod='kf_v11_s1', YMASK=4)),
    ]:
        make(*args, **kw)
```
